```python
import torch

def _softmax(x, axis=-1):
    return torch.softmax(x, dim=axis)

def _gelu(x):
    return torch.nn.functional.gelu(x, approximate='tanh')

def _silu(x):
    return torch.nn.functional.silu(x)

def _sigmoid(x):
    return torch.sigmoid(x)

def _layernorm(x, axis=-1, eps=1e-05):
    m = x.mean(dim=axis, keepdim=True)
    v = x.var(dim=axis, keepdim=True, unbiased=False)
    return (x - m) / torch.sqrt(v + eps)

def _scatter_add(tgt, idx, src, axis=0):
    return tgt.clone().index_add_(axis, idx, src)

def _segment_sum(src, seg, n):
    out = torch.zeros((n,) + src.shape[1:], dtype=src.dtype)
    return out.index_add_(0, seg, src)

def _pad(x, pw):
    flat = tuple((v for pair in reversed(pw) for v in pair))
    return torch.nn.functional.pad(x, flat)
kernel_name = 'sequential_preLN__grouped_kv_mqa__mixer_gmlp__prompt'

def setup_inputs():

    _w = lambda a: (lambda t: t.to(torch.bfloat16) if t.is_floating_point() else t)(torch.as_tensor(a))

    def _A_setup():
        B, S, D, H = (1, 2048, 512, 32)
        Dh = D // H
        return {'x': _w((lambda *s: torch.randn(*s, dtype=torch.bfloat16) * 0.05)(B, S, D)), 'wq': _w((lambda *s: torch.randn(*s, dtype=torch.bfloat16) * 0.05)(D, H * Dh)), 'wk': _w((lambda *s: torch.randn(*s, dtype=torch.bfloat16) * 0.05)(D, Dh)), 'wv': _w((lambda *s: torch.randn(*s, dtype=torch.bfloat16) * 0.05)(D, Dh)), 'wo': _w((lambda *s: torch.randn(*s, dtype=torch.bfloat16) * 0.05)(H * Dh, D))}
    _A_in = _A_setup()

    def _B_setup():
        B, S, D, F = (1, 2048, 512, 1376)
        Fh = F // 2
        return {'x': _w((lambda *s: torch.randn(*s, dtype=torch.bfloat16) * 0.05)(B, S, D)), 'w_in': _w((lambda *s: torch.randn(*s, dtype=torch.bfloat16) * 0.4)(D, 2 * Fh)), 'w_sp': _w(0.01 * (lambda *s: torch.randn(*s, dtype=torch.bfloat16) * 0.4)(S, S)), 'b_sp': _w(1.0 + 0.01 * (lambda *s: torch.randn(*s, dtype=torch.bfloat16) * 0.05)(S)), 'w_out': _w((lambda *s: torch.randn(*s, dtype=torch.bfloat16) * 0.05)(Fh, D))}
    _B_in = _B_setup()
    return {'A_x': _A_in['x'], 'A_wq': _A_in['wq'], 'A_wk': _A_in['wk'], 'A_wv': _A_in['wv'], 'A_wo': _A_in['wo'], 'B_x': _B_in['x'], 'B_w_in': _B_in['w_in'], 'B_w_sp': _B_in['w_sp'], 'B_b_sp': _B_in['b_sp'], 'B_w_out': _B_in['w_out']}

def reference(A_x, A_wq, A_wk, A_wv, A_wo, B_x, B_w_in, B_w_sp, B_b_sp, B_w_out):

    def _A_ref(x, wq, wk, wv, wo):
        B, S, D = x.shape
        H = 32
        Dh = D // H
        q = (lambda x, *d: x.permute(*d))((x @ wq).reshape(B, S, H, Dh), 0, 2, 1, 3)
        k = x @ wk
        v = x @ wv
        scores = torch.einsum('bhqd,bkd->bhqk', q, k) * Dh ** (-0.5)
        p = _softmax(scores, axis=-1)
        o = torch.einsum('bhqk,bkd->bhqd', p, v)
        return (lambda x, *d: x.permute(*d))(o, 0, 2, 1, 3).reshape(B, S, H * Dh) @ wo

    def _B_ref(x, w_in, w_sp, b_sp, w_out):
        B, S, D = x.shape
        F = w_in.shape[-1]
        Fh = F // 2
        z = _gelu(torch.einsum('bsd,df->bsf', x, w_in))
        z1 = z[..., :Fh].clone()
        z2 = _layernorm(z[..., Fh:], axis=-1)
        g = torch.einsum('ts,bsf->btf', w_sp, z2) + b_sp[None, :, None]
        return torch.einsum('bsf,fd->bsd', z1 * g, w_out)
    x = A_x
    h = x + _A_ref(_layernorm(x, axis=-1), A_wq, A_wk, A_wv, A_wo)
    h2 = h + _B_ref(_layernorm(h, axis=-1), B_w_in, B_w_sp, B_b_sp, B_w_out)
    return h2
```

```python
import re

def vr(b, n=1):
    return f"v{b}" if n == 1 else f"v[{b}:{b+n-1}]"
def sr(b, n=1):
    return f"s{b}" if n == 1 else f"s[{b}:{b+n-1}]"

TRANS = ('v_exp_f32', 'v_log_f32', 'v_rcp_f32', 'v_rsq_f32', 'v_sqrt_f32', 'v_sin_f32', 'v_cos_f32')
_REG = re.compile(r'^(-|\|)?(abs\()?([vs])(\d+|\[(\d+):(\d+)\])\)?\|?$')

def regs_of(tok):
    tok = tok.strip()
    if tok in ('vcc',): return {('s', 106), ('s', 107)}
    if tok == 'vcc_lo': return {('s', 106)}
    if tok == 'vcc_hi': return {('s', 107)}
    if tok == 'exec': return {('s', 126), ('s', 127)}
    if tok == 'm0': return {('s', 124)}
    m = _REG.match(tok)
    if not m: return set()
    k = m.group(3)
    if m.group(5) is not None:
        return {(k, i) for i in range(int(m.group(5)), int(m.group(6)) + 1)}
    return {(k, int(m.group(4)))}

class Ins:
    __slots__ = ('text', 'op', 'kind', 'dst', 'src', 'srcc', 'srcab', 'passes', 'states', 'label', 'target', 'trans', 'dpp', 'perm', 'rdlane', 'wide_store', 'lds_dma', 'sdata', 'dotab')
    def __init__(self, text):
        self.text = text
        self.label = None; self.target = None
        self.dst = set(); self.src = set(); self.srcc = set(); self.srcab = set(); self.sdata = set(); self.dotab = set()
        self.passes = 0; self.states = 1
        self.trans = self.dpp = self.perm = self.rdlane = self.wide_store = self.lds_dma = False
        t = text.split(';')[0].strip()
        if t.endswith(':'):
            self.kind = 'label'; self.label = t[:-1]; self.op = ''; self.states = 0; return
        if t.startswith('.') or not t:
            self.kind = 'dir'; self.op = ''; self.states = 0; return
        parts = t.split(None, 1)
        op = self.op = parts[0]
        rest = parts[1] if len(parts) > 1 else ''
        toks = []; depth = 0; cur = ''
        for ch in rest:
            if ch in '[(': depth += 1
            if ch in '])': depth -= 1
            if ch == ',' and depth == 0:
                toks.append(cur.strip()); cur = ''
            else: cur += ch
        if cur.strip(): toks.append(cur.strip())
        mods = ''
        if toks:
            sp = toks[-1].split(None, 1)
            if len(sp) > 1 and not toks[-1].startswith('hwreg'):
                toks[-1] = sp[0]; mods = sp[1]
        R = [regs_of(x) for x in toks]
        if op.startswith('v_mfma'):
            self.kind = 'mfma'
            self.dst = R[0]; self.srcab = R[1] | R[2]; self.srcc = R[3]; self.src = self.srcab | self.srcc
            self.passes = 8 if '32x32' in op else 4
        elif op.startswith('v_'):
            self.kind = 'valu'
            base = op.replace('_e32', '').replace('_e64', '').replace('_dpp', '').replace('_sdwa', '')
            self.trans = base in TRANS
            self.dpp = ('row_' in mods) or ('quad_perm' in mods) or ('wave_' in mods) or op.endswith('_dpp')
            if base.startswith('v_permlane'):
                self.perm = True; self.dst = R[0] | R[1]; self.src = R[0] | R[1]
            else:
                self.dst = set(R[0])
                for r in R[1:]: self.src |= r
                if base in ('v_add_co_u32', 'v_sub_co_u32', 'v_addc_co_u32'):
                    self.dst |= R[1]
                if base.startswith('v_fmac') or base.startswith('v_dot2c') or base.startswith('v_pk_fmac') or self.dpp or base == 'v_writelane_b32':
                    self.src |= R[0]
                if base.startswith('v_dot'): self.dotab = R[1] | R[2]
                if base in ('v_readfirstlane_b32', 'v_readlane_b32'): self.rdlane = True
                assert not base.startswith('v_cmpx'), text
        elif op.startswith('ds_'):
            self.kind = 'ds'
            if op.startswith('ds_read') or op.startswith('ds_bpermute') or op.startswith('ds_permute') or op.startswith('ds_swizzle') or '_rtn' in op:
                self.dst = R[0]
                for r in R[1:]: self.src |= r
            else:
                for r in R: self.src |= r
        elif op.startswith('buffer_') or op.startswith('global_'):
            self.kind = 'vmem'
            ml = mods.split()
            if op.startswith('buffer_load') and 'lds' in ml:
                self.lds_dma = True
                for r in R: self.src |= r
                self.src |= regs_of('m0')
            elif '_load' in op:
                self.dst = R[0]
                for r in R[1:]: self.src |= r
            elif op in ('buffer_wbl2', 'buffer_inv'):
                pass
            else:
                for r in R: self.src |= r
                if 'atomic' in op and 'sc0' in ml: self.dst = R[0]
                if op.endswith('x4') or op.endswith('x3'):
                    self.wide_store = True
                    self.sdata = R[0] if op.startswith('buffer_') else R[1]
        elif op.startswith('s_'):
            self.kind = 'salu'
            if op == 's_nop': self.states = int(toks[0], 0) + 1
            elif op.startswith('s_cbranch') or op == 's_branch': self.target = toks[0]
            elif op.startswith(('s_cmp', 's_waitcnt', 's_barrier', 's_endpgm', 's_setprio', 's_sleep', 's_bitcmp')):
                for r in R: self.src |= r
            elif op.startswith(('s_load', 's_memtime', 's_memrealtime', 's_getreg')):
                self.kind = 'smem'; self.dst = R[0]
                for r in R[1:]: self.src |= r
            else:
                self.dst = R[0]
                for r in R[1:]: self.src |= r
                if 'saveexec' in op: self.dst = self.dst | regs_of('exec')
        else:
            raise ValueError('unknown instruction: ' + text)

def V(s): return {r for r in s if r[0] == 'v'}
def S(s): return {r for r in s if r[0] == 's'}

def need(p, c):
    n = 0
    if p.kind == 'valu':
        pv = V(p.dst); ps = S(p.dst)
        if c.kind == 'mfma' and pv & c.src: n = max(n, 2)
        if p.op.startswith('v_dot') and pv & (c.src | c.dst):
            if not (c.op == p.op and not (pv & c.dotab)): n = max(n, 3)
        if p.trans and pv & c.src and not (c.kind == 'valu' and c.trans): n = max(n, 1)
        if c.kind == 'valu':
            if c.rdlane and pv & c.src: n = max(n, 1)
            if (c.dpp or c.perm) and pv & c.src: n = max(n, 2)
            if ps & c.src: n = max(n, 4 if c.rdlane else 2)
        if c.kind == 'vmem' and ps & c.src: n = max(n, 5)
        if c.kind in ('salu',) and ps & c.src: n = max(n, 1)
    elif p.kind == 'mfma':
        big = 12 if p.passes == 8 else 8
        if c.kind == 'mfma':
            if p.dst & c.srcab: n = max(n, big)
            if p.dst & c.srcc:
                if not (p.dst == c.srcc and p.passes == c.passes): n = max(n, p.passes + 2)
            elif p.dst & c.dst:
                n = max(n, p.passes + 2)
        elif c.kind in ('valu', 'ds', 'vmem'):
            if p.dst & (c.src | c.dst): n = max(n, big)
            if c.kind == 'valu' and p.srcc & c.dst: n = max(n, p.passes - 1)
    elif p.kind == 'salu':
        if ('s', 124) in p.dst and c.lds_dma: n = max(n, 1)
    elif p.kind == 'vmem':
        if p.wide_store and p.sdata & c.dst: n = max(n, 2 if c.kind in ('valu', 'mfma') else 1)
    return n

def hazard_pass(lines, verbose=False):
    ins = [Ins(l) for l in lines]
    LOOK = 14
    labels = {x.label: i for i, x in enumerate(ins) if x.kind == 'label'}
    br = {}
    for i, x in enumerate(ins):
        if x.target is not None:
            assert x.target in labels, x.text
            br.setdefault(labels[x.target], []).append(i)
    extra = [0] * len(ins)
    changed = True
    while changed:
        changed = False
        for j, c in enumerate(ins):
            if c.kind in ('label', 'dir'): continue
            worst = 0
            stack = [(j - 1, extra[j])]
            seen = {}
            while stack:
                k, acc = stack.pop()
                while k >= 0 and acc < LOOK:
                    x = ins[k]
                    if seen.get(k, 99) <= acc: break
                    seen[k] = acc
                    if x.kind == 'label':
                        for b in br.get(k, []):
                            stack.append((b - 1, acc + 1 + extra[b]))
                        k -= 1
                        continue
                    if x.kind == 'dir':
                        k -= 1; continue
                    if x.op in ('s_endpgm', 's_branch'): break
                    r = need(x, c) - acc
                    if r > worst: worst = r
                    acc += x.states + extra[k]
                    k -= 1
            if worst > 0:
                extra[j] += worst; changed = True
    out = []; n = 0
    for j, c in enumerate(ins):
        if extra[j]:
            out.append(f"  s_nop {extra[j]-1}"); n += 1
            if verbose: print("nop", extra[j], "before", c.text.strip())
        out.append(c.text)
    return out, n

class Kern:
    def __init__(self, name, vgprs=256, sgprs=96):
        self.name = name; self.lines = []; self.vgprs = vgprs; self.sgprs = sgprs; self._lab = 0
    def __call__(self, s):
        for l in s.split('\n'):
            l = l.strip()
            if not l: continue
            self.lines.append(l if l.endswith(':') else '  ' + l)
    def label(self, stem='L'):
        self._lab += 1
        return f"{self.name}_{stem}{self._lab}"
    def text(self, verbose=False):
        body, n = hazard_pass(self.lines, verbose)
        self.nops = n
        t = f".globl {self.name}\n.p2align 8\n.type {self.name},@function\n{self.name}:\n" + "\n".join(body) + "\n"
        return t
    def desc(self):
        return f""".section .rodata,"a"
.p2align 6
.amdhsa_kernel {self.name}
  .amdhsa_next_free_vgpr {self.vgprs}
  .amdhsa_next_free_sgpr {self.sgprs}
  .amdhsa_accum_offset {(self.vgprs + 3) // 4 * 4}
  .amdhsa_group_segment_fixed_size 0
  .amdhsa_kernarg_size 104
  .amdhsa_user_sgpr_count 2
  .amdhsa_user_sgpr_kernarg_segment_ptr 1
  .amdhsa_system_sgpr_workgroup_id_x 1
.end_amdhsa_kernel
"""
```

```python
import sys
from asmlib import *

NAME = "sequential_preLN__grouped_kv_mqa__mixer_gmlp__prompt"
A_X, A_WQ, A_WK, A_WV, A_WO, A_WIN, A_WSP, A_BSP, A_WOUT, A_OUT, A_DBG, A_WS = 0, 8, 16, 24, 32, 48, 56, 64, 72, 80, 88, 96
W_K, W_V, W_KN = 0x0, 0x10000, 0x20000
W_Q, W_O, W_H, W_HS = 0x40000, 0x300000, 0x500000, 0x700000
W_Z1, W_Z2, W_ZS, W_Y = 0x800000, 0xB00000, 0xE00000, 0xF00000
W_WO, W_WIN, W_WOUT, W_WSP, W_FLAG, W_END = 0x1200000, 0x1300000, 0x1500000, 0x1600000, 0x1E00000, 0x2000000
SLICE_BASE = [0, 6, 11, 17, 22, 28, 33, 38]
SLICE_CNT = [6, 5, 6, 5, 6, 5, 5, 5]
QSCALE = 0.25 * 1.4426950408889634
import struct
def f2u(x): return struct.unpack('<I', struct.pack('<f', x))[0]

S_W, S_G, S_J = 4, 5, 6
SRD_WS = 8
ONES = 28
MF32 = "v_mfma_f32_32x32x16_bf16"
MF16 = "v_mfma_f32_16x16x32_bf16"

def srd(k, reg, karg_off, size):
    k(f"s_load_dwordx2 {sr(reg,2)}, s[0:1], {karg_off}")
    k(f"s_mov_b32 s{reg+2}, {size}")
    k(f"s_mov_b32 s{reg+3}, 0x20000")

def prologue(k, endlab):
    k(f"s_cmp_ge_u32 s2, 256")
    k(f"s_cbranch_scc1 {endlab}")
    srd(k, SRD_WS, A_WS, W_END)
    k("v_lshrrev_b32 v1, 6, v0")
    k("v_and_b32 v2, 63, v0")
    k(f"v_readfirstlane_b32 s{S_W}, v1")
    k("v_mov_b32 v1, v2")
    k("v_lshlrev_b32 v2, 4, v1")
    k("s_and_b32 s3, s2, 7")
    k("s_lshr_b32 s7, s2, 3")
    k(f"s_and_b32 s{S_J}, s7, 7")
    k("s_lshr_b32 s7, s7, 3")
    k("s_lshl_b32 s3, s3, 2")
    k(f"s_add_u32 s{S_G}, s3, s7")
    k(f"s_mov_b32 s{ONES}, 0x3f803f80")

def swap_add(k, a, t, which=32, op="v_add_f32"):
    k(f"v_mov_b32 v{t}, v{a}")
    k(f"v_permlane{which}_swap_b32 v{a}, v{t}")
    k(f"{op} v{a}, v{a}, v{t}")

def row_reduce(k, a, op="v_add_f32"):
    for s in (1, 2, 4, 8):
        k(f"{op}_dpp v{a}, v{a}, v{a} row_ror:{s} row_mask:0xf bank_mask:0xf")

def swap23(k, dst, src, t):
    k(f"v_and_b32 v{dst}, 0xfffffff3, v{src}")
    k(f"v_and_b32 v{t}, 4, v{src}")
    k(f"v_lshl_or_b32 v{dst}, v{t}, 1, v{dst}")
    k(f"v_and_b32 v{t}, 8, v{src}")
    k(f"v_lshrrev_b32 v{t}, 1, v{t}")
    k(f"v_or_b32 v{dst}, v{dst}, v{t}")

def tr_lane_parts(k, vG, vjj, vsc, t):
    k(f"v_lshrrev_b32 v{vG}, 4, v1")
    k(f"v_bfe_u32 v{vjj}, v1, 2, 2")
    k(f"v_and_b32 v{t}, 1, v1")
    k(f"v_lshlrev_b32 v{t}, 1, v{t}")
    k(f"v_bfe_u32 v{vsc}, v1, 1, 1")
    k(f"v_or_b32 v{vsc}, v{vsc}, v{t}")

def stats_mu_r(k, s, ss, mu, r, n, t):
    k(f"v_mul_f32 v{mu}, {hex(f2u(1.0/n))}, v{s}")
    k(f"v_mul_f32 v{t}, {hex(f2u(1.0/n))}, v{ss}")
    k(f"v_fma_f32 v{t}, -v{mu}, v{mu}, v{t}")
    k(f"v_max_f32 v{t}, 0, v{t}")
    k(f"v_add_f32 v{t}, {hex(f2u(1e-5))}, v{t}")
    k(f"v_rsq_f32 v{r}, v{t}")

def k_prep():
    k = Kern("prep_kernel", vgprs=128)
    END = "prep_end"
    prologue(k, END)
    SX, SWQ, SWK, SWV = 12, 16, 20, 24
    srd(k, SX, A_X, 2048*1024); srd(k, SWQ, A_WQ, 512*1024); srd(k, SWK, A_WK, 16384); srd(k, SWV, A_WV, 16384)
    L_X, L_WQ, L_WKV = 0, 65536, 131072
    L_ST, L_CSKV, L_CSQ, L_KVP, L_VT, L_QX = 131072, 132096, 133120, 135168, 139264, 143360
    NB, TB, KP = 30, 31, 32
    k(f"s_and_b32 s{NB}, s{S_W}, 1")
    k(f"s_bfe_u32 s{TB}, s{S_W}, 0x10001")
    k(f"s_lshr_b32 s{KP}, s{S_W}, 2")
    k("v_lshrrev_b32 v3, 3, v1")
    k("v_and_b32 v4, 7, v1")
    k(f"v_xor_b32 v5, s{NB}, v3")
    k("v_xor_b32 v5, v5, v4")
    k("v_lshlrev_b32 v5, 4, v5")
    k("v_lshl_add_u32 v5, v3, 10, v5")
    k(f"s_lshl_b32 s33, s{S_G}, 16")
    k(f"s_lshl_b32 s34, s{S_W}, 13")
    k("s_add_u32 s33, s33, s34")
    k(f"s_lshl_b32 s35, s{S_W}, 10")
    k("v_bfe_u32 v6, v3, 1, 1")
    k("v_lshlrev_b32 v6, 2, v6")
    k("v_xor_b32 v6, v6, v4")
    k("v_lshlrev_b32 v6, 4, v6")
    k("v_lshl_add_u32 v6, v3, 10, v6")
    k(f"s_lshl_b32 s36, s{S_J}, 7")
    k("v_add_u32 v6, s36, v6")
    k("s_waitcnt lgkmcnt(0)")
    for cb in range(8):
        k(f"s_add_u32 m0, s35, {L_X + cb*8064}")
        k(f"buffer_load_dwordx4 v5, {sr(SX,4)}, s33 offen offset:{cb*128} lds")
    k(f"s_lshl_b32 s37, s{S_W}, 11")
    for i in range(2):
        k(f"s_add_u32 m0, s37, {L_WKV}")
        k(f"buffer_load_dwordx4 v2, {sr(SWK,4)}, s37 offen offset:{i*1024} lds")
        k(f"s_add_u32 m0, s37, {L_WKV + 16384}")
        k(f"buffer_load_dwordx4 v2, {sr(SWV,4)}, s37 offen offset:{i*1024} lds")
    for i in range(8):
        k(f"s_add_u32 s38, s34, {i*65536}")
        k(f"s_add_u32 m0, s35, {L_WQ + i*8192}")
        k(f"buffer_load_dwordx4 v6, {sr(SWQ,4)}, s38 offen lds")
    XA0, XA1 = 7, 8
    k("v_and_b32 v10, 7, v1")
    k("v_bfe_u32 v11, v1, 3, 2")
    k("v_and_b32 v12, 1, v11")
    k("v_xor_b32 v12, v12, v10")
    k("v_lshrrev_b32 v13, 5, v1")
    k("v_xor_b32 v12, v12, v13")
    k(f"s_lshl_b32 s39, s{KP}, 1")
    k("v_xor_b32 v12, s39, v12")
    k("v_lshlrev_b32 v12, 4, v12")
    k("v_lshl_add_u32 v12, v10, 7, v12")
    k("v_lshl_add_u32 v12, v11, 10, v12")
    k(f"s_lshl_b32 s39, s{TB}, 12")
    k(f"v_add_u32 v{XA0}, s39, v12")
    k(f"v_xor_b32 v{XA1}, 64, v{XA0}")
    G_, JJ, SC = 14, 15, 16
    tr_lane_parts(k, G_, JJ, SC, 17)
    WA, KA = 9, 18
    k(f"v_lshrrev_b32 v17, 1, v{G_}")
    k(f"v_lshl_add_u32 v17, v17, 3, v{JJ}")
    k(f"v_and_b32 v19, 1, v{G_}")
    k("v_lshlrev_b32 v20, 1, v19")
    k(f"v_lshrrev_b32 v21, 1, v{SC}")
    k("v_add_u32 v20, v20, v21")
    k(f"s_lshl_b32 s39, s{NB}, 2")
    k("v_add_u32 v20, s39, v20")
    k(f"v_lshrrev_b32 v21, 1, v{JJ}")
    k("v_lshlrev_b32 v21, 2, v21")
    k("v_xor_b32 v20, v20, v21")
    k("v_lshlrev_b32 v20, 4, v20")
    k("v_lshl_add_u32 v20, v17, 7, v20")
    k(f"v_and_b32 v21, 1, v{SC}")
    k("v_lshl_add_u32 v20, v21, 3, v20")
    k(f"s_lshl_b32 s39, s{KP}, 11")
    k(f"s_add_u32 s39, s39, {L_WQ}")
    k(f"v_add_u32 v{WA}, s39, v20")
    k("v_lshlrev_b32 v20, 14, v19")
    k("v_lshl_add_u32 v20, v17, 5, v20")
    k(f"v_lshl_add_u32 v20, v{SC}, 3, v20")
    k(f"s_lshl_b32 s39, s{KP}, 9")
    k(f"s_add_u32 s39, s39, {L_WKV}")
    k(f"v_add_u32 v{KA}, s39, v20")
    ACC, XF, WF = 32, 48, 64
    SUM, SSQ, CS = 22, 23, 24
    for i in range(16): k(f"v_mov_b32 v{ACC+i}, 0")
    k(f"v_mov_b32 v{SUM}, 0"); k(f"v_mov_b32 v{SSQ}, 0"); k(f"v_mov_b32 v{CS}, 0")
    def xoff(i):
        return (XA0 if i % 2 == 0 else XA1), (i // 2) * 8192
    k("s_waitcnt vmcnt(0)")
    k("s_barrier")
    L_P1KV, L_P1END = k.label(), k.label()
    k(f"s_cmp_eq_u32 s{NB}, 0")
    k(f"s_cbranch_scc1 {L_P1KV}")
    for i0 in range(0, 16, 4):
        for i in range(i0, i0+4):
            a, o = xoff(i)
            k(f"ds_read_b128 {vr(XF+4*(i%4),4)}, v{a} offset:{o}")
        for i in range(i0, i0+4):
            k(f"s_waitcnt lgkmcnt({3-(i-i0)})")
            for q in range(4):
                r = XF + 4*(i%4) + q
                k(f"v_dot2_f32_bf16 v{SUM}, v{r}, s{ONES}, v{SUM}")
                k(f"v_dot2_f32_bf16 v{SSQ}, v{r}, v{r}, v{SSQ}")
    swap_add(k, SUM, 25); swap_add(k, SSQ, 25)
    k(f"s_branch {L_P1END}")
    k(f"{L_P1KV}:")
    k(f"s_and_b32 s39, s{S_J}, 1")
    k(f"s_cmp_lg_u32 s39, s{TB}")
    k(f"s_cbranch_scc1 {L_P1END}")
    for i0 in range(0, 16, 4):
        for i in range(i0, i0+4):
            a, o = xoff(i)
            k(f"ds_read_b128 {vr(XF+4*(i%4),4)}, v{a} offset:{o}")
            k(f"ds_read_b64_tr_b16 {vr(WF+4*(i%4),2)}, v{KA} offset:{i*1024}")
            k(f"ds_read_b64_tr_b16 {vr(WF+4*(i%4)+2,2)}, v{KA} offset:{i*1024+128}")
        for i in range(i0, i0+4):
            k(f"s_waitcnt lgkmcnt({3*(3-(i-i0))})")
            k(f"{MF32} {vr(ACC,16)}, {vr(WF+4*(i%4),4)}, {vr(XF+4*(i%4),4)}, {vr(ACC,16)}")
            for q in range(4):
                k(f"v_dot2_f32_bf16 v{CS}, v{WF+4*(i%4)+q}, s{ONES}, v{CS}")
    swap_add(k, CS, 25)
    k(f"{L_P1END}:")
    k("s_barrier")
    k("v_and_b32 v26, 31, v1")
    swap23(k, 27, 26, 25)
    L_A, L_B = k.label(), k.label()
    k(f"s_cmp_eq_u32 s{NB}, 0")
    k(f"s_cbranch_scc1 {L_A}")
    k(f"s_lshl_b32 s39, s{TB}, 9")
    k(f"s_lshl_b32 s40, s{KP}, 3")
    k("s_add_u32 s39, s39, s40")
    k(f"s_add_u32 s39, s39, {L_ST}")
    k("v_lshlrev_b32 v25, 4, v26")
    k("v_add_u32 v25, s39, v25")
    k(f"ds_write_b64 v25, {vr(SUM,2)}")
    k(f"s_branch {L_B}")
    k(f"{L_A}:")
    k(f"s_and_b32 s39, s{S_J}, 1")
    k(f"s_cmp_lg_u32 s39, s{TB}")
    k(f"s_cbranch_scc1 {L_B}")
    k(f"s_lshl_b32 s39, s{KP}, 7")
    k(f"s_add_u32 s39, s39, {L_CSKV}")
    k("v_lshlrev_b32 v25, 2, v27")
    k("v_add_u32 v25, s39, v25")
    k(f"ds_write_b32 v25, v{CS}")
    KVACC = 96
    for i in range(16): k(f"v_mov_b32 v{KVACC+i}, v{ACC+i}")
    k(f"s_cmp_eq_u32 s{KP}, 0")
    k(f"s_cbranch_scc1 {L_B}")
    k(f"v_add_u32 v28, {L_KVP}, v2")
    for q in range(4):
        k(f"ds_write_b128 v28, {vr(KVACC+4*q,4)} offset:{q*1024}")
    k(f"{L_B}:")
    for i in range(16): k(f"v_mov_b32 v{ACC+i}, 0")
    k(f"v_mov_b32 v{CS}, 0")
    for i0 in range(0, 16, 4):
        for i in range(i0, i0+4):
            a, o = xoff(i)
            k(f"ds_read_b128 {vr(XF+4*(i%4),4)}, v{a} offset:{o}")
            k(f"ds_read_b64_tr_b16 {vr(WF+4*(i%4),2)}, v{WA} offset:{i*4096}")
            k(f"ds_read_b64_tr_b16 {vr(WF+4*(i%4)+2,2)}, v{WA} offset:{i*4096+512}")
        for i in range(i0, i0+4):
            k(f"s_waitcnt lgkmcnt({3*(3-(i-i0))})")
            k(f"{MF32} {vr(ACC,16)}, {vr(WF+4*(i%4),4)}, {vr(XF+4*(i%4),4)}, {vr(ACC,16)}")
            for q in range(4):
                k(f"v_dot2_f32_bf16 v{CS}, v{WF+4*(i%4)+q}, s{ONES}, v{CS}")
    swap_add(k, CS, 25)
    k(f"s_lshl_b32 s39, s{KP}, 8")
    k(f"s_lshl_b32 s40, s{NB}, 7")
    k("s_add_u32 s39, s39, s40")
    k(f"s_add_u32 s39, s39, {L_CSQ}")
    k("v_lshlrev_b32 v25, 2, v27")
    k("v_add_u32 v25, s39, v25")
    k(f"ds_write_b32 v25, v{CS}")
    k(f"s_lshl_b32 s39, s{S_W}, 11")
    k(f"s_add_u32 s39, s39, {L_QX}")
    k("v_add_u32 v28, s39, v2")
    L_C, L_D = k.label(), k.label()
    KEEP = 80
    k(f"s_cmp_eq_u32 s{KP}, 0")
    k(f"s_cbranch_scc1 {L_C}")
    k(f"ds_write_b128 v28, {vr(ACC,4)}")
    k(f"ds_write_b128 v28, {vr(ACC+4,4)} offset:1024")
    for i in range(8): k(f"v_mov_b32 v{KEEP+i}, v{ACC+8+i}")
    k(f"s_branch {L_D}")
    k(f"{L_C}:")
    k(f"ds_write_b128 v28, {vr(ACC+8,4)}")
    k(f"ds_write_b128 v28, {vr(ACC+12,4)} offset:1024")
    for i in range(8): k(f"v_mov_b32 v{KEEP+i}, v{ACC+i}")
    k(f"{L_D}:")
    k("s_waitcnt lgkmcnt(0)")
    k("s_barrier")
    k(f"s_xor_b32 s39, s{S_W}, 4")
    k("s_lshl_b32 s39, s39, 11")
    k(f"s_add_u32 s39, s39, {L_QX}")
    k("v_add_u32 v28, s39, v2")
    k(f"ds_read_b128 {vr(XF,4)}, v28")
    k(f"ds_read_b128 {vr(XF+4,4)}, v28 offset:1024")
    k(f"s_lshl_b32 s39, s{TB}, 9")
    k(f"s_add_u32 s39, s39, {L_ST}")
    k("v_lshlrev_b32 v25, 4, v26")
    k("v_add_u32 v25, s39, v25")
    k(f"ds_read_b128 {vr(XF+8,4)}, v25")
    k(f"s_lshl_b32 s39, s{NB}, 7")
    k(f"s_lshl_b32 s40, s{KP}, 6")
    k("s_add_u32 s39, s39, s40")
    k(f"s_add_u32 s39, s39, {L_CSQ}")
    k("v_lshlrev_b32 v29, 5, v13")
    k("v_add_u32 v25, s39, v29")
    k(f"ds_read_b128 {vr(WF,4)}, v25")
    k(f"ds_read_b128 {vr(WF+4,4)}, v25 offset:16")
    k(f"ds_read_b128 {vr(WF+8,4)}, v25 offset:256")
    k(f"ds_read_b128 {vr(WF+12,4)}, v25 offset:272")
    k("s_waitcnt lgkmcnt(0)")
    MU, RS = 30, 31
    k(f"v_add_f32 v{SUM}, v{XF+8}, v{XF+10}")
    k(f"v_add_f32 v{SSQ}, v{XF+9}, v{XF+11}")
    stats_mu_r(k, SUM, SSQ, MU, RS, 512, 25)
    k(f"v_mul_f32 v25, {hex(f2u(QSCALE))}, v{RS}")
    for i in range(8):
        k(f"v_add_f32 v{KEEP+i}, v{KEEP+i}, v{XF+i}")
        k(f"v_add_f32 v{WF+i}, v{WF+i}, v{WF+8+i}")
        k(f"v_fma_f32 v{KEEP+i}, -v{MU}, v{WF+i}, v{KEEP+i}")
        k(f"v_mul_f32 v{KEEP+i}, v{KEEP+i}, v25")
    for i in range(4):
        k(f"v_cvt_pk_bf16_f32 v{KEEP+8+i}, v{KEEP+2*i}, v{KEEP+2*i+1}")
    k(f"s_lshl_b32 s39, s{S_G}, 3")
    k(f"s_add_u32 s39, s39, s{S_J}")
    k("s_lshl_b32 s39, s39, 3")
    k(f"s_lshl_b32 s40, s{NB}, 2")
    k("s_add_u32 s39, s39, s40")
    k(f"s_lshl_b32 s40, s{TB}, 1")
    k("s_add_u32 s39, s39, s40")
    k(f"s_add_u32 s39, s39, s{KP}")
    k("s_lshl_b32 s39, s39, 10")
    k(f"s_add_u32 s39, s39, {W_Q}")
    k(f"buffer_store_dwordx4 {vr(KEEP+8,4)}, v2, {sr(SRD_WS,4)}, s39 offen")
    L_NOKV = k.label()
    k(f"s_lshl_b32 s39, s{S_J}, 1")
    k(f"s_cmp_lg_u32 s39, s{S_W}")
    k(f"s_cbranch_scc1 {L_NOKV}")
    k(f"s_cmp_ge_u32 s{S_J}, 2")
    k(f"s_cbranch_scc1 {L_NOKV}")
    k(f"v_add_u32 v28, {L_KVP}, v2")
    for q in range(4): k(f"ds_read_b128 {vr(ACC+4*q,4)}, v28 offset:{q*1024}")
    k(f"v_add_u32 v25, {L_CSKV}, v29")
    for q in range(4):
        k(f"ds_read_b128 {vr(XF+4*q,4)}, v25 offset:{(q//2)*64 + (q%2)*16}")
        k(f"ds_read_b128 {vr(WF+4*q,4)}, v25 offset:{128 + (q//2)*64 + (q%2)*16}")
    k("s_waitcnt lgkmcnt(0)")
    for i in range(16):
        k(f"v_add_f32 v{ACC+i}, v{ACC+i}, v{KVACC+i}")
        k(f"v_add_f32 v{XF+i}, v{XF+i}, v{WF+i}")
        k(f"v_fma_f32 v{ACC+i}, -v{MU}, v{XF+i}, v{ACC+i}")
        k(f"v_mul_f32 v{ACC+i}, v{ACC+i}, v{RS}")
    for i in range(8):
        k(f"v_cvt_pk_bf16_f32 v{XF+i}, v{ACC+2*i}, v{ACC+2*i+1}")
    k(f"s_lshl_b32 s39, s{S_G}, 1")
    k(f"s_add_u32 s39, s39, s{TB}")
    k("s_lshl_b32 s40, s39, 10")
    k("v_lshl_add_u32 v25, v13, 5, v27")
    k("v_lshlrev_b32 v25, 4, v25")
    k(f"buffer_store_dwordx4 {vr(XF,4)}, v25, {sr(SRD_WS,4)}, s40 offen")
    k("v_lshlrev_b32 v25, 5, v26")
    k("v_lshl_add_u32 v25, v13, 4, v25")
    k(f"v_add_u32 v25, {L_VT}, v25")
    k(f"ds_write_b128 v25, {vr(XF+4,4)}")
    k(f"v_mov_b32 v{SUM}, 0")
    for q in range(4): k(f"v_dot2_f32_bf16 v{SUM}, v{XF+q}, v{XF+q}, v{SUM}")
    swap_add(k, SUM, 25)
    row_reduce(k, SUM, "v_max_f32")
    swap_add(k, SUM, 25, 16, "v_max_f32")
    k("s_lshl_b32 s41, s39, 2")
    k(f"s_add_u32 s41, s41, {W_KN}")
    k("v_mov_b32 v25, 0")
    k(f"buffer_store_dword v{SUM}, v25, {sr(SRD_WS,4)}, s41 offen")
    k(f"v_and_b32 v19, 1, v{G_}")
    k(f"v_lshrrev_b32 v17, 1, v{G_}")
    k("v_lshlrev_b32 v20, 4, v19")
    k("v_lshl_add_u32 v20, v17, 3, v20")
    k(f"v_add_u32 v20, v20, v{JJ}")
    k("v_lshlrev_b32 v20, 5, v20")
    k("v_and_b32 v21, 3, v1")
    k("v_lshl_add_u32 v20, v21, 3, v20")
    k(f"v_add_u32 v20, {L_VT}, v20")
    k("s_waitcnt lgkmcnt(0)")
    k(f"ds_read_b64_tr_b16 {vr(WF,2)}, v20")
    k(f"ds_read_b64_tr_b16 {vr(WF+2,2)}, v20 offset:128")
    k("v_and_b32 v21, 15, v27")
    k("v_lshlrev_b32 v21, 4, v21")
    k("v_lshl_add_u32 v21, v17, 8, v21")
    k("v_lshl_add_u32 v21, v19, 9, v21")
    k(f"s_add_u32 s40, s40, {W_V}")
    k("s_waitcnt lgkmcnt(0)")
    k(f"buffer_store_dwordx4 {vr(WF,4)}, v21, {sr(SRD_WS,4)}, s40 offen")
    k(f"{L_NOKV}:")
    L_NOF = k.label()
    k(f"s_cmp_lg_u32 s{S_W}, 1")
    k(f"s_cbranch_scc1 {L_NOF}")
    for q in range(4): k(f"v_mov_b32 v{WF+q}, 0")
    k("s_lshl_b32 s39, s2, 10")
    k(f"s_add_u32 s39, s39, {W_FLAG}")
    k(f"buffer_store_dwordx4 {vr(WF,4)}, v2, {sr(SRD_WS,4)}, s39 offen")
    k(f"{L_NOF}:")
    repack(k, G_, JJ, SC)
    k(f"{END}:")
    k("s_endpgm")
    return k

def repack(k, G_, JJ, SC):
    SW = 12
    FR = 32
    srd(k, SW, A_WSP, 2048*4096)
    k("s_lshl_b32 s42, s2, 3")
    k(f"s_add_u32 s42, s42, s{S_W}")
    k("v_and_b32 v20, 15, v1")
    k("v_lshlrev_b32 v20, 12, v20")
    k(f"v_lshl_add_u32 v20, v{G_}, 4, v20")
    k("s_lshr_b32 s39, s42, 4")
    k("s_lshl_b32 s39, s39, 16")
    k("s_and_b32 s40, s42, 15")
    k("s_lshl_b32 s40, s40, 8")
    k("s_add_u32 s39, s39, s40")
    k("s_waitcnt lgkmcnt(0)")
    for q in range(4):
        k(f"buffer_load_dwordx4 {vr(64+4*q,4)}, v20, {sr(SW,4)}, s39 offen offset:{q*64}")
    k(f"s_lshl_b32 s43, s{S_W}, 12")
    k("v_lshrrev_b32 v21, 2, v1")
    k("v_and_b32 v22, 3, v1")
    k("v_lshlrev_b32 v22, 4, v22")
    L_WIN, L_WO, L_WOUT, L_F32, L_DONE = k.label(), k.label(), k.label(), k.label(), k.label()
    k("s_cmp_lt_u32 s2, 43")
    k(f"s_cbranch_scc1 {L_WIN}")
    k("s_sub_u32 s44, s42, 344")
    k("s_cmp_lt_u32 s44, 256")
    k(f"s_cbranch_scc1 {L_WO}")
    k("s_sub_u32 s44, s44, 256")
    k("s_cmp_lt_u32 s44, 352")
    k(f"s_cbranch_scc0 {L_DONE}")
    srd(k, 16, A_WOUT, 688*1024)
    k(f"s_mul_i32 s45, s44, {(65536 + 21)//22}")
    k("s_lshr_b32 s45, s45, 16")
    k("s_mul_i32 s46, s45, 22")
    k("s_sub_u32 s46, s44, s46")
    k("s_mul_i32 s47, s45, 44")
    k("s_lshl_b32 s48, s46, 1")
    k("s_add_u32 s47, s47, s48")
    k("s_lshl_b32 s47, s47, 10")
    k(f"s_add_u32 s47, s47, {W_WOUT}")
    k(f"s_branch {L_F32}")
    k(f"{L_WO}:")
    srd(k, 16, A_WO, 512*1024)
    k("s_lshr_b32 s45, s44, 4")
    k("s_and_b32 s46, s44, 15")
    k("s_lshl_b32 s47, s44, 11")
    k(f"s_add_u32 s47, s47, {W_WO}")
    k(f"{L_F32}:")
    k("s_lshl_b32 s48, s46, 15")
    k("s_lshl_b32 s49, s45, 6")
    k("s_add_u32 s48, s48, s49")
    k("v_lshl_add_u32 v23, v21, 10, v22")
    k("s_mov_b32 m0, s43")
    k("s_waitcnt lgkmcnt(0)")
    k(f"buffer_load_dwordx4 v23, s[16:19], s48 offen lds")
    k("s_add_u32 m0, s43, 1024")
    k("s_add_u32 s48, s48, 16384")
    k(f"buffer_load_dwordx4 v23, s[16:19], s48 offen lds")
    k(f"v_lshrrev_b32 v24, 1, v{G_}")
    k(f"v_lshl_add_u32 v24, v24, 3, v{JJ}")
    k("v_lshlrev_b32 v24, 6, v24")
    k(f"v_and_b32 v25, 1, v{G_}")
    k("v_lshl_add_u32 v24, v25, 5, v24")
    k(f"v_lshl_add_u32 v24, v{SC}, 3, v24")
    k("v_add_u32 v24, s43, v24")
    k("s_waitcnt vmcnt(0)")
    for i in range(2):
        k(f"ds_read_b64_tr_b16 {vr(FR+4*i,2)}, v24 offset:{i*1024}")
        k(f"ds_read_b64_tr_b16 {vr(FR+4*i+2,2)}, v24 offset:{i*1024+256}")
    k("s_waitcnt lgkmcnt(0)")
    for i in range(2):
        k(f"buffer_store_dwordx4 {vr(FR+4*i,4)}, v2, {sr(SRD_WS,4)}, s47 offen offset:{i*1024}")
    k(f"s_branch {L_DONE}")
    k(f"{L_WIN}:")
    srd(k, 16, A_WIN, 512*2752)
    k("s_mov_b32 s49, 2752")
    k("v_mul_lo_u32 v23, v21, s49")
    k("v_add_u32 v23, v23, v22")
    k(f"s_mul_i32 s48, s{S_W}, {64*2752}")
    k("s_lshl_b32 s49, s2, 6")
    k("s_add_u32 s48, s48, s49")
    k("s_waitcnt lgkmcnt(0)")
    for i in range(4):
        k(f"s_add_u32 m0, s43, {i*1024}")
        k(f"buffer_load_dwordx4 v23, s[16:19], s48 offen lds")
        if i < 3: k(f"s_add_u32 s48, s48, {16*2752}")
    k(f"v_lshl_add_u32 v24, v{G_}, 3, v{JJ}")
    k("v_lshlrev_b32 v24, 6, v24")
    k("v_and_b32 v25, 3, v1")
    k("v_lshl_add_u32 v24, v25, 3, v24")
    k("v_add_u32 v24, s43, v24")
    k("s_waitcnt vmcnt(0)")
    for a in range(2):
        for kb in range(2):
            f = FR + 4*(a*2+kb)
            k(f"ds_read_b64_tr_b16 {vr(f,2)}, v24 offset:{kb*2048 + a*32}")
            k(f"ds_read_b64_tr_b16 {vr(f+2,2)}, v24 offset:{kb*2048 + a*32 + 256}")
    k("s_waitcnt lgkmcnt(0)")
    for a in range(2):
        k(f"v_mov_b32 v{26+a}, 0")
        for q in range(8):
            k(f"v_dot2_f32_bf16 v{26+a}, v{FR+8*a+q}, s{ONES}, v{26+a}")
        swap_add(k, 26+a, 25, 32); swap_add(k, 26+a, 25, 16)
    k("v_and_b32 v25, 15, v1")
    k("v_lshlrev_b32 v25, 5, v25")
    k(f"s_lshl_b32 s49, s{S_W}, 2")
    k("s_add_u32 s49, s49, 32768")
    k("v_add_u32 v28, s49, v25")
    k("ds_write_b32 v28, v26")
    k("ds_write_b32 v28, v27 offset:512")
    k("s_waitcnt lgkmcnt(0)")
    k("s_barrier")
    k("v_add_u32 v28, 32768, v25")
    for a in range(2):
        k(f"ds_read_b128 {vr(48+8*a,4)}, v28 offset:{a*512}")
        k(f"ds_read_b128 {vr(52+8*a,4)}, v28 offset:{a*512+16}")
    k("s_waitcnt lgkmcnt(0)")
    for a in range(2):
        b = 48 + 8*a
        for q in range(1, 8): k(f"v_add_f32 v{b}, v{b}, v{b+q}")
        k(f"v_mul_f32 v{b}, {hex(f2u(1.0/512))}, v{b}")
        for q in range(8):
            r = FR + 8*a + q
            k(f"v_lshlrev_b32 v25, 16, v{r}")
            k(f"v_and_b32 v26, 0xffff0000, v{r}")
            k(f"v_sub_f32 v25, v25, v{b}")
            k(f"v_sub_f32 v26, v26, v{b}")
            k(f"v_cvt_pk_bf16_f32 v{r}, v25, v26")
    k("s_lshl_b32 s47, s2, 15")
    k(f"s_lshl_b32 s48, s{S_W}, 11")
    k("s_add_u32 s47, s47, s48")
    k(f"s_add_u32 s47, s47, {W_WIN}")
    k("s_add_u32 s48, s47, 16384")
    for kb in range(2):
        k(f"buffer_store_dwordx4 {vr(FR+4*kb,4)}, v2, {sr(SRD_WS,4)}, s47 offen offset:{kb*1024}")
        k(f"buffer_store_dwordx4 {vr(FR+8+4*kb,4)}, v2, {sr(SRD_WS,4)}, s48 offen offset:{kb*1024}")
    k(f"{L_DONE}:")
    k("s_lshl_b32 s39, s42, 12")
    k(f"s_add_u32 s39, s39, {W_WSP}")
    k("s_waitcnt vmcnt(0)")
    for q in range(4):
        k(f"buffer_store_dwordx4 {vr(64+4*q,4)}, v2, {sr(SRD_WS,4)}, s39 offen offset:{q*1024}")

VMASK = "0x0000ffff"
def attn_core(k, QA, QB, S0, S1, P, OA, OB, KF, VF, KADR, VADR, unroll=4, ntiles=32):
    EXM = 44
    k(f"s_mov_b32 s{EXM}, {VMASK}")
    k(f"s_mov_b32 s{EXM+1}, {VMASK}")
    def vread(i, off):
        k(f"s_mov_b64 exec, {sr(EXM,2)}")
        k(f"ds_read_b128 {vr(VF+4*i,4)}, v{VADR} offset:{off + i*512}")
        k("s_mov_b64 exec, -1")
    k(f"ds_read_b128 {vr(KF,4)}, v{KADR}")
    vread(0, 0)
    k("s_waitcnt lgkmcnt(1)")
    k(f"{MF32} {vr(S0,16)}, {vr(KF,4)}, {vr(QA,4)}, 0")
    for i in range(4, 8): k(f"v_mov_b32 v{P+i}, 0")
    k(f"s_mov_b32 s46, {ntiles // unroll}")
    k("s_nop 7")
    LOOP = k.label("attn")
    k(".p2align 6")
    k(f"{LOOP}:")
    def unit(S, Snext, Qnext, Oprev, Ocur, isA, t):
        if not isA:
            k("s_waitcnt lgkmcnt(0)")
        k(f"{MF32} {vr(Snext,16)}, {vr(KF,4)}, {vr(Qnext,4)}, 0")
        k(f"v_exp_f32 v{S}, v{S}")
        k(f"v_exp_f32 v{S+1}, v{S+1}")
        k(f"{MF32} {vr(Oprev,16)}, {vr(VF+4,4)}, {vr(P+4,4)}, {vr(Oprev,16)}")
        if isA:
            k(f"ds_read_b128 {vr(KF,4)}, v{KADR} offset:{(t+1)*1024}")
            vread(1, t*1024)
        for i in range(1, 8):
            k(f"v_exp_f32 v{S+2*i}, v{S+2*i}")
            k(f"v_exp_f32 v{S+2*i+1}, v{S+2*i+1}")
            if i == 5:
                if isA: k("s_waitcnt lgkmcnt(2)")
                k(f"{MF32} {vr(Ocur,16)}, {vr(VF,4)}, {vr(P,4)}, {vr(Ocur,16)}")
                if not isA: vread(0, (t+1)*1024)
            k(f"v_cvt_pk_bf16_f32 v{P+i-1}, v{S+2*i-2}, v{S+2*i-1}")
        k(f"v_cvt_pk_bf16_f32 v{P+7}, v{S+14}, v{S+15}")
    for t in range(unroll):
        unit(S0, S1, QB, OB, OA, True, t)
        unit(S1, S0, QA, OA, OB, False, t)
    k(f"v_add_u32 v{KADR}, {unroll*1024}, v{KADR}")
    k(f"v_add_u32 v{VADR}, {unroll*1024}, v{VADR}")
    k("s_sub_u32 s46, s46, 1")
    k("s_cmp_lg_u32 s46, 0")
    k(f"s_cbranch_scc1 {LOOP}")
    k(f"{MF32} {vr(OB,16)}, {vr(VF+4,4)}, {vr(P+4,4)}, {vr(OB,16)}")
    k("s_waitcnt lgkmcnt(0)")

def attn_slow(k, Q, O, S, C, P, KF, VF, KH):
    T0, T1 = 10, 11
    k(f"v_mov_b32 v{C}, 0xff800000")
    k(f"v_mov_b32 v{T0}, v2")
    k("s_mov_b32 s46, 64")
    L1 = k.label("sl")
    k(f"{L1}:")
    k(f"ds_read_b128 {vr(KF,4)}, v{T0}")
    k("s_waitcnt lgkmcnt(0)")
    k(f"{MF32} {vr(S,16)}, {vr(KF,4)}, {vr(Q,4)}, 0")
    k(f"v_add_u32 v{T0}, 1024, v{T0}")
    for i in range(8): k(f"v_max3_f32 v{C}, v{S+2*i}, v{S+2*i+1}, v{C}")
    k("s_sub_u32 s46, s46, 1")
    k("s_cmp_lg_u32 s46, 0")
    k(f"s_cbranch_scc1 {L1}")
    swap_add(k, C, T0, 32, "v_max_f32")
    k(f"v_sub_f32 v{C}, 0, v{C}")
    for i in range(1, 16): k(f"v_mov_b32 v{C+i}, v{C}")
    k(f"s_lshl_b32 s47, s{KH}, 15")
    k(f"v_add_u32 v{T0}, s47, v2")
    k(f"v_add_u32 v{T1}, s47, v3")
    k("s_mov_b32 s46, 32")
    L2 = k.label("sl")
    k(f"{L2}:")
    k(f"ds_read_b128 {vr(KF,4)}, v{T0}")
    k(f"s_mov_b64 exec, s[44:45]")
    k(f"ds_read_b128 {vr(VF,4)}, v{T1}")
    k(f"ds_read_b128 {vr(VF+4,4)}, v{T1} offset:512")
    k("s_mov_b64 exec, -1")
    k("s_waitcnt lgkmcnt(0)")
    k(f"{MF32} {vr(S,16)}, {vr(KF,4)}, {vr(Q,4)}, {vr(C,16)}")
    k(f"v_add_u32 v{T0}, 1024, v{T0}")
    k(f"v_add_u32 v{T1}, 1024, v{T1}")
    for i in range(16): k(f"v_exp_f32 v{S+i}, v{S+i}")
    for i in range(8): k(f"v_cvt_pk_bf16_f32 v{P+i}, v{S+2*i}, v{S+2*i+1}")
    k(f"{MF32} {vr(O,16)}, {vr(VF,4)}, {vr(P,4)}, {vr(O,16)}")
    k(f"{MF32} {vr(O,16)}, {vr(VF+4,4)}, {vr(P+4,4)}, {vr(O,16)}")
    k("s_sub_u32 s46, s46, 1")
    k("s_cmp_lg_u32 s46, 0")
    k(f"s_cbranch_scc1 {L2}")

def k_attn(force_slow=False):
    k = Kern("attn_kernel", vgprs=128)
    END = "attn_end"
    prologue(k, END)
    QP, KH = 30, 31
    k(f"s_and_b32 s{QP}, s{S_W}, 3")
    k(f"s_lshr_b32 s{KH}, s{S_W}, 2")
    QA, QB, KF, VF, P = 16, 20, 24, 28, 36
    S0, S1, OA, OB = 48, 64, 80, 96
    KADR, VADR = 4, 5
    k("s_waitcnt lgkmcnt(0)")
    k(f"s_lshl_b32 s33, s{S_G}, 3")
    k(f"s_add_u32 s33, s33, s{S_J}")
    k("s_lshl_b32 s33, s33, 13")
    k(f"s_lshr_b32 s34, s{QP}, 1")
    k("s_lshl_b32 s34, s34, 12")
    k("s_add_u32 s33, s33, s34")
    k(f"s_and_b32 s34, s{QP}, 1")
    k("s_lshl_b32 s34, s34, 11")
    k("s_add_u32 s33, s33, s34")
    k(f"s_add_u32 s33, s33, {W_Q}")
    k(f"buffer_load_dwordx4 {vr(QA,4)}, v2, {sr(SRD_WS,4)}, s33 offen")
    k(f"buffer_load_dwordx4 {vr(QB,4)}, v2, {sr(SRD_WS,4)}, s33 offen offset:1024")
    k("v_lshlrev_b32 v6, 2, v1")
    k(f"s_mov_b32 s34, {W_KN}")
    k(f"buffer_load_dword v7, v6, {sr(SRD_WS,4)}, s34 offen")
    k(f"s_lshl_b32 s35, s{S_W}, 10")
    for i in range(16):
        k(f"s_add_u32 s36, s35, {i*8192}")
        k("s_mov_b32 m0, s36")
        k(f"buffer_load_dwordx4 v2, {sr(SRD_WS,4)}, s36 offen lds")
    k(f"s_lshl_b32 s36, s{KH}, 15")
    k(f"v_add_u32 v{KADR}, s36, v2")
    k("v_and_b32 v3, 15, v1")
    k("v_lshlrev_b32 v3, 4, v3")
    k("v_lshrrev_b32 v8, 5, v1")
    k("v_lshl_add_u32 v3, v8, 8, v3")
    k("v_add_u32 v3, 0x10000, v3")
    k(f"v_add_u32 v{VADR}, s36, v3")
    k("v_and_b32 v8, 27, v1")
    k("v_cmp_eq_u32 vcc, 16, v8")
    k(f"v_mov_b32 v9, s{ONES}")
    k("v_cndmask_b32 v9, 0, v9, vcc")
    for i in range(8): k(f"v_mov_b32 v{VF+i}, v9")
    for i in range(16): k(f"v_mov_b32 v{OA+i}, 0"); k(f"v_mov_b32 v{OB+i}, 0")
    k("s_waitcnt vmcnt(16)")
    k("v_mov_b32 v8, 0"); k("v_mov_b32 v9, 0")
    for q in range(4):
        k(f"v_dot2_f32_bf16 v8, v{QA+q}, v{QA+q}, v8")
        k(f"v_dot2_f32_bf16 v9, v{QB+q}, v{QB+q}, v9")
    swap_add(k, 8, 10); swap_add(k, 9, 10)
    k("v_max_f32 v8, v8, v9")
    row_reduce(k, 8, "v_max_f32"); swap_add(k, 8, 10, 16, "v_max_f32")
    row_reduce(k, 7, "v_max_f32"); swap_add(k, 7, 10, 16, "v_max_f32"); swap_add(k, 7, 10, 32, "v_max_f32")
    k("v_mul_f32 v8, v8, v7")
    k(f"v_cmp_nle_f32 vcc, v8, v11".replace("v11", "v11"))
    k.lines.insert(len(k.lines)-1, f"  v_mov_b32 v11, {hex(f2u(-1.0 if force_slow else 1600.0))}")
    k("s_waitcnt vmcnt(0)")
    k("s_barrier")
    SLOW, JOIN = k.label("slow"), k.label("join")
    k(f"s_cbranch_vccnz {SLOW}")
    attn_core(k, QA, QB, S0, S1, P, OA, OB, KF, VF, KADR, VADR)
    k(f"{JOIN}:")
    L_X = 131072 + 1024
    k(f"s_mul_i32 s36, s{S_W}, 2304")
    k(f"s_add_u32 s36, s36, {L_X}")
    k("v_add_u32 v6, s36, v2")
    k("v_lshlrev_b32 v7, 2, v1")
    k("v_add_u32 v7, s36, v7")
    LB, LC = k.label(), k.label()
    k(f"s_cmp_eq_u32 s{KH}, 0")
    k(f"s_cbranch_scc1 {LB}")
    k(f"ds_write_b128 v6, {vr(OA,4)}")
    k(f"ds_write_b128 v6, {vr(OA+4,4)} offset:1024")
    k(f"ds_write_b32 v7, v{OA+8} offset:2048")
    for i in range(9): k(f"v_mov_b32 v{OA+i}, v{OB+i}")
    k(f"s_branch {LC}")
    k(f"{LB}:")
    k(f"ds_write_b128 v6, {vr(OB,4)}")
    k(f"ds_write_b128 v6, {vr(OB+4,4)} offset:1024")
    k(f"ds_write_b32 v7, v{OB+8} offset:2048")
    k(f"{LC}:")
    k(f"s_xor_b32 s37, s{S_W}, 4")
    k("s_mul_i32 s36, s37, 2304")
    k(f"s_add_u32 s36, s36, {L_X}")
    k("v_add_u32 v6, s36, v2")
    k("v_lshlrev_b32 v7, 2, v1")
    k("v_add_u32 v7, s36, v7")
    k("s_waitcnt lgkmcnt(0)")
    k("s_barrier")
    k(f"ds_read_b128 {vr(S0,4)}, v6")
    k(f"ds_read_b128 {vr(S0+4,4)}, v6 offset:1024")
    k(f"ds_read_b32 v{S0+8}, v7 offset:2048")
    k("s_waitcnt lgkmcnt(0)")
    for i in range(9): k(f"v_add_f32 v{OA+i}, v{OA+i}, v{S0+i}")
    k(f"v_rcp_f32 v8, v{OA+8}")
    for i in range(8): k(f"v_mul_f32 v{OA+i}, v{OA+i}, v8")
    for i in range(4): k(f"v_cvt_pk_bf16_f32 v{P+i}, v{OA+2*i}, v{OA+2*i+1}")
    k(f"s_lshl_b32 s33, s{S_G}, 16")
    k(f"s_and_b32 s34, s{QP}, 1")
    k("s_lshl_b32 s34, s34, 15")
    k("s_add_u32 s33, s33, s34")
    k(f"s_lshl_b32 s34, s{S_J}, 2")
    k(f"s_and_b32 s35, s{QP}, 2")
    k("s_add_u32 s34, s34, s35")
    k(f"s_add_u32 s34, s34, s{KH}")
    k("s_lshl_b32 s34, s34, 10")
    k("s_add_u32 s33, s33, s34")
    k(f"s_add_u32 s33, s33, {W_O}")
    k(f"buffer_store_dwordx4 {vr(P,4)}, v2, {sr(SRD_WS,4)}, s33 offen")
    k(f"{END}:")
    k("s_endpgm")
    k(f"{SLOW}:")
    k(f"s_mov_b32 s44, {VMASK}")
    k(f"s_mov_b32 s45, {VMASK}")
    attn_slow(k, QA, OA, S0, S1, P, KF, VF, KH)
    attn_slow(k, QB, OB, S0, S1, P, KF, VF, KH)
    k(f"s_branch {JOIN}")
    return k

def gemm32_kernel(name, nks, act_base, act_gstride, w_base, w_nbstride, epi):
    k = Kern(name, vgprs=256 if nks > 32 else 128)
    END = name + "_end"
    prologue(k, END)
    NB, TB, KP = 30, 31, 32
    k(f"s_and_b32 s{NB}, s{S_W}, 1")
    k(f"s_bfe_u32 s{TB}, s{S_W}, 0x10001")
    k(f"s_lshr_b32 s{KP}, s{S_W}, 2")
    nksp = (nks + 1) // 2 * 2
    per = nksp // 2
    nblk = 2 * nksp
    ACC, AF, WF = 16, 32, 48
    srd(k, 12, A_X, 2048*1024)
    srd(k, 16, A_OUT, 2048*1024)
    k("s_waitcnt lgkmcnt(0)")
    k(f"s_mul_i32 s33, s{S_G}, {act_gstride}")
    k(f"s_add_u32 s33, s33, {act_base}")
    k(f"s_lshl_b32 s35, s{S_W}, 10")
    k("s_add_u32 s33, s33, s35")
    for i in range(nblk // 8):
        k(f"s_add_u32 m0, s35, {i*8192}")
        k(f"s_add_u32 s36, s33, {i*8192}")
        k(f"buffer_load_dwordx4 v2, {sr(SRD_WS,4)}, s36 offen sc1 lds")
    k(f"s_lshl_b32 s36, s{S_J}, 1")
    k(f"s_add_u32 s36, s36, s{NB}")
    k(f"s_mul_i32 s36, s36, {w_nbstride}")
    k(f"s_lshl_b32 s37, s{KP}, 10")
    k("s_add_u32 s36, s36, s37")
    k(f"s_add_u32 s36, s36, {w_base}")
    for i in range(per):
        if i % 2 == 0 and i > 0: k("s_add_u32 s36, s36, 4096")
        k(f"buffer_load_dwordx4 {vr(WF+4*i,4)}, v2, {sr(SRD_WS,4)}, s36 offen offset:{(i%2)*2048}")
    epi(k, 'pre', NB, TB, KP)
    k(f"s_mul_i32 s37, s{TB}, {nksp*1024}")
    k(f"s_lshl_b32 s38, s{KP}, 10")
    k("s_add_u32 s37, s37, s38")
    k("v_add_u32 v3, s37, v2")
    for i in range(16): k(f"v_mov_b32 v{ACC+i}, 0")
    k("s_waitcnt vmcnt(0)")
    k("s_barrier")
    for i in range(min(4, per)):
        k(f"ds_read_b128 {vr(AF+4*(i%4),4)}, v3 offset:{i*2048}")
    for i in range(per):
        k(f"s_waitcnt lgkmcnt({min(3, per-1-i)})")
        if nks % 2 and i == per - 1:
            LS = k.label()
            k(f"s_cmp_lg_u32 s{KP}, 0")
            k(f"s_cbranch_scc1 {LS}")
        k(f"{MF32} {vr(ACC,16)}, {vr(WF+4*i,4)}, {vr(AF+4*(i%4),4)}, {vr(ACC,16)}")
        if nks % 2 and i == per - 1:
            k(f"{LS}:")
        if i + 4 < per:
            k(f"ds_read_b128 {vr(AF+4*(i%4),4)}, v3 offset:{(i+4)*2048}")
    L_X = nblk * 1024
    k(f"s_lshl_b32 s39, s{S_W}, 11")
    k(f"s_add_u32 s39, s39, {L_X}")
    k("v_add_u32 v4, s39, v2")
    LC, LD = k.label(), k.label()
    k(f"s_cmp_eq_u32 s{KP}, 0")
    k(f"s_cbranch_scc1 {LC}")
    k(f"ds_write_b128 v4, {vr(ACC,4)}")
    k(f"ds_write_b128 v4, {vr(ACC+4,4)} offset:1024")
    for i in range(8): k(f"v_mov_b32 v{ACC+i}, v{ACC+8+i}")
    k(f"s_branch {LD}")
    k(f"{LC}:")
    k(f"ds_write_b128 v4, {vr(ACC+8,4)}")
    k(f"ds_write_b128 v4, {vr(ACC+12,4)} offset:1024")
    k(f"{LD}:")
    k(f"s_xor_b32 s39, s{S_W}, 4")
    k("s_lshl_b32 s39, s39, 11")
    k(f"s_add_u32 s39, s39, {L_X}")
    k("v_add_u32 v4, s39, v2")
    k("s_waitcnt lgkmcnt(0)")
    k("s_barrier")
    k(f"ds_read_b128 {vr(AF,4)}, v4")
    k(f"ds_read_b128 {vr(AF+4,4)}, v4 offset:1024")
    k("s_waitcnt lgkmcnt(0)")
    for i in range(8): k(f"v_add_f32 v{ACC+i}, v{ACC+i}, v{AF+i}")
    epi(k, 'post', NB, TB, KP, ACC, L_X + 16384)
    k(f"{END}:")
    k("s_endpgm")
    k.lds = L_X + 16384 + 4096
    return k

RES = 8
def rowmajor_off(k, dst, NB, TB, KP):
    k("v_and_b32 v5, 31, v1")
    k("v_lshlrev_b32 v5, 10, v5")
    k("v_lshrrev_b32 v6, 5, v1")
    k(f"v_lshl_add_u32 v{dst}, v6, 4, v5")
    k(f"s_lshl_b32 s40, s{S_G}, 16")
    k(f"s_lshl_b32 s41, s{TB}, 15")
    k("s_add_u32 s40, s40, s41")
    k(f"s_lshl_b32 s41, s{S_J}, 7")
    k("s_add_u32 s40, s40, s41")
    k(f"s_lshl_b32 s41, s{NB}, 6")
    k("s_add_u32 s40, s40, s41")
    k(f"s_lshl_b32 s41, s{KP}, 5")
    k("s_add_u32 s40, s40, s41")
def h_off(k, dst, NB, TB, KP):
    k("v_and_b32 v5, 15, v1")
    k("v_lshlrev_b32 v5, 4, v5")
    k("v_lshrrev_b32 v6, 5, v1")
    k("v_lshl_add_u32 v5, v6, 8, v5")
    k("v_bfe_u32 v6, v1, 4, 1")
    k(f"v_lshl_add_u32 v{dst}, v6, 14, v5")
    k(f"s_lshl_b32 s42, s{S_G}, 16")
    k(f"s_lshl_b32 s41, s{TB}, 15")
    k("s_add_u32 s42, s42, s41")
    k(f"s_lshl_b32 s41, s{S_J}, 11")
    k("s_add_u32 s42, s42, s41")
    k(f"s_lshl_b32 s41, s{NB}, 10")
    k("s_add_u32 s42, s42, s41")
    k(f"s_lshl_b32 s41, s{KP}, 9")
    k("s_add_u32 s42, s42, s41")
    k(f"s_add_u32 s42, s42, {W_H}")
def add_residual(k, ACC):
    for i in range(4):
        k(f"v_lshlrev_b32 v5, 16, v{RES+i}")
        k(f"v_and_b32 v6, 0xffff0000, v{RES+i}")
        k(f"v_add_f32 v{ACC+2*i}, v{ACC+2*i}, v5")
        k(f"v_add_f32 v{ACC+2*i+1}, v{ACC+2*i+1}, v6")
    for i in range(4):
        k(f"v_cvt_pk_bf16_f32 v{RES+i}, v{ACC+2*i}, v{ACC+2*i+1}")

def publish_stats(k, L_S, wsoff, nparts):
    L = k.label()
    k(f"s_cmp_lg_u32 s{S_W}, 0")
    k(f"s_cbranch_scc1 {L}")
    k("v_lshlrev_b32 v5, 3, v1")
    k(f"v_add_u32 v5, {L_S}, v5")
    for p in range(nparts): k(f"ds_read_b64 {vr(32+2*p,2)}, v5 offset:{p*512}")
    k("v_lshrrev_b32 v6, 4, v1")
    k("v_lshlrev_b32 v6, 10, v6")
    k("v_and_b32 v7, 15, v1")
    k("v_lshl_add_u32 v6, v7, 4, v6")
    k(f"s_lshl_b32 s40, s{S_G}, 12")
    k(f"s_lshr_b32 s41, s{S_J}, 1")
    k("s_lshl_b32 s41, s41, 8")
    k("s_add_u32 s40, s40, s41")
    k(f"s_and_b32 s41, s{S_J}, 1")
    k("s_lshl_b32 s41, s41, 3")
    k("s_add_u32 s40, s40, s41")
    k(f"s_add_u32 s40, s40, {wsoff}")
    k("s_waitcnt lgkmcnt(0)")
    for p in range(1, nparts):
        k(f"v_add_f32 v32, v32, v{32+2*p}")
        k(f"v_add_f32 v33, v33, v{33+2*p}")
    k(f"buffer_store_dwordx2 v[32:33], v6, {sr(SRD_WS,4)}, s40 offen sc1")
    k(f"{L}:")

def epi_wo(k, when, NB, TB, KP, ACC=None, L_S=None):
    if when == 'pre':
        rowmajor_off(k, 7, NB, TB, KP)
        k(f"buffer_load_dwordx4 {vr(RES,4)}, v7, s[12:15], s40 offen")
        h_off(k, 12, NB, TB, KP)
        return
    add_residual(k, ACC)
    k(f"buffer_store_dwordx4 {vr(RES,4)}, v12, {sr(SRD_WS,4)}, s42 offen sc1")
    k("v_mov_b32 v14, 0"); k("v_mov_b32 v15, 0")
    for q in range(4):
        k(f"v_dot2_f32_bf16 v14, v{RES+q}, s{ONES}, v14")
        k(f"v_dot2_f32_bf16 v15, v{RES+q}, v{RES+q}, v15")
    swap_add(k, 14, 5); swap_add(k, 15, 5)
    k(f"s_lshl_b32 s40, s{KP}, 1")
    k(f"s_add_u32 s40, s40, s{NB}")
    k("s_lshl_b32 s40, s40, 9")
    k(f"s_lshl_b32 s41, s{TB}, 8")
    k("s_add_u32 s40, s40, s41")
    k(f"s_add_u32 s40, s40, {L_S}")
    k("v_and_b32 v5, 31, v1")
    k("v_lshlrev_b32 v5, 3, v5")
    k("v_add_u32 v5, s40, v5")
    k("ds_write_b64 v5, v[14:15]")
    k("s_waitcnt lgkmcnt(0)")
    k("s_barrier")
    publish_stats(k, L_S, W_HS, 4)

def epi_out(k, when, NB, TB, KP, ACC=None, L_S=None):
    if when == 'pre':
        h_off(k, 12, NB, TB, KP)
        k(f"buffer_load_dwordx4 {vr(RES,4)}, v12, {sr(SRD_WS,4)}, s42 offen sc1")
        rowmajor_off(k, 7, NB, TB, KP)
        return
    add_residual(k, ACC)
    k(f"buffer_store_dwordx4 {vr(RES,4)}, v7, s[16:19], s40 offen")

OOB = 0x40000000
def slice_params(k, idx_sgpr, base_dst, cnt_dst):
    pb = sum(b << (8*i) for i, b in enumerate(SLICE_BASE[:4])); pb2 = sum(b << (8*i) for i, b in enumerate(SLICE_BASE[4:]))
    k(f"s_cmp_lt_u32 s{idx_sgpr}, 4")
    k(f"s_cselect_b32 s{base_dst}, {hex(pb)}, {hex(pb2)}".replace(f"{hex(pb)}, {hex(pb2)}", "s50, s51"))
    k.lines.insert(len(k.lines)-2, f"  s_mov_b32 s50, {hex(pb)}")
    k.lines.insert(len(k.lines)-2, f"  s_mov_b32 s51, {hex(pb2)}")
    k(f"s_and_b32 s50, s{idx_sgpr}, 3")
    k("s_lshl_b32 s50, s50, 3")
    k(f"s_lshr_b32 s{base_dst}, s{base_dst}, s50")
    k(f"s_and_b32 s{base_dst}, s{base_dst}, 0xff")
    mask6 = sum(1 << i for i, c in enumerate(SLICE_CNT) if c == 6)
    k(f"s_lshr_b32 s{cnt_dst}, {mask6}, s{idx_sgpr}")
    k(f"s_and_b32 s{cnt_dst}, s{cnt_dst}, 1")
    k(f"s_add_u32 s{cnt_dst}, s{cnt_dst}, 5")

def load_stats(k, dst, wsoff, g_sgpr, tu0_sgpr):
    k(f"s_lshl_b32 s40, s{g_sgpr}, 12")
    k(f"s_lshl_b32 s41, s{tu0_sgpr}, 10")
    k("s_add_u32 s40, s40, s41")
    k(f"s_add_u32 s40, s40, {wsoff}")
    k(f"buffer_load_dwordx4 {vr(dst,4)}, v2, {sr(SRD_WS,4)}, s40 offen sc1")
    k(f"buffer_load_dwordx4 {vr(dst+4,4)}, v2, {sr(SRD_WS,4)}, s40 offen offset:1024 sc1")
def finish_stats(k, src, n, t):
    for u in range(2):
        b = src + 4*u
        k(f"v_add_f32 v{b}, v{b}, v{b+2}")
        k(f"v_add_f32 v{b+1}, v{b+1}, v{b+3}")
        for q in range(2):
            swap_add(k, b+q, t, 16); swap_add(k, b+q, t, 32)
        stats_mu_r(k, b, b+1, b+2, b+3, n, t)

C0 = -2.0 * 1.4426950408889634 * 0.7978845608028654
C1 = C0 * 0.044715
def gelu(k, regs, rs, vc0, sc1, T):
    n = len(regs)
    for i, (x, r) in enumerate(regs): k(f"v_mul_f32 v{x}, v{x}, v{r}")
    for i, (x, r) in enumerate(regs): k(f"v_mul_f32 v{T+i}, v{x}, v{x}")
    for i, (x, r) in enumerate(regs): k(f"v_fma_f32 v{T+i}, v{T+i}, s{sc1}, v{vc0}")
    for i, (x, r) in enumerate(regs): k(f"v_mul_f32 v{T+i}, v{T+i}, v{x}")
    for i, (x, r) in enumerate(regs): k(f"v_exp_f32 v{T+i}, v{T+i}")
    for i, (x, r) in enumerate(regs): k(f"v_add_f32 v{T+i}, 1.0, v{T+i}")
    for i, (x, r) in enumerate(regs): k(f"v_rcp_f32 v{T+i}, v{T+i}")
    for i, (x, r) in enumerate(regs): k(f"v_mul_f32 v{x}, v{x}, v{T+i}")

def flag_signal_wait(k, flag_off, maxspin=200000):
    k(f"s_lshl_b32 s40, s{S_G}, 10")
    k(f"s_add_u32 s40, s40, {W_FLAG + flag_off}")
    k(f"s_lshl_b32 s41, s{S_J}, 2")
    k("v_mov_b32 v5, s41")
    k("v_mov_b32 v6, 1")
    k("s_mov_b64 exec, 1")
    k(f"buffer_store_dword v6, v5, {sr(SRD_WS,4)}, s40 offen sc1")
    k("s_mov_b64 exec, -1")
def flag_wait(k, flag_off, maxspin=200000):
    k(f"s_lshl_b32 s40, s{S_G}, 10")
    k(f"s_add_u32 s40, s40, {W_FLAG + flag_off}")
    k("v_and_b32 v5, 7, v1")
    k("v_lshlrev_b32 v5, 2, v5")
    k(f"s_mov_b32 s41, {maxspin}")
    L, LX = k.label("poll"), k.label("pollx")
    k(f"{L}:")
    k(f"buffer_load_dword v6, v5, {sr(SRD_WS,4)}, s40 offen sc1")
    k("s_sub_u32 s41, s41, 1")
    k("s_cmp_eq_u32 s41, 0")
    k(f"s_cbranch_scc1 {LX}")
    k("s_waitcnt vmcnt(0)")
    k("v_cmp_ne_u32 vcc, 1, v6")
    k(f"s_cbranch_vccnz {L}")
    k(f"{LX}:")

def k_win():
    k = Kern("win_kernel", vgprs=256)
    END = "win_end"
    prologue(k, END)
    CG, KP, BASE, CNT = 30, 31, 32, 33
    U = [52, 53, 54]
    k(f"s_and_b32 s{CG}, s{S_W}, 3")
    k(f"s_lshr_b32 s{KP}, s{S_W}, 2")
    slice_params(k, S_J, BASE, CNT)
    k(f"s_mul_i32 s34, s{CG}, 3")
    k("s_add_u32 s34, s34, 1")
    k("s_lshr_b32 s34, s34, 1")
    k(f"s_lshr_b32 s35, s{CG}, 1")
    k("s_mul_i32 s35, s35, 3")
    k("s_add_u32 s35, s35, 1")
    k(f"s_add_u32 s{U[2]}, s{BASE}, s34")
    k(f"s_mov_b32 s{U[0]}, s{U[2]}")
    k(f"s_add_u32 s{U[1]}, s{BASE}, s35")
    INV = 55
    k(f"s_cmp_ge_u32 s34, s{CNT}")
    k(f"s_cselect_b32 s{INV}, {OOB}, 0")
    PAR = 56
    k(f"s_and_b32 s{PAR}, s{CG}, 1")
    WF, ACC, HF, ST = 16, 112, 160, 8
    k("s_waitcnt lgkmcnt(0)")
    k(f"s_lshl_b32 s36, s{S_G}, 16")
    k(f"s_add_u32 s36, s36, {W_H}")
    k(f"s_lshl_b32 s37, s{S_W}, 10")
    k("s_add_u32 s36, s36, s37")
    for i in range(8):
        k(f"s_add_u32 m0, s37, {i*8192}")
        k(f"s_add_u32 s38, s36, {i*8192}")
        k(f"buffer_load_dwordx4 v2, {sr(SRD_WS,4)}, s38 offen sc1 lds")
    k(f"s_lshl_b32 s38, s{KP}, 1")
    load_stats(k, ST, W_HS, S_G, 38)
    for s in range(3):
        if s == 0: k(f"s_add_u32 s38, s{U[0]}, 43")
        elif s == 2: k(f"s_mov_b32 s38, s{U[2]}")
        else:
            k(f"s_xor_b32 s38, s{PAR}, 1")
            k("s_mul_i32 s38, s38, 43")
            k(f"s_add_u32 s38, s38, s{U[1]}")
        k("s_lshl_b32 s38, s38, 14")
        k(f"s_lshl_b32 s39, s{KP}, 10")
        k("s_add_u32 s38, s38, s39")
        k(f"s_add_u32 s38, s38, {W_WIN}")
        if s != 1: k(f"s_add_u32 s38, s38, s{INV}")
        for i in range(8):
            if i % 2 == 0 and i > 0: k("s_add_u32 s38, s38, 4096")
            k(f"buffer_load_dwordx4 {vr(WF+32*s+4*i,4)}, v2, {sr(SRD_WS,4)}, s38 offen offset:{(i%2)*2048}")
    k(f"s_lshl_b32 s38, s{KP}, 10")
    k("v_add_u32 v3, s38, v2")
    for i in range(48): k(f"v_mov_b32 v{ACC+i}, 0")
    k("s_waitcnt vmcnt(0)")
    k("s_barrier")
    def hread(i):
        for tu in range(4):
            k(f"ds_read_b128 {vr(HF+16*(i%2)+4*tu,4)}, v3 offset:{tu*16384 + i*2048}")
    hread(0)
    for i in range(8):
        if i + 1 < 8: hread(i+1)
        for tu in range(4):
            k(f"s_waitcnt lgkmcnt({(4 if i+1 < 8 else 0) + 3 - tu})")
            for s in range(3):
                a = ACC + 16*s + 4*tu
                k(f"{MF16} {vr(a,4)}, {vr(WF+32*s+4*i,4)}, {vr(HF+16*(i%2)+4*tu,4)}, {vr(a,4)}")
    finish_stats(k, ST, 512, 5)
    L_X = 65536
    k(f"s_mul_i32 s39, s{S_W}, 6144")
    k(f"s_add_u32 s39, s39, {L_X}")
    k("v_add_u32 v4, s39, v2")
    LC, LD = k.label(), k.label()
    KEEP = 16
    k(f"s_cmp_eq_u32 s{KP}, 0")
    k(f"s_cbranch_scc1 {LC}")
    for s in range(3):
        for u in range(2):
            k(f"ds_write_b128 v4, {vr(ACC+16*s+4*u,4)} offset:{(2*s+u)*1024}")
        for q in range(8): k(f"v_mov_b32 v{KEEP+8*s+q}, v{ACC+16*s+8+q}")
    k(f"s_branch {LD}")
    k(f"{LC}:")
    for s in range(3):
        for u in range(2):
            k(f"ds_write_b128 v4, {vr(ACC+16*s+8+4*u,4)} offset:{(2*s+u)*1024}")
        for q in range(8): k(f"v_mov_b32 v{KEEP+8*s+q}, v{ACC+16*s+q}")
    k(f"{LD}:")
    k(f"s_xor_b32 s39, s{S_W}, 4")
    k("s_mul_i32 s39, s39, 6144")
    k(f"s_add_u32 s39, s39, {L_X}")
    k("v_add_u32 v4, s39, v2")
    k("s_waitcnt lgkmcnt(0)")
    k("s_barrier")
    T = 48
    for q in range(6): k(f"ds_read_b128 {vr(T+4*q,4)}, v4 offset:{q*1024}")
    k(f"v_mov_b32 v6, {hex(f2u(C0))}")
    k(f"s_mov_b32 s57, {hex(f2u(C1))}")
    k("s_waitcnt lgkmcnt(0)")
    for q in range(24): k(f"v_add_f32 v{KEEP+q}, v{KEEP+q}, v{T+q}")
    gelu(k, [(KEEP+8*s+4*u+q, ST+4*u+3) for s in range(3) for u in range(2) for q in range(4)], None, 6, 57, T)
    ZS = 80
    for u in range(2):
        k(f"v_add_f32 v{ZS+2*u}, v{KEEP+4*u}, v{KEEP+4*u+1}")
        k(f"v_mul_f32 v{ZS+2*u+1}, v{KEEP+4*u}, v{KEEP+4*u}")
        k(f"v_add_f32 v{ZS+2*u}, v{ZS+2*u}, v{KEEP+4*u+2}")
        k(f"v_add_f32 v{ZS+2*u}, v{ZS+2*u}, v{KEEP+4*u+3}")
        for q in range(1, 4): k(f"v_fmac_f32 v{ZS+2*u+1}, v{KEEP+4*u+q}, v{KEEP+4*u+q}")
    LE = k.label()
    k(f"s_cmp_lg_u32 s{PAR}, 0")
    k(f"s_cbranch_scc1 {LE}")
    for u in range(2):
        for q in range(4):
            k(f"v_add_f32 v{ZS+2*u}, v{ZS+2*u}, v{KEEP+8+4*u+q}")
            k(f"v_fmac_f32 v{ZS+2*u+1}, v{KEEP+8+4*u+q}, v{KEEP+8+4*u+q}")
    k(f"{LE}:")
    for q in range(4):
        swap_add(k, ZS+q, 5, 16); swap_add(k, ZS+q, 5, 32)
    L_S = L_X + 49152
    k(f"s_lshl_b32 s40, s{CG}, 9")
    k(f"s_lshl_b32 s41, s{KP}, 8")
    k("s_add_u32 s40, s40, s41")
    k(f"s_add_u32 s40, s40, {L_S}")
    k("v_and_b32 v5, 15, v1")
    k("v_lshlrev_b32 v5, 3, v5")
    k("v_add_u32 v5, s40, v5")
    k(f"ds_write_b64 v5, {vr(ZS,2)}")
    k(f"ds_write_b64 v5, {vr(ZS+2,2)} offset:128")
    k("s_waitcnt lgkmcnt(0)")
    k("s_barrier")
    LW = k.label()
    k(f"s_cmp_lg_u32 s{S_W}, 0")
    k(f"s_cbranch_scc1 {LW}")
    k("v_lshlrev_b32 v5, 3, v1")
    k(f"v_add_u32 v5, {L_S}, v5")
    for p in range(4): k(f"ds_read_b64 {vr(T+2*p,2)}, v5 offset:{p*512}")
    k("v_lshrrev_b32 v6, 4, v1")
    k("v_lshlrev_b32 v6, 10, v6")
    k("v_and_b32 v7, 15, v1")
    k("v_lshl_add_u32 v6, v7, 4, v6")
    k(f"s_lshl_b32 s40, s{S_G}, 12")
    k(f"s_lshr_b32 s41, s{S_J}, 1")
    k("s_lshl_b32 s41, s41, 8")
    k("s_add_u32 s40, s40, s41")
    k(f"s_and_b32 s41, s{S_J}, 1")
    k("s_lshl_b32 s41, s41, 3")
    k("s_add_u32 s40, s40, s41")
    k(f"s_add_u32 s40, s40, {W_ZS}")
    k("s_waitcnt lgkmcnt(0)")
    for p in range(1, 4):
        k(f"v_add_f32 v{T}, v{T}, v{T+2*p}")
        k(f"v_add_f32 v{T+1}, v{T+1}, v{T+1+2*p}")
    k(f"buffer_store_dwordx2 {vr(T,2)}, v6, {sr(SRD_WS,4)}, s40 offen sc1")
    k("s_waitcnt vmcnt(0)")
    flag_signal_wait(k, 0)
    k(f"{LW}:")
    def z1store(s, usg, inv):
        for q in range(4): k(f"v_cvt_pk_bf16_f32 v{T+8+q}, v{KEEP+8*s+2*q}, v{KEEP+8*s+2*q+1}")
        k(f"s_mul_i32 s40, s{S_G}, {48*2048}")
        k(f"s_lshl_b32 s41, s{usg}, 11")
        k("s_add_u32 s40, s40, s41")
        k(f"s_lshl_b32 s41, s{KP}, 10")
        k("s_add_u32 s40, s40, s41")
        k(f"s_add_u32 s40, s40, {W_Z1}")
        if inv: k(f"s_add_u32 s40, s40, s{INV}")
        k(f"buffer_store_dwordx4 {vr(T+8,4)}, v2, {sr(SRD_WS,4)}, s40 offen sc1")
    z1store(2, U[2], True)
    LF = k.label()
    k(f"s_cmp_eq_u32 s{PAR}, 0")
    k(f"s_cbranch_scc1 {LF}")
    z1store(1, U[1], False)
    k(f"{LF}:")
    LW2 = k.label()
    k(f"s_cmp_lg_u32 s{S_W}, 0")
    k(f"s_cbranch_scc1 {LW2}")
    flag_wait(k, 0)
    k(f"{LW2}:")
    k("s_barrier")
    k(f"s_lshl_b32 s38, s{KP}, 1")
    load_stats(k, ST, W_ZS, S_G, 38)
    k(f"s_lshl_b32 s39, s{S_W}, 11")
    k("v_and_b32 v5, 15, v1")
    k("v_lshlrev_b32 v5, 5, v5")
    k("v_lshrrev_b32 v6, 4, v1")
    k("v_lshl_add_u32 v3, v6, 3, v5")
    k("v_add_u32 v3, s39, v3")
    k("v_bfe_u32 v5, v1, 2, 2")
    k("v_lshl_add_u32 v5, v6, 3, v5")
    k("v_lshlrev_b32 v5, 5, v5")
    k("v_and_b32 v6, 3, v1")
    k("v_lshl_add_u32 v4, v6, 3, v5")
    k("v_add_u32 v4, s39, v4")
    k("s_waitcnt vmcnt(0)")
    finish_stats(k, ST, 688, 5)
    for u in range(2): k(f"v_mul_f32 v{ST+4*u+2}, v{ST+4*u+2}, v{ST+4*u+3}")
    def z2store(s, usg, inv):
        for u in range(2):
            for q in range(4):
                x = KEEP + 8*s + 4*u + q
                k(f"v_fma_f32 v{x}, v{x}, v{ST+4*u+3}, -v{ST+4*u+2}")
            for q in range(2):
                k(f"v_cvt_pk_bf16_f32 v{T+2*u+q}, v{KEEP+8*s+4*u+2*q}, v{KEEP+8*s+4*u+2*q+1}")
            k(f"ds_write_b64 v3, {vr(T+2*u,2)} offset:{s*1024 + u*512}")
        k(f"s_lshl_b32 s40, s{usg}, 16")
        k(f"s_lshl_b32 s41, s{S_G}, 11")
        k("s_add_u32 s40, s40, s41")
        k(f"s_lshl_b32 s41, s{KP}, 10")
        k("s_add_u32 s40, s40, s41")
        k(f"s_add_u32 s40, s40, {W_Z2}")
        if inv: k(f"s_add_u32 s40, s40, s{INV}")
        k("s_waitcnt lgkmcnt(0)")
        k(f"ds_read_b64_tr_b16 {vr(T+8,2)}, v4 offset:{s*1024}")
        k(f"ds_read_b64_tr_b16 {vr(T+10,2)}, v4 offset:{s*1024+128}")
        k("s_waitcnt lgkmcnt(0)")
        k(f"buffer_store_dwordx4 {vr(T+8,4)}, v2, {sr(SRD_WS,4)}, s40 offen sc1")
    z2store(0, U[0], True)
    k(f"s_cmp_lg_u32 s{PAR}, 0")
    k(f"s_cbranch_scc1 {END}")
    z2store(1, U[1], False)
    k(f"{END}:")
    k("s_endpgm")
    k.lds = L_S + 2048
    return k

def k_sp():
    k = Kern("sp_kernel", vgprs=256)
    END = "sp_end"
    prologue(k, END)
    RG, CSL, FH, KQ, BASE, CNT = 29, 30, 31, 32, 33, 34
    k("s_and_b32 s3, s2, 7")
    k("s_lshr_b32 s7, s2, 3")
    k("s_lshr_b32 s35, s3, 1")
    k("s_lshl_b32 s35, s35, 3")
    k("s_lshr_b32 s36, s7, 2")
    k(f"s_add_u32 s{RG}, s35, s36")
    k("s_and_b32 s35, s3, 1")
    k("s_lshl_b32 s35, s35, 2")
    k("s_and_b32 s36, s7, 3")
    k(f"s_add_u32 s{CSL}, s35, s36")
    k(f"s_and_b32 s{FH}, s{S_W}, 1")
    k(f"s_lshr_b32 s{KQ}, s{S_W}, 1")
    slice_params(k, CSL, BASE, CNT)
    srd(k, 12, A_BSP, 4096)
    U0, INV, ZO, WO_ = 52, 55, 58, 61
    k(f"s_mul_i32 s35, s{FH}, 3")
    k(f"s_add_u32 s{U0}, s{BASE}, s35")
    k("s_add_u32 s35, s35, 2")
    k(f"s_cmp_ge_u32 s35, s{CNT}")
    k(f"s_cselect_b32 s{INV}, {OOB}, 0")
    k(f"s_lshl_b32 s36, s{KQ}, 14")
    for s in range(3):
        k(f"s_add_u32 s35, s{U0}, {s}")
        k("s_lshl_b32 s35, s35, 16")
        k("s_add_u32 s35, s35, s36")
        k(f"s_add_u32 s{ZO+s}, s35, {W_Z2}")
    k(f"s_add_u32 s{ZO+2}, s{ZO+2}, s{INV}")
    for tu in range(4):
        k(f"s_lshl_b32 s35, s{RG}, 18")
        k(f"s_add_u32 s35, s35, {W_WSP + tu*65536}")
        k(f"s_add_u32 s{WO_+tu}, s35, s36")
    ACC, BUF, DEPTH = 16, 64, 4
    k("s_waitcnt lgkmcnt(0)")
    def loads(i):
        b = BUF + 28*(i % DEPTH)
        if i % 4 == 0 and i > 0:
            for q in range(3): k(f"s_add_u32 s{ZO+q}, s{ZO+q}, 4096")
            for q in range(4): k(f"s_add_u32 s{WO_+q}, s{WO_+q}, 4096")
        for s in range(3):
            k(f"buffer_load_dwordx4 {vr(b+4*s,4)}, v2, {sr(SRD_WS,4)}, s{ZO+s} offen offset:{(i%4)*1024} sc1")
        for tu in range(4):
            k(f"buffer_load_dwordx4 {vr(b+12+4*tu,4)}, v2, {sr(SRD_WS,4)}, s{WO_+tu} offen offset:{(i%4)*1024}")
    k("v_and_b32 v3, 15, v1")
    k("v_lshlrev_b32 v4, 1, v3")
    k(f"s_lshl_b32 s35, s{RG}, 7")
    k(f"s_lshl_b32 s36, s{KQ}, 5")
    k("s_add_u32 s35, s35, s36")
    k("buffer_load_ushort v5, v4, s[12:15], s35 offen")
    k(f"s_mul_i32 s35, s{RG}, {48*2048}")
    k(f"s_lshl_b32 s36, s{U0}, 11")
    k("s_add_u32 s35, s35, s36")
    k(f"s_lshr_b32 s36, s{KQ}, 1")
    k("s_lshl_b32 s36, s36, 10")
    k("s_add_u32 s35, s35, s36")
    k(f"s_and_b32 s36, s{KQ}, 1")
    k("s_lshl_b32 s36, s36, 3")
    k("s_add_u32 s35, s35, s36")
    k(f"s_add_u32 s35, s35, {W_Z1}")
    k(f"buffer_load_dwordx2 v[6:7], v2, {sr(SRD_WS,4)}, s35 offen sc1")
    k(f"buffer_load_dwordx2 v[8:9], v2, {sr(SRD_WS,4)}, s35 offen offset:2048 sc1")
    k("s_add_u32 s35, s35, 4096")
    k(f"buffer_load_dwordx2 v[10:11], v2, {sr(SRD_WS,4)}, s35 offen sc1")
    for i in range(DEPTH - 1): loads(i)
    for i in range(48): k(f"v_mov_b32 v{ACC+i}, 0")
    for i in range(16):
        if i + DEPTH - 1 < 16: loads(i + DEPTH - 1)
        rem = min(DEPTH - 1, 15 - i)
        k(f"s_waitcnt vmcnt({7*rem})")
        b = BUF + 28*(i % DEPTH)
        for tu in range(4):
            for s in range(3):
                a = ACC + 12*tu + 4*s
                k(f"{MF16} {vr(a,4)}, {vr(b+4*s,4)}, {vr(b+12+4*tu,4)}, {vr(a,4)}")
    k(f"s_lshl_b32 s35, s{FH}, 4")
    k(f"s_add_u32 s35, s35, s{KQ}")
    k("s_mul_i32 s35, s35, 3072")
    k("v_add_u32 v12, s35, v2")
    for d in range(4):
        for s in range(3):
            k(f"ds_write_b128 v12, {vr(ACC+12*d+4*s,4)} offset:{d*12288 + s*1024}")
    k(f"s_lshl_b32 s35, s{FH}, 4")
    k(f"s_lshl_b32 s36, s{KQ}, 2")
    k("s_add_u32 s35, s35, s36")
    k("s_mul_i32 s35, s35, 3072")
    k("v_add_u32 v12, s35, v2")
    k("s_waitcnt lgkmcnt(0)")
    k("s_barrier")
    for q in range(12): k(f"ds_read_b128 {vr(BUF+4*q,4)}, v12 offset:{q*1024}")
    k("v_lshrrev_b32 v13, 5, v1")
    k("v_lshlrev_b32 v13, 9, v13")
    k("v_lshl_add_u32 v13, v3, 4, v13")
    k("v_bfe_u32 v14, v1, 4, 1")
    k("v_lshl_add_u32 v13, v14, 3, v13")
    k(f"s_mul_i32 s35, s{RG}, {88*1024}")
    k(f"s_lshr_b32 s36, s{KQ}, 1")
    k(f"s_mul_i32 s36, s36, {44*1024}")
    k("s_add_u32 s35, s35, s36")
    k(f"s_lshl_b32 s36, s{U0}, 10")
    k("s_add_u32 s35, s35, s36")
    k(f"s_and_b32 s36, s{KQ}, 1")
    k("s_lshl_b32 s36, s36, 8")
    k("s_add_u32 s35, s35, s36")
    k(f"s_add_u32 s35, s35, {W_Y}")
    k(f"s_add_u32 s36, s35, s{INV}")
    k("v_lshlrev_b32 v5, 16, v5")
    k("s_waitcnt lgkmcnt(0)")
    for q in range(12):
        k(f"v_add_f32 v{BUF+q}, v{BUF+q}, v{BUF+12+q}")
        k(f"v_add_f32 v{BUF+24+q}, v{BUF+24+q}, v{BUF+36+q}")
        k(f"v_add_f32 v{BUF+q}, v{BUF+q}, v5")
        k(f"v_add_f32 v{BUF+q}, v{BUF+q}, v{BUF+24+q}")
    for s in range(3):
        for h in range(2):
            z = 6 + 2*s + h
            k(f"v_lshlrev_b32 v14, 16, v{z}")
            k(f"v_and_b32 v15, 0xffff0000, v{z}")
            k(f"v_mul_f32 v14, v14, v{BUF+4*s+2*h}")
            k(f"v_mul_f32 v15, v15, v{BUF+4*s+2*h+1}")
            k(f"v_cvt_pk_bf16_f32 v{z}, v14, v15")
        so = 36 if s == 2 else 35
        k(f"buffer_store_dwordx2 {vr(6+2*s,2)}, v13, {sr(SRD_WS,4)}, s{so} offen offset:{s*1024} sc1")
    k(f"{END}:")
    k("s_endpgm")
    k.lds = 98304
    return k

HEADER = open('cdna_kernels/' + NAME + '.s.ref').read().split('; Override')[0]

def build(path, force_slow=False, extra_empty=0):
    ks = []
    kp = k_prep(); kp.lds = 163840; ks.append(kp)
    ka = k_attn(force_slow); ka.lds = 131072 + 1024 + 8*2304; ks.append(ka)
    ks.append(gemm32_kernel("wo_kernel", 32, W_O, 65536, W_WO, 32768, epi_wo))
    ks.append(k_win())
    ks.append(k_sp())
    ks.append(gemm32_kernel("wout_kernel", 43, W_Y, 88*1024, W_WOUT, 44*1024, epi_out))
    txt = HEADER
    for kk in ks:
        txt += f"; @launch kernel={kk.name} grid=(256,1,1) block=(512,1,1) lds={kk.lds}\n"
    if extra_empty:
        e = Kern("empty_kernel", vgprs=8); e("s_endpgm"); e.lds = 0
        for i in range(extra_empty):
            txt += f"; @launch kernel=empty_kernel grid=(256,1,1) block=(512,1,1) lds=0\n"
        ks.append(e)
    txt += '.amdgcn_target "amdgcn-amd-amdhsa--gfx950"\n.text\n'
    for kk in ks: txt += kk.text()
    for kk in ks: txt += kk.desc()
    open(path, 'w').write(txt)
    return ks

if __name__ == '__main__':
    ks = build('cdna_kernels/' + NAME + '.s')
    for kk in ks: print(kk.name, 'lds', kk.lds, 'nops', kk.nops)
```

```python
import re

def vr(b, n=1):
    return f"v{b}" if n == 1 else f"v[{b}:{b+n-1}]"
def sr(b, n=1):
    return f"s{b}" if n == 1 else f"s[{b}:{b+n-1}]"

TRANS = ('v_exp_f32', 'v_log_f32', 'v_rcp_f32', 'v_rsq_f32', 'v_sqrt_f32', 'v_sin_f32', 'v_cos_f32')
_REG = re.compile(r'^(-|\|)?(abs\()?([vs])(\d+|\[(\d+):(\d+)\])\)?\|?$')

def regs_of(tok):
    tok = tok.strip()
    if tok in ('vcc',): return {('s', 106), ('s', 107)}
    if tok == 'vcc_lo': return {('s', 106)}
    if tok == 'vcc_hi': return {('s', 107)}
    if tok == 'exec': return {('s', 126), ('s', 127)}
    if tok == 'm0': return {('s', 124)}
    m = _REG.match(tok)
    if not m: return set()
    k = m.group(3)
    if m.group(5) is not None:
        return {(k, i) for i in range(int(m.group(5)), int(m.group(6)) + 1)}
    return {(k, int(m.group(4)))}

class Ins:
    __slots__ = ('text', 'op', 'kind', 'dst', 'src', 'srcc', 'srcab', 'passes', 'states', 'label', 'target', 'trans', 'dpp', 'perm', 'rdlane', 'wide_store', 'lds_dma', 'sdata', 'dotab')
    def __init__(self, text):
        self.text = text
        self.label = None; self.target = None
        self.dst = set(); self.src = set(); self.srcc = set(); self.srcab = set(); self.sdata = set(); self.dotab = set()
        self.passes = 0; self.states = 1
        self.trans = self.dpp = self.perm = self.rdlane = self.wide_store = self.lds_dma = False
        t = text.split(';')[0].strip()
        if t.endswith(':'):
            self.kind = 'label'; self.label = t[:-1]; self.op = ''; self.states = 0; return
        if t.startswith('.') or not t:
            self.kind = 'dir'; self.op = ''; self.states = 0; return
        parts = t.split(None, 1)
        op = self.op = parts[0]
        rest = parts[1] if len(parts) > 1 else ''
        toks = []; depth = 0; cur = ''
        for ch in rest:
            if ch in '[(': depth += 1
            if ch in '])': depth -= 1
            if ch == ',' and depth == 0:
                toks.append(cur.strip()); cur = ''
            else: cur += ch
        if cur.strip(): toks.append(cur.strip())
        mods = ''
        if toks:
            sp = toks[-1].split(None, 1)
            if len(sp) > 1 and not toks[-1].startswith('hwreg'):
                toks[-1] = sp[0]; mods = sp[1]
        R = [regs_of(x) for x in toks]
        if op.startswith('v_mfma'):
            self.kind = 'mfma'
            self.dst = R[0]; self.srcab = R[1] | R[2]; self.srcc = R[3]; self.src = self.srcab | self.srcc
            self.passes = 8 if '32x32' in op else 4
        elif op.startswith('v_'):
            self.kind = 'valu'
            base = op.replace('_e32', '').replace('_e64', '').replace('_dpp', '').replace('_sdwa', '')
            self.trans = base in TRANS
            self.dpp = ('row_' in mods) or ('quad_perm' in mods) or ('wave_' in mods) or op.endswith('_dpp')
            if base.startswith('v_permlane'):
                self.perm = True; self.dst = R[0] | R[1]; self.src = R[0] | R[1]
            else:
                self.dst = set(R[0])
                for r in R[1:]: self.src |= r
                if base in ('v_add_co_u32', 'v_sub_co_u32', 'v_addc_co_u32'):
                    self.dst |= R[1]
                if base.startswith('v_fmac') or base.startswith('v_dot2c') or base.startswith('v_pk_fmac') or self.dpp or base == 'v_writelane_b32':
                    self.src |= R[0]
                if base.startswith('v_dot'): self.dotab = R[1] | R[2]
                if base in ('v_readfirstlane_b32', 'v_readlane_b32'): self.rdlane = True
                assert not base.startswith('v_cmpx'), text
        elif op.startswith('ds_'):
            self.kind = 'ds'
            if op.startswith('ds_read') or op.startswith('ds_bpermute') or op.startswith('ds_permute') or op.startswith('ds_swizzle') or '_rtn' in op:
                self.dst = R[0]
                for r in R[1:]: self.src |= r
            else:
                for r in R: self.src |= r
        elif op.startswith('buffer_') or op.startswith('global_'):
            self.kind = 'vmem'
            ml = mods.split()
            if op.startswith('buffer_load') and 'lds' in ml:
                self.lds_dma = True
                for r in R: self.src |= r
                self.src |= regs_of('m0')
            elif '_load' in op:
                self.dst = R[0]
                for r in R[1:]: self.src |= r
            elif op in ('buffer_wbl2', 'buffer_inv'):
                pass
            else:
                for r in R: self.src |= r
                if 'atomic' in op and 'sc0' in ml: self.dst = R[0]
                if op.endswith('x4') or op.endswith('x3'):
                    self.wide_store = True
                    self.sdata = R[0] if op.startswith('buffer_') else R[1]
        elif op.startswith('s_'):
            self.kind = 'salu'
            if op == 's_nop': self.states = int(toks[0], 0) + 1
            elif op.startswith('s_cbranch') or op == 's_branch': self.target = toks[0]
            elif op.startswith(('s_cmp', 's_waitcnt', 's_barrier', 's_endpgm', 's_setprio', 's_sleep', 's_bitcmp')):
                for r in R: self.src |= r
            elif op.startswith(('s_load', 's_memtime', 's_memrealtime', 's_getreg', 's_buffer_load')):
                self.kind = 'smem'; self.dst = R[0]
                for r in R[1:]: self.src |= r
            else:
                self.dst = R[0]
                for r in R[1:]: self.src |= r
                if 'saveexec' in op: self.dst = self.dst | regs_of('exec')
        else:
            raise ValueError('unknown instruction: ' + text)

def V(s): return {r for r in s if r[0] == 'v'}
def S(s): return {r for r in s if r[0] == 's'}

def need(p, c):
    n = 0
    if p.kind == 'valu':
        pv = V(p.dst); ps = S(p.dst)
        if c.kind == 'mfma' and pv & c.src: n = max(n, 2)
        if c.kind == 'mfma' and p.op.startswith('v_pk_') and 'op_sel' in p.text: n = max(n, 2)
        if p.op.startswith('v_dot') and pv & (c.src | c.dst):
            if not (c.op == p.op and not (pv & c.dotab)): n = max(n, 3)
        if p.trans and pv & c.src and not (c.kind == 'valu' and c.trans): n = max(n, 1)
        if c.kind == 'valu':
            if c.rdlane and pv & c.src: n = max(n, 1)
            if (c.dpp or c.perm) and pv & c.src: n = max(n, 2)
            if ps & c.src: n = max(n, 4 if c.rdlane else 2)
        if c.kind == 'vmem' and ps & c.src: n = max(n, 5)
        if c.kind in ('salu',) and ps & c.src: n = max(n, 1)
    elif p.kind == 'mfma':
        big = 12 if p.passes == 8 else 8
        if c.kind == 'mfma':
            if p.dst & c.srcab: n = max(n, big)
            if p.dst & c.srcc:
                if not (p.dst == c.srcc and p.passes == c.passes): n = max(n, p.passes + 2)
            elif p.dst & c.dst:
                n = max(n, p.passes + 2)
        elif c.kind in ('valu', 'ds', 'vmem'):
            if p.dst & (c.src | c.dst): n = max(n, big)
            if c.kind == 'valu' and p.srcc & c.dst: n = max(n, p.passes - 1)
    elif p.kind == 'salu':
        if ('s', 124) in p.dst and c.lds_dma: n = max(n, 1)
    elif p.kind == 'vmem':
        if p.wide_store and p.sdata & c.dst: n = max(n, 2 if c.kind in ('valu', 'mfma') else 1)
    return n

def hazard_pass(lines, verbose=False):
    ins = [Ins(l) for l in lines]
    LOOK = 14
    labels = {x.label: i for i, x in enumerate(ins) if x.kind == 'label'}
    br = {}
    for i, x in enumerate(ins):
        if x.target is not None:
            assert x.target in labels, x.text
            br.setdefault(labels[x.target], []).append(i)
    extra = [0] * len(ins)
    changed = True
    while changed:
        changed = False
        for j, c in enumerate(ins):
            if c.kind in ('label', 'dir'): continue
            worst = 0
            stack = [(j - 1, extra[j])]
            seen = {}
            while stack:
                k, acc = stack.pop()
                while k >= 0 and acc < LOOK:
                    x = ins[k]
                    if seen.get(k, 99) <= acc: break
                    seen[k] = acc
                    if x.kind == 'label':
                        for b in br.get(k, []):
                            stack.append((b - 1, acc + 1 + extra[b]))
                        k -= 1
                        continue
                    if x.kind == 'dir':
                        k -= 1; continue
                    if x.op in ('s_endpgm', 's_branch'): break
                    r = need(x, c) - acc
                    if r > worst: worst = r
                    acc += x.states + extra[k]
                    k -= 1
            if worst > 0:
                extra[j] += worst; changed = True
    out = []; n = 0
    for j, c in enumerate(ins):
        if extra[j]:
            out.append(f"  s_nop {extra[j]-1}"); n += 1
            if verbose: print("nop", extra[j], "before", c.text.strip())
        out.append(c.text)
    return out, n

class Kern:
    def __init__(self, name, vgprs=256, sgprs=96):
        self.name = name; self.lines = []; self.vgprs = vgprs; self.sgprs = sgprs; self._lab = 0
    def __call__(self, s):
        for l in s.split('\n'):
            l = l.strip()
            if not l: continue
            self.lines.append(l if l.endswith(':') else '  ' + l)
    STAMPS = False
    STAMPOP = 's_memrealtime'
    def stamp(self, name=''):
        if not Kern.STAMPS: return
        n = getattr(self, 'nst', 0); self.nst = n + 1
        self.stnames = getattr(self, 'stnames', []) + [name]
        assert n < 64
        self(f"{Kern.STAMPOP} s[70:71]")
        self("s_waitcnt lgkmcnt(0)")
        self(f"v_writelane_b32 v0, s70, {n}")
    def stamp_flush(self, kidx, base):
        if not Kern.STAMPS: return
        self.stamp('end')
        self("s_lshl_b32 s70, s2, 3")
        self("s_add_u32 s70, s70, s4")
        self("s_lshl_b32 s70, s70, 8")
        self(f"s_add_u32 s70, s70, {base}")
        self("v_lshlrev_b32 v1, 2, v1")
        self(f"buffer_store_dword v0, v1, s[8:11], s70 offen")
    def label(self, stem='L'):
        self._lab += 1
        return f"{self.name}_{stem}{self._lab}"
    def text(self, verbose=False):
        body, n = hazard_pass(self.lines, verbose)
        self.nops = n
        t = f".globl {self.name}\n.p2align 8\n.type {self.name},@function\n{self.name}:\n" + "\n".join(body) + "\n"
        return t
    def desc(self):
        return f""".section .rodata,"a"
.p2align 6
.amdhsa_kernel {self.name}
  .amdhsa_next_free_vgpr {self.vgprs}
  .amdhsa_next_free_sgpr {self.sgprs}
  .amdhsa_accum_offset {(self.vgprs + 3) // 4 * 4}
  .amdhsa_group_segment_fixed_size 0
  .amdhsa_kernarg_size 104
  .amdhsa_user_sgpr_count 2
  .amdhsa_user_sgpr_kernarg_segment_ptr 1
  .amdhsa_system_sgpr_workgroup_id_x 1
.end_amdhsa_kernel
"""
```

```python
import sys
from asmlib import *

NAME = "sequential_preLN__grouped_kv_mqa__mixer_gmlp__prompt"
A_X, A_WQ, A_WK, A_WV, A_WO, A_WIN, A_WSP, A_BSP, A_WOUT, A_OUT, A_DBG, A_WS = 0, 8, 16, 24, 32, 48, 56, 64, 72, 80, 88, 96
W_K, W_V, W_KN = 0x0, 0x10000, 0x20000
W_Q, W_O, W_H, W_HS = 0x40000, 0x100000, 0x300000, 0x60000
W_Z1, W_Z2, W_ZS, W_Y = 0x800000, 0x500000, 0x80000, 0x800000
W_WO, W_WIN, W_WOUT, W_WSP, W_FLAG, W_END = 0xB00000, 0xB80000, 0xD00000, 0xE00000, 0x20000, 0x2000000
W_STAMP = 0x1F00000
SLICE_BASE = [0, 6, 11, 17, 22, 28, 33, 38]
SLICE_CNT = [6, 5, 6, 5, 6, 5, 5, 5]
QSCALE = 0.25 * 1.4426950408889634
import struct
def f2u(x): return struct.unpack('<I', struct.pack('<f', x))[0]

S_W, S_G, S_J = 4, 5, 6
SRD_WS = 8
ONES = 28
MF32 = "v_mfma_f32_32x32x16_bf16"
MF16 = "v_mfma_f32_16x16x32_bf16"

def srd(k, reg, karg_off, size):
    k(f"s_load_dwordx2 {sr(reg,2)}, s[0:1], {karg_off}")
    k(f"s_mov_b32 s{reg+2}, {size}")
    k(f"s_mov_b32 s{reg+3}, 0x20000")

def prologue(k, endlab):
    k(f"s_cmp_ge_u32 s2, 256")
    k(f"s_cbranch_scc1 {endlab}")
    k.stamp()
    srd(k, SRD_WS, A_WS, W_END)
    k("v_lshrrev_b32 v1, 6, v0")
    k("v_and_b32 v2, 63, v0")
    k(f"v_readfirstlane_b32 s{S_W}, v1")
    k("v_mov_b32 v1, v2")
    k("v_lshlrev_b32 v2, 4, v1")
    k("s_and_b32 s3, s2, 7")
    k("s_lshr_b32 s7, s2, 3")
    k(f"s_and_b32 s{S_J}, s7, 7")
    k("s_lshr_b32 s7, s7, 3")
    k("s_lshl_b32 s3, s3, 2")
    k(f"s_add_u32 s{S_G}, s3, s7")
    k(f"s_mov_b32 s{ONES}, 0x3f803f80")

def swap_add(k, a, t, which=32, op="v_add_f32"):
    k(f"v_mov_b32 v{t}, v{a}")
    k(f"v_permlane{which}_swap_b32 v{a}, v{t}")
    k(f"{op} v{a}, v{a}, v{t}")

def row_reduce(k, a, op="v_add_f32"):
    for s in (1, 2, 4, 8):
        k(f"{op}_dpp v{a}, v{a}, v{a} row_ror:{s} row_mask:0xf bank_mask:0xf")

def swap23(k, dst, src, t):
    k(f"v_and_b32 v{dst}, 0xfffffff3, v{src}")
    k(f"v_and_b32 v{t}, 4, v{src}")
    k(f"v_lshl_or_b32 v{dst}, v{t}, 1, v{dst}")
    k(f"v_and_b32 v{t}, 8, v{src}")
    k(f"v_lshrrev_b32 v{t}, 1, v{t}")
    k(f"v_or_b32 v{dst}, v{dst}, v{t}")

def tr_lane_parts(k, vG, vjj, vsc, t):
    k(f"v_lshrrev_b32 v{vG}, 4, v1")
    k(f"v_bfe_u32 v{vjj}, v1, 2, 2")
    k(f"v_and_b32 v{t}, 1, v1")
    k(f"v_lshlrev_b32 v{t}, 1, v{t}")
    k(f"v_bfe_u32 v{vsc}, v1, 1, 1")
    k(f"v_or_b32 v{vsc}, v{vsc}, v{t}")

def stats_mu_r(k, s, ss, mu, r, n, t):
    k(f"v_mul_f32 v{mu}, {hex(f2u(1.0/n))}, v{s}")
    k(f"v_mul_f32 v{t}, {hex(f2u(1.0/n))}, v{ss}")
    k(f"v_fma_f32 v{t}, -v{mu}, v{mu}, v{t}")
    k(f"v_max_f32 v{t}, 0, v{t}")
    k(f"v_add_f32 v{t}, {hex(f2u(1e-5))}, v{t}")
    k(f"v_rsq_f32 v{r}, v{t}")

def k_prep():
    k = Kern("prep_kernel", vgprs=128)
    END = "prep_end"
    prologue(k, END)
    SX, SWQ, SWK, SWV = 12, 16, 20, 24
    srd(k, SX, A_X, 2048*1024); srd(k, SWQ, A_WQ, 512*1024); srd(k, SWK, A_WK, 16384); srd(k, SWV, A_WV, 16384)
    L_X, L_WQ, L_WKV = 0, 65536, 131072
    L_ST, L_CSKV, L_CSQ, L_KVP, L_VT, L_QX = 131072, 132096, 133120, 135168, 139264, 143360
    NB, TB, KP = 30, 31, 32
    k(f"s_and_b32 s{NB}, s{S_W}, 1")
    k(f"s_bfe_u32 s{TB}, s{S_W}, 0x10001")
    k(f"s_lshr_b32 s{KP}, s{S_W}, 2")
    k("v_lshrrev_b32 v3, 3, v1")
    k("v_and_b32 v4, 7, v1")
    k(f"v_xor_b32 v5, s{NB}, v3")
    k("v_xor_b32 v5, v5, v4")
    k("v_lshlrev_b32 v5, 4, v5")
    k("v_lshl_add_u32 v5, v3, 10, v5")
    k(f"s_lshl_b32 s33, s{S_G}, 16")
    k(f"s_lshl_b32 s34, s{S_W}, 13")
    k("s_add_u32 s33, s33, s34")
    k(f"s_lshl_b32 s35, s{S_W}, 10")
    k("v_bfe_u32 v6, v3, 1, 1")
    k("v_lshlrev_b32 v6, 2, v6")
    k("v_xor_b32 v6, v6, v4")
    k("v_lshlrev_b32 v6, 4, v6")
    k("v_lshl_add_u32 v6, v3, 10, v6")
    k(f"s_lshl_b32 s36, s{S_J}, 7")
    k("v_add_u32 v6, s36, v6")
    k("s_waitcnt lgkmcnt(0)")
    for cb in range(8):
        k(f"s_add_u32 m0, s35, {L_X + cb*8064}")
        k(f"buffer_load_dwordx4 v5, {sr(SX,4)}, s33 offen offset:{cb*128} lds")
    k(f"s_lshl_b32 s37, s{S_W}, 11")
    for i in range(2):
        k(f"s_add_u32 m0, s37, {L_WKV}")
        k(f"buffer_load_dwordx4 v2, {sr(SWK,4)}, s37 offen offset:{i*1024} lds")
        k(f"s_add_u32 m0, s37, {L_WKV + 16384}")
        k(f"buffer_load_dwordx4 v2, {sr(SWV,4)}, s37 offen offset:{i*1024} lds")
    for i in range(8):
        k(f"s_add_u32 s38, s34, {i*65536}")
        k(f"s_add_u32 m0, s35, {L_WQ + i*8192}")
        k(f"buffer_load_dwordx4 v6, {sr(SWQ,4)}, s38 offen lds")
    XA0, XA1 = 7, 8
    k("v_and_b32 v10, 7, v1")
    k("v_bfe_u32 v11, v1, 3, 2")
    k("v_and_b32 v12, 1, v11")
    k("v_xor_b32 v12, v12, v10")
    k("v_lshrrev_b32 v13, 5, v1")
    k("v_xor_b32 v12, v12, v13")
    k(f"s_lshl_b32 s39, s{KP}, 1")
    k("v_xor_b32 v12, s39, v12")
    k("v_lshlrev_b32 v12, 4, v12")
    k("v_lshl_add_u32 v12, v10, 7, v12")
    k("v_lshl_add_u32 v12, v11, 10, v12")
    k(f"s_lshl_b32 s39, s{TB}, 12")
    k(f"v_add_u32 v{XA0}, s39, v12")
    k(f"v_xor_b32 v{XA1}, 64, v{XA0}")
    G_, JJ, SC = 14, 15, 16
    tr_lane_parts(k, G_, JJ, SC, 17)
    WA, KA = 9, 18
    k(f"v_lshrrev_b32 v17, 1, v{G_}")
    k(f"v_lshl_add_u32 v17, v17, 3, v{JJ}")
    k(f"v_and_b32 v19, 1, v{G_}")
    k("v_lshlrev_b32 v20, 1, v19")
    k(f"v_lshrrev_b32 v21, 1, v{SC}")
    k("v_add_u32 v20, v20, v21")
    k(f"s_lshl_b32 s39, s{NB}, 2")
    k("v_add_u32 v20, s39, v20")
    k(f"v_lshrrev_b32 v21, 1, v{JJ}")
    k("v_lshlrev_b32 v21, 2, v21")
    k("v_xor_b32 v20, v20, v21")
    k("v_lshlrev_b32 v20, 4, v20")
    k("v_lshl_add_u32 v20, v17, 7, v20")
    k(f"v_and_b32 v21, 1, v{SC}")
    k("v_lshl_add_u32 v20, v21, 3, v20")
    k(f"s_lshl_b32 s39, s{KP}, 11")
    k(f"s_add_u32 s39, s39, {L_WQ}")
    k(f"v_add_u32 v{WA}, s39, v20")
    k("v_lshlrev_b32 v20, 14, v19")
    k("v_lshl_add_u32 v20, v17, 5, v20")
    k(f"v_lshl_add_u32 v20, v{SC}, 3, v20")
    k(f"s_lshl_b32 s39, s{KP}, 9")
    k(f"s_add_u32 s39, s39, {L_WKV}")
    k(f"v_add_u32 v{KA}, s39, v20")
    ACC, XF, WF = 32, 48, 64
    SUM, SSQ, CS = 22, 23, 24
    for i in range(16): k(f"v_mov_b32 v{ACC+i}, 0")
    k(f"v_mov_b32 v{SUM}, 0"); k(f"v_mov_b32 v{SSQ}, 0"); k(f"v_mov_b32 v{CS}, 0")
    def xoff(i):
        return (XA0 if i % 2 == 0 else XA1), (i // 2) * 8192
    k("s_waitcnt vmcnt(0)")
    k.stamp(); k("s_barrier"); k.stamp()
    L_P1KV, L_P1END = k.label(), k.label()
    k(f"s_cmp_eq_u32 s{NB}, 0")
    k(f"s_cbranch_scc1 {L_P1KV}")
    for i0 in range(0, 16, 4):
        for i in range(i0, i0+4):
            a, o = xoff(i)
            k(f"ds_read_b128 {vr(XF+4*(i%4),4)}, v{a} offset:{o}")
        for i in range(i0, i0+4):
            k(f"s_waitcnt lgkmcnt({3-(i-i0)})")
            for q in range(4):
                r = XF + 4*(i%4) + q
                k(f"v_dot2_f32_bf16 v{SUM}, v{r}, s{ONES}, v{SUM}")
                k(f"v_dot2_f32_bf16 v{SSQ}, v{r}, v{r}, v{SSQ}")
    swap_add(k, SUM, 25); swap_add(k, SSQ, 25)
    k(f"s_branch {L_P1END}")
    k(f"{L_P1KV}:")
    k(f"s_and_b32 s39, s{S_J}, 1")
    k(f"s_cmp_lg_u32 s39, s{TB}")
    k(f"s_cbranch_scc1 {L_P1END}")
    for i0 in range(0, 16, 4):
        for i in range(i0, i0+4):
            a, o = xoff(i)
            k(f"ds_read_b128 {vr(XF+4*(i%4),4)}, v{a} offset:{o}")
            k(f"ds_read_b64_tr_b16 {vr(WF+4*(i%4),2)}, v{KA} offset:{i*1024}")
            k(f"ds_read_b64_tr_b16 {vr(WF+4*(i%4)+2,2)}, v{KA} offset:{i*1024+128}")
        for i in range(i0, i0+4):
            k(f"s_waitcnt lgkmcnt({3*(3-(i-i0))})")
            k(f"{MF32} {vr(ACC,16)}, {vr(WF+4*(i%4),4)}, {vr(XF+4*(i%4),4)}, {vr(ACC,16)}")
            for q in range(4):
                k(f"v_dot2_f32_bf16 v{CS}, v{WF+4*(i%4)+q}, s{ONES}, v{CS}")
    swap_add(k, CS, 25)
    k(f"{L_P1END}:")
    k.stamp(); k("s_barrier"); k.stamp()
    k("v_and_b32 v26, 31, v1")
    swap23(k, 27, 26, 25)
    L_A, L_B = k.label(), k.label()
    k(f"s_cmp_eq_u32 s{NB}, 0")
    k(f"s_cbranch_scc1 {L_A}")
    k(f"s_lshl_b32 s39, s{TB}, 9")
    k(f"s_lshl_b32 s40, s{KP}, 3")
    k("s_add_u32 s39, s39, s40")
    k(f"s_add_u32 s39, s39, {L_ST}")
    k("v_lshlrev_b32 v25, 4, v26")
    k("v_add_u32 v25, s39, v25")
    k(f"ds_write_b64 v25, {vr(SUM,2)}")
    k(f"s_branch {L_B}")
    k(f"{L_A}:")
    k(f"s_and_b32 s39, s{S_J}, 1")
    k(f"s_cmp_lg_u32 s39, s{TB}")
    k(f"s_cbranch_scc1 {L_B}")
    k(f"s_lshl_b32 s39, s{KP}, 7")
    k(f"s_add_u32 s39, s39, {L_CSKV}")
    k("v_lshlrev_b32 v25, 2, v27")
    k("v_add_u32 v25, s39, v25")
    k(f"ds_write_b32 v25, v{CS}")
    KVACC = 96
    for i in range(16): k(f"v_mov_b32 v{KVACC+i}, v{ACC+i}")
    k(f"s_cmp_eq_u32 s{KP}, 0")
    k(f"s_cbranch_scc1 {L_B}")
    k(f"v_add_u32 v28, {L_KVP}, v2")
    for q in range(4):
        k(f"ds_write_b128 v28, {vr(KVACC+4*q,4)} offset:{q*1024}")
    k(f"{L_B}:")
    for i in range(16): k(f"v_mov_b32 v{ACC+i}, 0")
    k(f"v_mov_b32 v{CS}, 0")
    for i0 in range(0, 16, 4):
        for i in range(i0, i0+4):
            a, o = xoff(i)
            k(f"ds_read_b128 {vr(XF+4*(i%4),4)}, v{a} offset:{o}")
            k(f"ds_read_b64_tr_b16 {vr(WF+4*(i%4),2)}, v{WA} offset:{i*4096}")
            k(f"ds_read_b64_tr_b16 {vr(WF+4*(i%4)+2,2)}, v{WA} offset:{i*4096+512}")
        for i in range(i0, i0+4):
            k(f"s_waitcnt lgkmcnt({3*(3-(i-i0))})")
            k(f"{MF32} {vr(ACC,16)}, {vr(WF+4*(i%4),4)}, {vr(XF+4*(i%4),4)}, {vr(ACC,16)}")
            for q in range(4):
                k(f"v_dot2_f32_bf16 v{CS}, v{WF+4*(i%4)+q}, s{ONES}, v{CS}")
    swap_add(k, CS, 25)
    k(f"s_lshl_b32 s39, s{KP}, 8")
    k(f"s_lshl_b32 s40, s{NB}, 7")
    k("s_add_u32 s39, s39, s40")
    k(f"s_add_u32 s39, s39, {L_CSQ}")
    k("v_lshlrev_b32 v25, 2, v27")
    k("v_add_u32 v25, s39, v25")
    k(f"ds_write_b32 v25, v{CS}")
    k(f"s_lshl_b32 s39, s{S_W}, 11")
    k(f"s_add_u32 s39, s39, {L_QX}")
    k("v_add_u32 v28, s39, v2")
    L_C, L_D = k.label(), k.label()
    KEEP = 80
    k(f"s_cmp_eq_u32 s{KP}, 0")
    k(f"s_cbranch_scc1 {L_C}")
    k(f"ds_write_b128 v28, {vr(ACC,4)}")
    k(f"ds_write_b128 v28, {vr(ACC+4,4)} offset:1024")
    for i in range(8): k(f"v_mov_b32 v{KEEP+i}, v{ACC+8+i}")
    k(f"s_branch {L_D}")
    k(f"{L_C}:")
    k(f"ds_write_b128 v28, {vr(ACC+8,4)}")
    k(f"ds_write_b128 v28, {vr(ACC+12,4)} offset:1024")
    for i in range(8): k(f"v_mov_b32 v{KEEP+i}, v{ACC+i}")
    k(f"{L_D}:")
    k("s_waitcnt lgkmcnt(0)")
    k.stamp(); k("s_barrier"); k.stamp()
    k(f"s_xor_b32 s39, s{S_W}, 4")
    k("s_lshl_b32 s39, s39, 11")
    k(f"s_add_u32 s39, s39, {L_QX}")
    k("v_add_u32 v28, s39, v2")
    k(f"ds_read_b128 {vr(XF,4)}, v28")
    k(f"ds_read_b128 {vr(XF+4,4)}, v28 offset:1024")
    k(f"s_lshl_b32 s39, s{TB}, 9")
    k(f"s_add_u32 s39, s39, {L_ST}")
    k("v_lshlrev_b32 v25, 4, v26")
    k("v_add_u32 v25, s39, v25")
    k(f"ds_read_b128 {vr(XF+8,4)}, v25")
    k(f"s_lshl_b32 s39, s{NB}, 7")
    k(f"s_lshl_b32 s40, s{KP}, 6")
    k("s_add_u32 s39, s39, s40")
    k(f"s_add_u32 s39, s39, {L_CSQ}")
    k("v_lshlrev_b32 v29, 5, v13")
    k("v_add_u32 v25, s39, v29")
    k(f"ds_read_b128 {vr(WF,4)}, v25")
    k(f"ds_read_b128 {vr(WF+4,4)}, v25 offset:16")
    k(f"ds_read_b128 {vr(WF+8,4)}, v25 offset:256")
    k(f"ds_read_b128 {vr(WF+12,4)}, v25 offset:272")
    k("s_waitcnt lgkmcnt(0)")
    MU, RS = 30, 31
    k(f"v_add_f32 v{SUM}, v{XF+8}, v{XF+10}")
    k(f"v_add_f32 v{SSQ}, v{XF+9}, v{XF+11}")
    stats_mu_r(k, SUM, SSQ, MU, RS, 512, 25)
    k(f"v_mul_f32 v25, {hex(f2u(QSCALE))}, v{RS}")
    for i in range(8):
        k(f"v_add_f32 v{KEEP+i}, v{KEEP+i}, v{XF+i}")
        k(f"v_add_f32 v{WF+i}, v{WF+i}, v{WF+8+i}")
        k(f"v_fma_f32 v{KEEP+i}, -v{MU}, v{WF+i}, v{KEEP+i}")
        k(f"v_mul_f32 v{KEEP+i}, v{KEEP+i}, v25")
    for i in range(4):
        k(f"v_cvt_pk_bf16_f32 v{KEEP+8+i}, v{KEEP+2*i}, v{KEEP+2*i+1}")
    k(f"s_lshl_b32 s39, s{S_G}, 3")
    k(f"s_add_u32 s39, s39, s{S_J}")
    k("s_lshl_b32 s39, s39, 3")
    k(f"s_lshl_b32 s40, s{NB}, 2")
    k("s_add_u32 s39, s39, s40")
    k(f"s_lshl_b32 s40, s{TB}, 1")
    k("s_add_u32 s39, s39, s40")
    k(f"s_add_u32 s39, s39, s{KP}")
    k("s_lshl_b32 s39, s39, 10")
    k(f"s_add_u32 s39, s39, {W_Q}")
    k(f"buffer_store_dwordx4 {vr(KEEP+8,4)}, v2, {sr(SRD_WS,4)}, s39 offen")
    L_NOKV = k.label()
    k(f"s_lshl_b32 s39, s{S_J}, 1")
    k(f"s_cmp_lg_u32 s39, s{S_W}")
    k(f"s_cbranch_scc1 {L_NOKV}")
    k(f"s_cmp_ge_u32 s{S_J}, 2")
    k(f"s_cbranch_scc1 {L_NOKV}")
    k(f"v_add_u32 v28, {L_KVP}, v2")
    for q in range(4): k(f"ds_read_b128 {vr(ACC+4*q,4)}, v28 offset:{q*1024}")
    k(f"v_add_u32 v25, {L_CSKV}, v29")
    for q in range(4):
        k(f"ds_read_b128 {vr(XF+4*q,4)}, v25 offset:{(q//2)*64 + (q%2)*16}")
        k(f"ds_read_b128 {vr(WF+4*q,4)}, v25 offset:{128 + (q//2)*64 + (q%2)*16}")
    k("s_waitcnt lgkmcnt(0)")
    for i in range(16):
        k(f"v_add_f32 v{ACC+i}, v{ACC+i}, v{KVACC+i}")
        k(f"v_add_f32 v{XF+i}, v{XF+i}, v{WF+i}")
        k(f"v_fma_f32 v{ACC+i}, -v{MU}, v{XF+i}, v{ACC+i}")
        k(f"v_mul_f32 v{ACC+i}, v{ACC+i}, v{RS}")
    for i in range(8):
        k(f"v_cvt_pk_bf16_f32 v{XF+i}, v{ACC+2*i}, v{ACC+2*i+1}")
    k(f"s_lshl_b32 s39, s{S_G}, 1")
    k(f"s_add_u32 s39, s39, s{TB}")
    k("s_lshl_b32 s40, s39, 10")
    k("v_lshl_add_u32 v25, v13, 5, v27")
    k("v_lshlrev_b32 v25, 4, v25")
    k(f"buffer_store_dwordx4 {vr(XF,4)}, v25, {sr(SRD_WS,4)}, s40 offen")
    k("v_lshlrev_b32 v25, 5, v26")
    k("v_lshl_add_u32 v25, v13, 4, v25")
    k(f"v_add_u32 v25, {L_VT}, v25")
    k(f"ds_write_b128 v25, {vr(XF+4,4)}")
    k(f"v_mov_b32 v{SUM}, 0")
    for q in range(4): k(f"v_dot2_f32_bf16 v{SUM}, v{XF+q}, v{XF+q}, v{SUM}")
    swap_add(k, SUM, 25)
    row_reduce(k, SUM, "v_max_f32")
    swap_add(k, SUM, 25, 16, "v_max_f32")
    k("s_lshl_b32 s41, s39, 2")
    k(f"s_add_u32 s41, s41, {W_KN}")
    k("v_mov_b32 v25, 0")
    k(f"buffer_store_dword v{SUM}, v25, {sr(SRD_WS,4)}, s41 offen")
    k(f"v_and_b32 v19, 1, v{G_}")
    k(f"v_lshrrev_b32 v17, 1, v{G_}")
    k("v_lshlrev_b32 v20, 4, v19")
    k("v_lshl_add_u32 v20, v17, 3, v20")
    k(f"v_add_u32 v20, v20, v{JJ}")
    k("v_lshlrev_b32 v20, 5, v20")
    k("v_and_b32 v21, 3, v1")
    k("v_lshl_add_u32 v20, v21, 3, v20")
    k(f"v_add_u32 v20, {L_VT}, v20")
    k("s_waitcnt lgkmcnt(0)")
    k(f"ds_read_b64_tr_b16 {vr(WF,2)}, v20")
    k(f"ds_read_b64_tr_b16 {vr(WF+2,2)}, v20 offset:128")
    k("v_and_b32 v21, 15, v27")
    k("v_lshlrev_b32 v21, 4, v21")
    k("v_lshl_add_u32 v21, v17, 8, v21")
    k("v_lshl_add_u32 v21, v19, 9, v21")
    k(f"s_add_u32 s40, s40, {W_V}")
    k("s_waitcnt lgkmcnt(0)")
    k(f"buffer_store_dwordx4 {vr(WF,4)}, v21, {sr(SRD_WS,4)}, s40 offen")
    k(f"{L_NOKV}:")
    L_NOF = k.label()
    k(f"s_cmp_lg_u32 s{S_W}, 1")
    k(f"s_cbranch_scc1 {L_NOF}")
    for q in range(4): k(f"v_mov_b32 v{WF+q}, 0")
    k("s_lshl_b32 s39, s2, 10")
    k(f"s_add_u32 s39, s39, {W_FLAG}")
    k(f"buffer_store_dwordx4 {vr(WF,4)}, v2, {sr(SRD_WS,4)}, s39 offen")
    k(f"{L_NOF}:")
    k.stamp()
    repack(k, G_, JJ, SC)
    k("s_waitcnt vmcnt(0)"); k.stamp_flush(0, W_STAMP)
    k(f"{END}:")
    k("s_endpgm")
    return k

def repack(k, G_, JJ, SC):
    SW = 12
    FR = 32
    srd(k, SW, A_WSP, 2048*4096)
    k("s_lshl_b32 s42, s2, 3")
    k(f"s_add_u32 s42, s42, s{S_W}")
    k("v_and_b32 v20, 15, v1")
    k("v_lshlrev_b32 v20, 12, v20")
    k(f"v_lshl_add_u32 v20, v{G_}, 4, v20")
    k("s_lshr_b32 s39, s42, 4")
    k("s_lshl_b32 s39, s39, 16")
    k("s_and_b32 s40, s42, 15")
    k("s_lshl_b32 s40, s40, 8")
    k("s_add_u32 s39, s39, s40")
    k("s_waitcnt lgkmcnt(0)")
    for q in range(4):
        k(f"buffer_load_dwordx4 {vr(64+4*q,4)}, v20, {sr(SW,4)}, s39 offen offset:{q*64}")
    k(f"s_lshl_b32 s43, s{S_W}, 12")
    k("v_lshrrev_b32 v21, 2, v1")
    k("v_and_b32 v22, 3, v1")
    k("v_lshlrev_b32 v22, 4, v22")
    L_WIN, L_WO, L_WOUT, L_F32, L_DONE = k.label(), k.label(), k.label(), k.label(), k.label()
    k("s_cmp_lt_u32 s2, 43")
    k(f"s_cbranch_scc1 {L_WIN}")
    k("s_sub_u32 s44, s42, 344")
    k("s_cmp_lt_u32 s44, 256")
    k(f"s_cbranch_scc1 {L_WO}")
    k("s_sub_u32 s44, s44, 256")
    k("s_cmp_lt_u32 s44, 352")
    k(f"s_cbranch_scc0 {L_DONE}")
    srd(k, 16, A_WOUT, 688*1024)
    k(f"s_mul_i32 s45, s44, {(65536 + 21)//22}")
    k("s_lshr_b32 s45, s45, 16")
    k("s_mul_i32 s46, s45, 22")
    k("s_sub_u32 s46, s44, s46")
    k("s_mul_i32 s47, s45, 44")
    k("s_lshl_b32 s48, s46, 1")
    k("s_add_u32 s47, s47, s48")
    k("s_lshl_b32 s47, s47, 10")
    k(f"s_add_u32 s47, s47, {W_WOUT}")
    k(f"s_branch {L_F32}")
    k(f"{L_WO}:")
    srd(k, 16, A_WO, 512*1024)
    k("s_lshr_b32 s45, s44, 4")
    k("s_and_b32 s46, s44, 15")
    k("s_lshl_b32 s47, s44, 11")
    k(f"s_add_u32 s47, s47, {W_WO}")
    k(f"{L_F32}:")
    k("s_lshl_b32 s48, s46, 15")
    k("s_lshl_b32 s49, s45, 6")
    k("s_add_u32 s48, s48, s49")
    k("v_lshl_add_u32 v23, v21, 10, v22")
    k("s_mov_b32 m0, s43")
    k("s_waitcnt lgkmcnt(0)")
    k(f"buffer_load_dwordx4 v23, s[16:19], s48 offen lds")
    k("s_add_u32 m0, s43, 1024")
    k("s_add_u32 s48, s48, 16384")
    k(f"buffer_load_dwordx4 v23, s[16:19], s48 offen lds")
    k(f"v_lshrrev_b32 v24, 1, v{G_}")
    k(f"v_lshl_add_u32 v24, v24, 3, v{JJ}")
    k("v_lshlrev_b32 v24, 6, v24")
    k(f"v_and_b32 v25, 1, v{G_}")
    k("v_lshl_add_u32 v24, v25, 5, v24")
    k(f"v_lshl_add_u32 v24, v{SC}, 3, v24")
    k("v_add_u32 v24, s43, v24")
    k("s_waitcnt vmcnt(0)")
    for i in range(2):
        k(f"ds_read_b64_tr_b16 {vr(FR+4*i,2)}, v24 offset:{i*1024}")
        k(f"ds_read_b64_tr_b16 {vr(FR+4*i+2,2)}, v24 offset:{i*1024+256}")
    k("s_waitcnt lgkmcnt(0)")
    for i in range(2):
        k(f"buffer_store_dwordx4 {vr(FR+4*i,4)}, v2, {sr(SRD_WS,4)}, s47 offen offset:{i*1024}")
    k(f"s_branch {L_DONE}")
    k(f"{L_WIN}:")
    srd(k, 16, A_WIN, 512*2752)
    k("s_mov_b32 s49, 2752")
    k("v_mul_lo_u32 v23, v21, s49")
    k("v_add_u32 v23, v23, v22")
    k(f"s_mul_i32 s48, s{S_W}, {64*2752}")
    k("s_lshl_b32 s49, s2, 6")
    k("s_add_u32 s48, s48, s49")
    k("s_waitcnt lgkmcnt(0)")
    for i in range(4):
        k(f"s_add_u32 m0, s43, {i*1024}")
        k(f"buffer_load_dwordx4 v23, s[16:19], s48 offen lds")
        if i < 3: k(f"s_add_u32 s48, s48, {16*2752}")
    k(f"v_lshl_add_u32 v24, v{G_}, 3, v{JJ}")
    k("v_lshlrev_b32 v24, 6, v24")
    k("v_and_b32 v25, 3, v1")
    k("v_lshl_add_u32 v24, v25, 3, v24")
    k("v_add_u32 v24, s43, v24")
    k("s_waitcnt vmcnt(0)")
    for a in range(2):
        for kb in range(2):
            f = FR + 4*(a*2+kb)
            k(f"ds_read_b64_tr_b16 {vr(f,2)}, v24 offset:{kb*2048 + a*32}")
            k(f"ds_read_b64_tr_b16 {vr(f+2,2)}, v24 offset:{kb*2048 + a*32 + 256}")
    k("s_waitcnt lgkmcnt(0)")
    for a in range(2):
        k(f"v_mov_b32 v{26+a}, 0")
        for q in range(8):
            k(f"v_dot2_f32_bf16 v{26+a}, v{FR+8*a+q}, s{ONES}, v{26+a}")
        swap_add(k, 26+a, 25, 32); swap_add(k, 26+a, 25, 16)
    k("v_and_b32 v25, 15, v1")
    k("v_lshlrev_b32 v25, 5, v25")
    k(f"s_lshl_b32 s49, s{S_W}, 2")
    k("s_add_u32 s49, s49, 32768")
    k("v_add_u32 v28, s49, v25")
    k("ds_write_b32 v28, v26")
    k("ds_write_b32 v28, v27 offset:512")
    k("s_waitcnt lgkmcnt(0)")
    k.stamp(); k("s_barrier"); k.stamp()
    k("v_add_u32 v28, 32768, v25")
    for a in range(2):
        k(f"ds_read_b128 {vr(48+8*a,4)}, v28 offset:{a*512}")
        k(f"ds_read_b128 {vr(52+8*a,4)}, v28 offset:{a*512+16}")
    k("s_waitcnt lgkmcnt(0)")
    for a in range(2):
        b = 48 + 8*a
        for q in range(1, 8): k(f"v_add_f32 v{b}, v{b}, v{b+q}")
        k(f"v_mul_f32 v{b}, {hex(f2u(1.0/512))}, v{b}")
        for q in range(8):
            r = FR + 8*a + q
            k(f"v_lshlrev_b32 v25, 16, v{r}")
            k(f"v_and_b32 v26, 0xffff0000, v{r}")
            k(f"v_sub_f32 v25, v25, v{b}")
            k(f"v_sub_f32 v26, v26, v{b}")
            k(f"v_cvt_pk_bf16_f32 v{r}, v25, v26")
    k("s_lshl_b32 s47, s2, 15")
    k(f"s_lshl_b32 s48, s{S_W}, 11")
    k("s_add_u32 s47, s47, s48")
    k(f"s_add_u32 s47, s47, {W_WIN}")
    k("s_add_u32 s48, s47, 16384")
    for kb in range(2):
        k(f"buffer_store_dwordx4 {vr(FR+4*kb,4)}, v2, {sr(SRD_WS,4)}, s47 offen offset:{kb*1024}")
        k(f"buffer_store_dwordx4 {vr(FR+8+4*kb,4)}, v2, {sr(SRD_WS,4)}, s48 offen offset:{kb*1024}")
    k(f"{L_DONE}:")
    k("s_lshl_b32 s39, s42, 12")
    k(f"s_add_u32 s39, s39, {W_WSP}")
    k("s_waitcnt vmcnt(0)")
    for q in range(4):
        k(f"buffer_store_dwordx4 {vr(64+4*q,4)}, v2, {sr(SRD_WS,4)}, s39 offen offset:{q*1024}")

VMASK = "0x0000ffff"
def attn_core(k, QA, QB, S0, S1, P, OA, OB, KF, VF, KADR, VADR, unroll=4, ntiles=32):
    EXM = 44
    k(f"s_mov_b32 s{EXM}, {VMASK}")
    k(f"s_mov_b32 s{EXM+1}, {VMASK}")
    def vread(i, off):
        k(f"s_mov_b64 exec, {sr(EXM,2)}")
        k(f"ds_read_b128 {vr(VF+4*i,4)}, v{VADR} offset:{off + i*512}")
        k("s_mov_b64 exec, -1")
    k(f"ds_read_b128 {vr(KF,4)}, v{KADR}")
    vread(0, 0)
    k("s_waitcnt lgkmcnt(1)")
    k(f"{MF32} {vr(S0,16)}, {vr(KF,4)}, {vr(QA,4)}, 0")
    for i in range(4, 8): k(f"v_mov_b32 v{P+i}, 0")
    k(f"s_mov_b32 s46, {ntiles // unroll}")
    k("s_nop 7")
    LOOP = k.label("attn")
    k(".p2align 6")
    k(f"{LOOP}:")
    def unit(S, Snext, Qnext, Oprev, Ocur, isA, t):
        if not isA:
            k("s_waitcnt lgkmcnt(0)")
        k(f"{MF32} {vr(Snext,16)}, {vr(KF,4)}, {vr(Qnext,4)}, 0")
        k(f"v_exp_f32 v{S}, v{S}")
        k(f"v_exp_f32 v{S+1}, v{S+1}")
        k(f"{MF32} {vr(Oprev,16)}, {vr(VF+4,4)}, {vr(P+4,4)}, {vr(Oprev,16)}")
        if isA:
            k(f"ds_read_b128 {vr(KF,4)}, v{KADR} offset:{(t+1)*1024}")
            vread(1, t*1024)
        for i in range(1, 8):
            k(f"v_exp_f32 v{S+2*i}, v{S+2*i}")
            k(f"v_exp_f32 v{S+2*i+1}, v{S+2*i+1}")
            if i == 5:
                if isA: k("s_waitcnt lgkmcnt(2)")
                k(f"{MF32} {vr(Ocur,16)}, {vr(VF,4)}, {vr(P,4)}, {vr(Ocur,16)}")
                if not isA: vread(0, (t+1)*1024)
            k(f"v_cvt_pk_bf16_f32 v{P+i-1}, v{S+2*i-2}, v{S+2*i-1}")
        k(f"v_cvt_pk_bf16_f32 v{P+7}, v{S+14}, v{S+15}")
    for t in range(unroll):
        unit(S0, S1, QB, OB, OA, True, t)
        unit(S1, S0, QA, OA, OB, False, t)
    k(f"v_add_u32 v{KADR}, {unroll*1024}, v{KADR}")
    k(f"v_add_u32 v{VADR}, {unroll*1024}, v{VADR}")
    k("s_sub_u32 s46, s46, 1")
    k("s_cmp_lg_u32 s46, 0")
    k(f"s_cbranch_scc1 {LOOP}")
    k(f"{MF32} {vr(OB,16)}, {vr(VF+4,4)}, {vr(P+4,4)}, {vr(OB,16)}")
    k("s_waitcnt lgkmcnt(0)")

def attn_slow(k, Q, O, S, C, P, KF, VF, KH):
    T0, T1 = 10, 11
    k(f"v_mov_b32 v{C}, 0xff800000")
    k(f"v_mov_b32 v{T0}, v2")
    k("s_mov_b32 s46, 64")
    L1 = k.label("sl")
    k(f"{L1}:")
    k(f"ds_read_b128 {vr(KF,4)}, v{T0}")
    k("s_waitcnt lgkmcnt(0)")
    k(f"{MF32} {vr(S,16)}, {vr(KF,4)}, {vr(Q,4)}, 0")
    k(f"v_add_u32 v{T0}, 1024, v{T0}")
    for i in range(8): k(f"v_max3_f32 v{C}, v{S+2*i}, v{S+2*i+1}, v{C}")
    k("s_sub_u32 s46, s46, 1")
    k("s_cmp_lg_u32 s46, 0")
    k(f"s_cbranch_scc1 {L1}")
    swap_add(k, C, T0, 32, "v_max_f32")
    k(f"v_sub_f32 v{C}, 0, v{C}")
    for i in range(1, 16): k(f"v_mov_b32 v{C+i}, v{C}")
    k(f"s_lshl_b32 s47, s{KH}, 15")
    k(f"v_add_u32 v{T0}, s47, v2")
    k(f"v_add_u32 v{T1}, s47, v3")
    k("s_mov_b32 s46, 32")
    L2 = k.label("sl")
    k(f"{L2}:")
    k(f"ds_read_b128 {vr(KF,4)}, v{T0}")
    k(f"s_mov_b64 exec, s[44:45]")
    k(f"ds_read_b128 {vr(VF,4)}, v{T1}")
    k(f"ds_read_b128 {vr(VF+4,4)}, v{T1} offset:512")
    k("s_mov_b64 exec, -1")
    k("s_waitcnt lgkmcnt(0)")
    k(f"{MF32} {vr(S,16)}, {vr(KF,4)}, {vr(Q,4)}, {vr(C,16)}")
    k(f"v_add_u32 v{T0}, 1024, v{T0}")
    k(f"v_add_u32 v{T1}, 1024, v{T1}")
    for i in range(16): k(f"v_exp_f32 v{S+i}, v{S+i}")
    for i in range(8): k(f"v_cvt_pk_bf16_f32 v{P+i}, v{S+2*i}, v{S+2*i+1}")
    k(f"{MF32} {vr(O,16)}, {vr(VF,4)}, {vr(P,4)}, {vr(O,16)}")
    k(f"{MF32} {vr(O,16)}, {vr(VF+4,4)}, {vr(P+4,4)}, {vr(O,16)}")
    k("s_sub_u32 s46, s46, 1")
    k("s_cmp_lg_u32 s46, 0")
    k(f"s_cbranch_scc1 {L2}")

def k_attn(force_slow=False):
    k = Kern("attn_kernel", vgprs=128)
    END = "attn_end"
    prologue(k, END)
    QP, KH = 30, 31
    k(f"s_and_b32 s{QP}, s{S_W}, 3")
    k(f"s_lshr_b32 s{KH}, s{S_W}, 2")
    QA, QB, KF, VF, P = 16, 20, 24, 28, 36
    S0, S1, OA, OB = 48, 64, 80, 96
    KADR, VADR = 4, 5
    k("s_waitcnt lgkmcnt(0)")
    k(f"s_lshl_b32 s33, s{S_G}, 3")
    k(f"s_add_u32 s33, s33, s{S_J}")
    k("s_lshl_b32 s33, s33, 13")
    k(f"s_lshr_b32 s34, s{QP}, 1")
    k("s_lshl_b32 s34, s34, 12")
    k("s_add_u32 s33, s33, s34")
    k(f"s_and_b32 s34, s{QP}, 1")
    k("s_lshl_b32 s34, s34, 11")
    k("s_add_u32 s33, s33, s34")
    k(f"s_add_u32 s33, s33, {W_Q}")
    k(f"buffer_load_dwordx4 {vr(QA,4)}, v2, {sr(SRD_WS,4)}, s33 offen")
    k(f"buffer_load_dwordx4 {vr(QB,4)}, v2, {sr(SRD_WS,4)}, s33 offen offset:1024")
    k("v_lshlrev_b32 v6, 2, v1")
    k(f"s_mov_b32 s34, {W_KN}")
    k(f"buffer_load_dword v7, v6, {sr(SRD_WS,4)}, s34 offen")
    k(f"s_lshl_b32 s35, s{S_W}, 10")
    for i in range(16):
        k(f"s_add_u32 s36, s35, {i*8192}")
        k("s_mov_b32 m0, s36")
        k(f"buffer_load_dwordx4 v2, {sr(SRD_WS,4)}, s36 offen lds")
    k(f"s_lshl_b32 s36, s{KH}, 15")
    k(f"v_add_u32 v{KADR}, s36, v2")
    k("v_and_b32 v3, 15, v1")
    k("v_lshlrev_b32 v3, 4, v3")
    k("v_lshrrev_b32 v8, 5, v1")
    k("v_lshl_add_u32 v3, v8, 8, v3")
    k("v_add_u32 v3, 0x10000, v3")
    k(f"v_add_u32 v{VADR}, s36, v3")
    k("v_and_b32 v8, 27, v1")
    k("v_cmp_eq_u32 vcc, 16, v8")
    k(f"v_mov_b32 v9, s{ONES}")
    k("v_cndmask_b32 v9, 0, v9, vcc")
    for i in range(8): k(f"v_mov_b32 v{VF+i}, v9")
    for i in range(16): k(f"v_mov_b32 v{OA+i}, 0"); k(f"v_mov_b32 v{OB+i}, 0")
    k("s_waitcnt vmcnt(16)")
    k("v_mov_b32 v8, 0"); k("v_mov_b32 v9, 0")
    for q in range(4):
        k(f"v_dot2_f32_bf16 v8, v{QA+q}, v{QA+q}, v8")
        k(f"v_dot2_f32_bf16 v9, v{QB+q}, v{QB+q}, v9")
    swap_add(k, 8, 10); swap_add(k, 9, 10)
    k("v_max_f32 v8, v8, v9")
    row_reduce(k, 8, "v_max_f32"); swap_add(k, 8, 10, 16, "v_max_f32")
    row_reduce(k, 7, "v_max_f32"); swap_add(k, 7, 10, 16, "v_max_f32"); swap_add(k, 7, 10, 32, "v_max_f32")
    k("v_mul_f32 v8, v8, v7")
    k(f"v_cmp_nle_f32 vcc, v8, v11".replace("v11", "v11"))
    k.lines.insert(len(k.lines)-1, f"  v_mov_b32 v11, {hex(f2u(-1.0 if force_slow else 1600.0))}")
    k("s_waitcnt vmcnt(0)")
    k.stamp(); k("s_barrier"); k.stamp()
    SLOW, JOIN = k.label("slow"), k.label("join")
    k(f"s_cbranch_vccnz {SLOW}")
    attn_core(k, QA, QB, S0, S1, P, OA, OB, KF, VF, KADR, VADR)
    k(f"{JOIN}:")
    L_X = 131072 + 1024
    k(f"s_mul_i32 s36, s{S_W}, 2304")
    k(f"s_add_u32 s36, s36, {L_X}")
    k("v_add_u32 v6, s36, v2")
    k("v_lshlrev_b32 v7, 2, v1")
    k("v_add_u32 v7, s36, v7")
    LB, LC = k.label(), k.label()
    k(f"s_cmp_eq_u32 s{KH}, 0")
    k(f"s_cbranch_scc1 {LB}")
    k(f"ds_write_b128 v6, {vr(OA,4)}")
    k(f"ds_write_b128 v6, {vr(OA+4,4)} offset:1024")
    k(f"ds_write_b32 v7, v{OA+8} offset:2048")
    for i in range(9): k(f"v_mov_b32 v{OA+i}, v{OB+i}")
    k(f"s_branch {LC}")
    k(f"{LB}:")
    k(f"ds_write_b128 v6, {vr(OB,4)}")
    k(f"ds_write_b128 v6, {vr(OB+4,4)} offset:1024")
    k(f"ds_write_b32 v7, v{OB+8} offset:2048")
    k(f"{LC}:")
    k(f"s_xor_b32 s37, s{S_W}, 4")
    k("s_mul_i32 s36, s37, 2304")
    k(f"s_add_u32 s36, s36, {L_X}")
    k("v_add_u32 v6, s36, v2")
    k("v_lshlrev_b32 v7, 2, v1")
    k("v_add_u32 v7, s36, v7")
    k("s_waitcnt lgkmcnt(0)")
    k.stamp(); k("s_barrier"); k.stamp()
    k(f"ds_read_b128 {vr(S0,4)}, v6")
    k(f"ds_read_b128 {vr(S0+4,4)}, v6 offset:1024")
    k(f"ds_read_b32 v{S0+8}, v7 offset:2048")
    k("s_waitcnt lgkmcnt(0)")
    for i in range(9): k(f"v_add_f32 v{OA+i}, v{OA+i}, v{S0+i}")
    k(f"v_rcp_f32 v8, v{OA+8}")
    for i in range(8): k(f"v_mul_f32 v{OA+i}, v{OA+i}, v8")
    for i in range(4): k(f"v_cvt_pk_bf16_f32 v{P+i}, v{OA+2*i}, v{OA+2*i+1}")
    k(f"s_lshl_b32 s33, s{S_G}, 16")
    k(f"s_and_b32 s34, s{QP}, 1")
    k("s_lshl_b32 s34, s34, 15")
    k("s_add_u32 s33, s33, s34")
    k(f"s_lshl_b32 s34, s{S_J}, 2")
    k(f"s_and_b32 s35, s{QP}, 2")
    k("s_add_u32 s34, s34, s35")
    k(f"s_add_u32 s34, s34, s{KH}")
    k("s_lshl_b32 s34, s34, 10")
    k("s_add_u32 s33, s33, s34")
    k(f"s_add_u32 s33, s33, {W_O}")
    k(f"buffer_store_dwordx4 {vr(P,4)}, v2, {sr(SRD_WS,4)}, s33 offen")
    k.stamp(); k("s_waitcnt vmcnt(0)"); k.stamp_flush(1, W_STAMP)
    k(f"{END}:")
    k("s_endpgm")
    k(f"{SLOW}:")
    k(f"s_mov_b32 s44, {VMASK}")
    k(f"s_mov_b32 s45, {VMASK}")
    attn_slow(k, QA, OA, S0, S1, P, KF, VF, KH)
    attn_slow(k, QB, OB, S0, S1, P, KF, VF, KH)
    k(f"s_branch {JOIN}")
    return k

def gemm32_kernel(name, nks, act_base, act_gstride, w_base, w_nbstride, epi):
    k = Kern(name, vgprs=256 if nks > 32 else 128)
    END = name + "_end"
    prologue(k, END)
    NB, TB, KP = 30, 31, 32
    k(f"s_and_b32 s{NB}, s{S_W}, 1")
    k(f"s_bfe_u32 s{TB}, s{S_W}, 0x10001")
    k(f"s_lshr_b32 s{KP}, s{S_W}, 2")
    nksp = (nks + 1) // 2 * 2
    per = nksp // 2
    nblk = 2 * nksp
    ACC, AF, WF = 16, 32, 48
    srd(k, 12, A_X, 2048*1024)
    srd(k, 16, A_OUT, 2048*1024)
    k("s_waitcnt lgkmcnt(0)")
    k(f"s_mul_i32 s33, s{S_G}, {act_gstride}")
    k(f"s_add_u32 s33, s33, {act_base}")
    k(f"s_lshl_b32 s35, s{S_W}, 10")
    k("s_add_u32 s33, s33, s35")
    for i in range(nblk // 8):
        k(f"s_add_u32 m0, s35, {i*8192}")
        k(f"s_add_u32 s36, s33, {i*8192}")
        k(f"buffer_load_dwordx4 v2, {sr(SRD_WS,4)}, s36 offen sc1 lds")
    k(f"s_lshl_b32 s36, s{S_J}, 1")
    k(f"s_add_u32 s36, s36, s{NB}")
    k(f"s_mul_i32 s36, s36, {w_nbstride}")
    k(f"s_lshl_b32 s37, s{KP}, 10")
    k("s_add_u32 s36, s36, s37")
    k(f"s_add_u32 s36, s36, {w_base}")
    for i in range(per):
        if i % 2 == 0 and i > 0: k("s_add_u32 s36, s36, 4096")
        k(f"buffer_load_dwordx4 {vr(WF+4*i,4)}, v2, {sr(SRD_WS,4)}, s36 offen offset:{(i%2)*2048}")
    epi(k, 'pre', NB, TB, KP)
    k(f"s_mul_i32 s37, s{TB}, {nksp*1024}")
    k(f"s_lshl_b32 s38, s{KP}, 10")
    k("s_add_u32 s37, s37, s38")
    k("v_add_u32 v3, s37, v2")
    for i in range(16): k(f"v_mov_b32 v{ACC+i}, 0")
    k("s_waitcnt vmcnt(0)")
    k.stamp(); k("s_barrier"); k.stamp()
    for i in range(min(4, per)):
        k(f"ds_read_b128 {vr(AF+4*(i%4),4)}, v3 offset:{i*2048}")
    for i in range(per):
        k(f"s_waitcnt lgkmcnt({min(3, per-1-i)})")
        if nks % 2 and i == per - 1:
            LS = k.label()
            k(f"s_cmp_lg_u32 s{KP}, 0")
            k(f"s_cbranch_scc1 {LS}")
        k(f"{MF32} {vr(ACC,16)}, {vr(WF+4*i,4)}, {vr(AF+4*(i%4),4)}, {vr(ACC,16)}")
        if nks % 2 and i == per - 1:
            k(f"{LS}:")
        if i + 4 < per:
            k(f"ds_read_b128 {vr(AF+4*(i%4),4)}, v3 offset:{(i+4)*2048}")
    L_X = nblk * 1024
    k(f"s_lshl_b32 s39, s{S_W}, 11")
    k(f"s_add_u32 s39, s39, {L_X}")
    k("v_add_u32 v4, s39, v2")
    LC, LD = k.label(), k.label()
    k(f"s_cmp_eq_u32 s{KP}, 0")
    k(f"s_cbranch_scc1 {LC}")
    k(f"ds_write_b128 v4, {vr(ACC,4)}")
    k(f"ds_write_b128 v4, {vr(ACC+4,4)} offset:1024")
    for i in range(8): k(f"v_mov_b32 v{ACC+i}, v{ACC+8+i}")
    k(f"s_branch {LD}")
    k(f"{LC}:")
    k(f"ds_write_b128 v4, {vr(ACC+8,4)}")
    k(f"ds_write_b128 v4, {vr(ACC+12,4)} offset:1024")
    k(f"{LD}:")
    k(f"s_xor_b32 s39, s{S_W}, 4")
    k("s_lshl_b32 s39, s39, 11")
    k(f"s_add_u32 s39, s39, {L_X}")
    k("v_add_u32 v4, s39, v2")
    k("s_waitcnt lgkmcnt(0)")
    k.stamp(); k("s_barrier"); k.stamp()
    k(f"ds_read_b128 {vr(AF,4)}, v4")
    k(f"ds_read_b128 {vr(AF+4,4)}, v4 offset:1024")
    k("s_waitcnt lgkmcnt(0)")
    for i in range(8): k(f"v_add_f32 v{ACC+i}, v{ACC+i}, v{AF+i}")
    epi(k, 'post', NB, TB, KP, ACC, L_X + 16384)
    k.stamp(); k("s_waitcnt vmcnt(0)"); k.stamp_flush(2 if nks == 32 else 5, W_STAMP)
    k(f"{END}:")
    k("s_endpgm")
    k.lds = L_X + 16384 + 4096
    return k

RES = 8
def rowmajor_off(k, dst, NB, TB, KP):
    k("v_and_b32 v5, 31, v1")
    k("v_lshlrev_b32 v5, 10, v5")
    k("v_lshrrev_b32 v6, 5, v1")
    k(f"v_lshl_add_u32 v{dst}, v6, 4, v5")
    k(f"s_lshl_b32 s40, s{S_G}, 16")
    k(f"s_lshl_b32 s41, s{TB}, 15")
    k("s_add_u32 s40, s40, s41")
    k(f"s_lshl_b32 s41, s{S_J}, 7")
    k("s_add_u32 s40, s40, s41")
    k(f"s_lshl_b32 s41, s{NB}, 6")
    k("s_add_u32 s40, s40, s41")
    k(f"s_lshl_b32 s41, s{KP}, 5")
    k("s_add_u32 s40, s40, s41")
def h_off(k, dst, NB, TB, KP):
    k("v_and_b32 v5, 15, v1")
    k("v_lshlrev_b32 v5, 4, v5")
    k("v_lshrrev_b32 v6, 5, v1")
    k("v_lshl_add_u32 v5, v6, 8, v5")
    k("v_bfe_u32 v6, v1, 4, 1")
    k(f"v_lshl_add_u32 v{dst}, v6, 14, v5")
    k(f"s_lshl_b32 s42, s{S_G}, 16")
    k(f"s_lshl_b32 s41, s{TB}, 15")
    k("s_add_u32 s42, s42, s41")
    k(f"s_lshl_b32 s41, s{S_J}, 11")
    k("s_add_u32 s42, s42, s41")
    k(f"s_lshl_b32 s41, s{NB}, 10")
    k("s_add_u32 s42, s42, s41")
    k(f"s_lshl_b32 s41, s{KP}, 9")
    k("s_add_u32 s42, s42, s41")
    k(f"s_add_u32 s42, s42, {W_H}")
def add_residual(k, ACC):
    for i in range(4):
        k(f"v_lshlrev_b32 v5, 16, v{RES+i}")
        k(f"v_and_b32 v6, 0xffff0000, v{RES+i}")
        k(f"v_add_f32 v{ACC+2*i}, v{ACC+2*i}, v5")
        k(f"v_add_f32 v{ACC+2*i+1}, v{ACC+2*i+1}, v6")
    for i in range(4):
        k(f"v_cvt_pk_bf16_f32 v{RES+i}, v{ACC+2*i}, v{ACC+2*i+1}")

def publish_stats(k, L_S, wsoff, nparts):
    L = k.label()
    k(f"s_cmp_lg_u32 s{S_W}, 0")
    k(f"s_cbranch_scc1 {L}")
    k("v_lshlrev_b32 v5, 3, v1")
    k(f"v_add_u32 v5, {L_S}, v5")
    for p in range(nparts): k(f"ds_read_b64 {vr(32+2*p,2)}, v5 offset:{p*512}")
    k("v_lshrrev_b32 v6, 4, v1")
    k("v_lshlrev_b32 v6, 10, v6")
    k("v_and_b32 v7, 15, v1")
    k("v_lshl_add_u32 v6, v7, 4, v6")
    k(f"s_lshl_b32 s40, s{S_G}, 12")
    k(f"s_lshr_b32 s41, s{S_J}, 1")
    k("s_lshl_b32 s41, s41, 8")
    k("s_add_u32 s40, s40, s41")
    k(f"s_and_b32 s41, s{S_J}, 1")
    k("s_lshl_b32 s41, s41, 3")
    k("s_add_u32 s40, s40, s41")
    k(f"s_add_u32 s40, s40, {wsoff}")
    k("s_waitcnt lgkmcnt(0)")
    for p in range(1, nparts):
        k(f"v_add_f32 v32, v32, v{32+2*p}")
        k(f"v_add_f32 v33, v33, v{33+2*p}")
    k(f"buffer_store_dwordx2 v[32:33], v6, {sr(SRD_WS,4)}, s40 offen sc1")
    k(f"{L}:")

def epi_wo(k, when, NB, TB, KP, ACC=None, L_S=None):
    if when == 'pre':
        rowmajor_off(k, 7, NB, TB, KP)
        k(f"buffer_load_dwordx4 {vr(RES,4)}, v7, s[12:15], s40 offen")
        h_off(k, 12, NB, TB, KP)
        return
    add_residual(k, ACC)
    k(f"buffer_store_dwordx4 {vr(RES,4)}, v12, {sr(SRD_WS,4)}, s42 offen sc1")
    k("v_mov_b32 v14, 0"); k("v_mov_b32 v15, 0")
    for q in range(4):
        k(f"v_dot2_f32_bf16 v14, v{RES+q}, s{ONES}, v14")
        k(f"v_dot2_f32_bf16 v15, v{RES+q}, v{RES+q}, v15")
    swap_add(k, 14, 5); swap_add(k, 15, 5)
    k(f"s_lshl_b32 s40, s{KP}, 1")
    k(f"s_add_u32 s40, s40, s{NB}")
    k("s_lshl_b32 s40, s40, 9")
    k(f"s_lshl_b32 s41, s{TB}, 8")
    k("s_add_u32 s40, s40, s41")
    k(f"s_add_u32 s40, s40, {L_S}")
    k("v_and_b32 v5, 31, v1")
    k("v_lshlrev_b32 v5, 3, v5")
    k("v_add_u32 v5, s40, v5")
    k("ds_write_b64 v5, v[14:15]")
    k("s_waitcnt lgkmcnt(0)")
    k.stamp(); k("s_barrier"); k.stamp()
    publish_stats(k, L_S, W_HS, 4)

def epi_out(k, when, NB, TB, KP, ACC=None, L_S=None):
    if when == 'pre':
        h_off(k, 12, NB, TB, KP)
        k(f"buffer_load_dwordx4 {vr(RES,4)}, v12, {sr(SRD_WS,4)}, s42 offen sc1")
        rowmajor_off(k, 7, NB, TB, KP)
        return
    add_residual(k, ACC)
    k(f"buffer_store_dwordx4 {vr(RES,4)}, v7, s[16:19], s40 offen")

OOB = 0x40000000
def slice_params(k, idx_sgpr, base_dst, cnt_dst):
    pb = sum(b << (8*i) for i, b in enumerate(SLICE_BASE[:4])); pb2 = sum(b << (8*i) for i, b in enumerate(SLICE_BASE[4:]))
    k(f"s_cmp_lt_u32 s{idx_sgpr}, 4")
    k(f"s_cselect_b32 s{base_dst}, {hex(pb)}, {hex(pb2)}".replace(f"{hex(pb)}, {hex(pb2)}", "s50, s51"))
    k.lines.insert(len(k.lines)-2, f"  s_mov_b32 s50, {hex(pb)}")
    k.lines.insert(len(k.lines)-2, f"  s_mov_b32 s51, {hex(pb2)}")
    k(f"s_and_b32 s50, s{idx_sgpr}, 3")
    k("s_lshl_b32 s50, s50, 3")
    k(f"s_lshr_b32 s{base_dst}, s{base_dst}, s50")
    k(f"s_and_b32 s{base_dst}, s{base_dst}, 0xff")
    mask6 = sum(1 << i for i, c in enumerate(SLICE_CNT) if c == 6)
    k(f"s_lshr_b32 s{cnt_dst}, {mask6}, s{idx_sgpr}")
    k(f"s_and_b32 s{cnt_dst}, s{cnt_dst}, 1")
    k(f"s_add_u32 s{cnt_dst}, s{cnt_dst}, 5")

def load_stats(k, dst, wsoff, g_sgpr, tu0_sgpr):
    k(f"s_lshl_b32 s40, s{g_sgpr}, 12")
    k(f"s_lshl_b32 s41, s{tu0_sgpr}, 10")
    k("s_add_u32 s40, s40, s41")
    k(f"s_add_u32 s40, s40, {wsoff}")
    k(f"buffer_load_dwordx4 {vr(dst,4)}, v2, {sr(SRD_WS,4)}, s40 offen sc1")
    k(f"buffer_load_dwordx4 {vr(dst+4,4)}, v2, {sr(SRD_WS,4)}, s40 offen offset:1024 sc1")
def finish_stats(k, src, n, t):
    for u in range(2):
        b = src + 4*u
        k(f"v_add_f32 v{b}, v{b}, v{b+2}")
        k(f"v_add_f32 v{b+1}, v{b+1}, v{b+3}")
        for q in range(2):
            swap_add(k, b+q, t, 16); swap_add(k, b+q, t, 32)
        stats_mu_r(k, b, b+1, b+2, b+3, n, t)

C0 = -2.0 * 1.4426950408889634 * 0.7978845608028654
C1 = C0 * 0.044715
def gelu(k, regs, rs, vc0, sc1, T):
    n = len(regs)
    for i, (x, r) in enumerate(regs): k(f"v_mul_f32 v{x}, v{x}, v{r}")
    for i, (x, r) in enumerate(regs): k(f"v_mul_f32 v{T+i}, v{x}, v{x}")
    for i, (x, r) in enumerate(regs): k(f"v_fma_f32 v{T+i}, v{T+i}, s{sc1}, v{vc0}")
    for i, (x, r) in enumerate(regs): k(f"v_mul_f32 v{T+i}, v{T+i}, v{x}")
    for i, (x, r) in enumerate(regs): k(f"v_exp_f32 v{T+i}, v{T+i}")
    for i, (x, r) in enumerate(regs): k(f"v_add_f32 v{T+i}, 1.0, v{T+i}")
    for i, (x, r) in enumerate(regs): k(f"v_rcp_f32 v{T+i}, v{T+i}")
    for i, (x, r) in enumerate(regs): k(f"v_mul_f32 v{x}, v{x}, v{T+i}")

def flag_signal_wait(k, flag_off, maxspin=200000):
    k(f"s_lshl_b32 s40, s{S_G}, 10")
    k(f"s_add_u32 s40, s40, {W_FLAG + flag_off}")
    k(f"s_lshl_b32 s41, s{S_J}, 2")
    k("v_mov_b32 v5, s41")
    k("v_mov_b32 v6, 1")
    k("s_mov_b64 exec, 1")
    k(f"buffer_store_dword v6, v5, {sr(SRD_WS,4)}, s40 offen sc1")
    k("s_mov_b64 exec, -1")
def flag_wait(k, flag_off, maxspin=200000):
    k(f"s_lshl_b32 s40, s{S_G}, 10")
    k(f"s_add_u32 s40, s40, {W_FLAG + flag_off}")
    k("v_and_b32 v5, 7, v1")
    k("v_lshlrev_b32 v5, 2, v5")
    k(f"s_mov_b32 s41, {maxspin}")
    L, LX = k.label("poll"), k.label("pollx")
    k(f"{L}:")
    k(f"buffer_load_dword v6, v5, {sr(SRD_WS,4)}, s40 offen sc1")
    k("s_sub_u32 s41, s41, 1")
    k("s_cmp_eq_u32 s41, 0")
    k(f"s_cbranch_scc1 {LX}")
    k("s_waitcnt vmcnt(0)")
    k("v_cmp_ne_u32 vcc, 1, v6")
    k(f"s_cbranch_vccnz {L}")
    k(f"{LX}:")

def k_win():
    k = Kern("win_kernel", vgprs=256)
    END = "win_end"
    prologue(k, END)
    CG, KP, BASE, CNT = 30, 31, 32, 33
    U = [52, 53, 54]
    k(f"s_and_b32 s{CG}, s{S_W}, 3")
    k(f"s_lshr_b32 s{KP}, s{S_W}, 2")
    slice_params(k, S_J, BASE, CNT)
    k(f"s_mul_i32 s34, s{CG}, 3")
    k("s_add_u32 s34, s34, 1")
    k("s_lshr_b32 s34, s34, 1")
    k(f"s_lshr_b32 s35, s{CG}, 1")
    k("s_mul_i32 s35, s35, 3")
    k("s_add_u32 s35, s35, 1")
    k(f"s_add_u32 s{U[2]}, s{BASE}, s34")
    k(f"s_mov_b32 s{U[0]}, s{U[2]}")
    k(f"s_add_u32 s{U[1]}, s{BASE}, s35")
    INV = 55
    k(f"s_cmp_ge_u32 s34, s{CNT}")
    k(f"s_cselect_b32 s{INV}, {OOB}, 0")
    PAR = 56
    k(f"s_and_b32 s{PAR}, s{CG}, 1")
    WF, ACC, HF, ST = 16, 112, 160, 8
    k("s_waitcnt lgkmcnt(0)")
    k(f"s_lshl_b32 s36, s{S_G}, 16")
    k(f"s_add_u32 s36, s36, {W_H}")
    k(f"s_lshl_b32 s37, s{S_W}, 10")
    k("s_add_u32 s36, s36, s37")
    for i in range(8):
        k(f"s_add_u32 m0, s37, {i*8192}")
        k(f"s_add_u32 s38, s36, {i*8192}")
        k(f"buffer_load_dwordx4 v2, {sr(SRD_WS,4)}, s38 offen sc1 lds")
    k(f"s_lshl_b32 s38, s{KP}, 1")
    load_stats(k, ST, W_HS, S_G, 38)
    for s in range(3):
        if s == 0: k(f"s_add_u32 s38, s{U[0]}, 43")
        elif s == 2: k(f"s_mov_b32 s38, s{U[2]}")
        else:
            k(f"s_xor_b32 s38, s{PAR}, 1")
            k("s_mul_i32 s38, s38, 43")
            k(f"s_add_u32 s38, s38, s{U[1]}")
        k("s_lshl_b32 s38, s38, 14")
        k(f"s_lshl_b32 s39, s{KP}, 10")
        k("s_add_u32 s38, s38, s39")
        k(f"s_add_u32 s38, s38, {W_WIN}")
        if s != 1: k(f"s_add_u32 s38, s38, s{INV}")
        for i in range(8):
            if i % 2 == 0 and i > 0: k("s_add_u32 s38, s38, 4096")
            k(f"buffer_load_dwordx4 {vr(WF+32*s+4*i,4)}, v2, {sr(SRD_WS,4)}, s38 offen offset:{(i%2)*2048}")
    k(f"s_lshl_b32 s38, s{KP}, 10")
    k("v_add_u32 v3, s38, v2")
    for i in range(48): k(f"v_mov_b32 v{ACC+i}, 0")
    k("s_waitcnt vmcnt(0)")
    k.stamp(); k("s_barrier"); k.stamp()
    def hread(i):
        for tu in range(4):
            k(f"ds_read_b128 {vr(HF+16*(i%2)+4*tu,4)}, v3 offset:{tu*16384 + i*2048}")
    hread(0)
    for i in range(8):
        if i + 1 < 8: hread(i+1)
        for tu in range(4):
            k(f"s_waitcnt lgkmcnt({(4 if i+1 < 8 else 0) + 3 - tu})")
            for s in range(3):
                a = ACC + 16*s + 4*tu
                k(f"{MF16} {vr(a,4)}, {vr(WF+32*s+4*i,4)}, {vr(HF+16*(i%2)+4*tu,4)}, {vr(a,4)}")
    finish_stats(k, ST, 512, 5)
    L_X = 65536
    k(f"s_mul_i32 s39, s{S_W}, 6144")
    k(f"s_add_u32 s39, s39, {L_X}")
    k("v_add_u32 v4, s39, v2")
    LC, LD = k.label(), k.label()
    KEEP = 16
    k(f"s_cmp_eq_u32 s{KP}, 0")
    k(f"s_cbranch_scc1 {LC}")
    for s in range(3):
        for u in range(2):
            k(f"ds_write_b128 v4, {vr(ACC+16*s+4*u,4)} offset:{(2*s+u)*1024}")
        for q in range(8): k(f"v_mov_b32 v{KEEP+8*s+q}, v{ACC+16*s+8+q}")
    k(f"s_branch {LD}")
    k(f"{LC}:")
    for s in range(3):
        for u in range(2):
            k(f"ds_write_b128 v4, {vr(ACC+16*s+8+4*u,4)} offset:{(2*s+u)*1024}")
        for q in range(8): k(f"v_mov_b32 v{KEEP+8*s+q}, v{ACC+16*s+q}")
    k(f"{LD}:")
    k(f"s_xor_b32 s39, s{S_W}, 4")
    k("s_mul_i32 s39, s39, 6144")
    k(f"s_add_u32 s39, s39, {L_X}")
    k("v_add_u32 v4, s39, v2")
    k("s_waitcnt lgkmcnt(0)")
    k.stamp(); k("s_barrier"); k.stamp()
    T = 48
    for q in range(6): k(f"ds_read_b128 {vr(T+4*q,4)}, v4 offset:{q*1024}")
    k(f"v_mov_b32 v6, {hex(f2u(C0))}")
    k(f"s_mov_b32 s57, {hex(f2u(C1))}")
    k("s_waitcnt lgkmcnt(0)")
    for q in range(24): k(f"v_add_f32 v{KEEP+q}, v{KEEP+q}, v{T+q}")
    gelu(k, [(KEEP+8*s+4*u+q, ST+4*u+3) for s in range(3) for u in range(2) for q in range(4)], None, 6, 57, T)
    ZS = 80
    for u in range(2):
        k(f"v_add_f32 v{ZS+2*u}, v{KEEP+4*u}, v{KEEP+4*u+1}")
        k(f"v_mul_f32 v{ZS+2*u+1}, v{KEEP+4*u}, v{KEEP+4*u}")
        k(f"v_add_f32 v{ZS+2*u}, v{ZS+2*u}, v{KEEP+4*u+2}")
        k(f"v_add_f32 v{ZS+2*u}, v{ZS+2*u}, v{KEEP+4*u+3}")
        for q in range(1, 4): k(f"v_fmac_f32 v{ZS+2*u+1}, v{KEEP+4*u+q}, v{KEEP+4*u+q}")
    LE = k.label()
    k(f"s_cmp_lg_u32 s{PAR}, 0")
    k(f"s_cbranch_scc1 {LE}")
    for u in range(2):
        for q in range(4):
            k(f"v_add_f32 v{ZS+2*u}, v{ZS+2*u}, v{KEEP+8+4*u+q}")
            k(f"v_fmac_f32 v{ZS+2*u+1}, v{KEEP+8+4*u+q}, v{KEEP+8+4*u+q}")
    k(f"{LE}:")
    for q in range(4):
        swap_add(k, ZS+q, 5, 16); swap_add(k, ZS+q, 5, 32)
    L_S = L_X + 49152
    k(f"s_lshl_b32 s40, s{CG}, 9")
    k(f"s_lshl_b32 s41, s{KP}, 8")
    k("s_add_u32 s40, s40, s41")
    k(f"s_add_u32 s40, s40, {L_S}")
    k("v_and_b32 v5, 15, v1")
    k("v_lshlrev_b32 v5, 3, v5")
    k("v_add_u32 v5, s40, v5")
    k(f"ds_write_b64 v5, {vr(ZS,2)}")
    k(f"ds_write_b64 v5, {vr(ZS+2,2)} offset:128")
    k("s_waitcnt lgkmcnt(0)")
    k.stamp(); k("s_barrier"); k.stamp()
    LW = k.label()
    k(f"s_cmp_lg_u32 s{S_W}, 0")
    k(f"s_cbranch_scc1 {LW}")
    k("v_lshlrev_b32 v5, 3, v1")
    k(f"v_add_u32 v5, {L_S}, v5")
    for p in range(4): k(f"ds_read_b64 {vr(T+2*p,2)}, v5 offset:{p*512}")
    k("v_lshrrev_b32 v6, 4, v1")
    k("v_lshlrev_b32 v6, 10, v6")
    k("v_and_b32 v7, 15, v1")
    k("v_lshl_add_u32 v6, v7, 4, v6")
    k(f"s_lshl_b32 s40, s{S_G}, 12")
    k(f"s_lshr_b32 s41, s{S_J}, 1")
    k("s_lshl_b32 s41, s41, 8")
    k("s_add_u32 s40, s40, s41")
    k(f"s_and_b32 s41, s{S_J}, 1")
    k("s_lshl_b32 s41, s41, 3")
    k("s_add_u32 s40, s40, s41")
    k(f"s_add_u32 s40, s40, {W_ZS}")
    k("s_waitcnt lgkmcnt(0)")
    for p in range(1, 4):
        k(f"v_add_f32 v{T}, v{T}, v{T+2*p}")
        k(f"v_add_f32 v{T+1}, v{T+1}, v{T+1+2*p}")
    k(f"buffer_store_dwordx2 {vr(T,2)}, v6, {sr(SRD_WS,4)}, s40 offen sc1")
    k("s_waitcnt vmcnt(0)")
    flag_signal_wait(k, 0)
    k(f"{LW}:")
    def z1store(s, usg, inv):
        for q in range(4): k(f"v_cvt_pk_bf16_f32 v{T+8+q}, v{KEEP+8*s+2*q}, v{KEEP+8*s+2*q+1}")
        k(f"s_mul_i32 s40, s{S_G}, {48*2048}")
        k(f"s_lshl_b32 s41, s{usg}, 11")
        k("s_add_u32 s40, s40, s41")
        k(f"s_lshl_b32 s41, s{KP}, 10")
        k("s_add_u32 s40, s40, s41")
        k(f"s_add_u32 s40, s40, {W_Z1}")
        if inv: k(f"s_add_u32 s40, s40, s{INV}")
        k(f"buffer_store_dwordx4 {vr(T+8,4)}, v2, {sr(SRD_WS,4)}, s40 offen sc1")
    z1store(2, U[2], True)
    LF = k.label()
    k(f"s_cmp_eq_u32 s{PAR}, 0")
    k(f"s_cbranch_scc1 {LF}")
    z1store(1, U[1], False)
    k(f"{LF}:")
    LW2 = k.label()
    k(f"s_cmp_lg_u32 s{S_W}, 0")
    k(f"s_cbranch_scc1 {LW2}")
    flag_wait(k, 0)
    k(f"{LW2}:")
    k.stamp(); k("s_barrier"); k.stamp()
    k(f"s_lshl_b32 s38, s{KP}, 1")
    load_stats(k, ST, W_ZS, S_G, 38)
    k(f"s_lshl_b32 s39, s{S_W}, 11")
    k("v_and_b32 v5, 15, v1")
    k("v_lshlrev_b32 v5, 5, v5")
    k("v_lshrrev_b32 v6, 4, v1")
    k("v_lshl_add_u32 v3, v6, 3, v5")
    k("v_add_u32 v3, s39, v3")
    k("v_bfe_u32 v5, v1, 2, 2")
    k("v_lshl_add_u32 v5, v6, 3, v5")
    k("v_lshlrev_b32 v5, 5, v5")
    k("v_and_b32 v6, 3, v1")
    k("v_lshl_add_u32 v4, v6, 3, v5")
    k("v_add_u32 v4, s39, v4")
    k("s_waitcnt vmcnt(0)")
    finish_stats(k, ST, 688, 5)
    for u in range(2): k(f"v_mul_f32 v{ST+4*u+2}, v{ST+4*u+2}, v{ST+4*u+3}")
    def z2store(s, usg, inv):
        for u in range(2):
            for q in range(4):
                x = KEEP + 8*s + 4*u + q
                k(f"v_fma_f32 v{x}, v{x}, v{ST+4*u+3}, -v{ST+4*u+2}")
            for q in range(2):
                k(f"v_cvt_pk_bf16_f32 v{T+2*u+q}, v{KEEP+8*s+4*u+2*q}, v{KEEP+8*s+4*u+2*q+1}")
            k(f"ds_write_b64 v3, {vr(T+2*u,2)} offset:{s*1024 + u*512}")
        k(f"s_lshl_b32 s40, s{usg}, 16")
        k(f"s_lshl_b32 s41, s{S_G}, 11")
        k("s_add_u32 s40, s40, s41")
        k(f"s_lshl_b32 s41, s{KP}, 10")
        k("s_add_u32 s40, s40, s41")
        k(f"s_add_u32 s40, s40, {W_Z2}")
        if inv: k(f"s_add_u32 s40, s40, s{INV}")
        k("s_waitcnt lgkmcnt(0)")
        k(f"ds_read_b64_tr_b16 {vr(T+8,2)}, v4 offset:{s*1024}")
        k(f"ds_read_b64_tr_b16 {vr(T+10,2)}, v4 offset:{s*1024+128}")
        k("s_waitcnt lgkmcnt(0)")
        k(f"buffer_store_dwordx4 {vr(T+8,4)}, v2, {sr(SRD_WS,4)}, s40 offen sc1")
    z2store(0, U[0], True)
    k(f"s_cmp_lg_u32 s{PAR}, 0")
    k(f"s_cbranch_scc1 win_fin")
    z2store(1, U[1], False)
    k("win_fin:")
    k.stamp(); k("s_waitcnt vmcnt(0)"); k.stamp_flush(3, W_STAMP)
    k(f"{END}:")
    k("s_endpgm")
    k.lds = L_S + 2048
    return k

def k_sp():
    k = Kern("sp_kernel", vgprs=256)
    END = "sp_end"
    prologue(k, END)
    RG, CSL, FH, KQ, BASE, CNT = 29, 30, 31, 32, 33, 34
    k("s_and_b32 s3, s2, 7")
    k("s_lshr_b32 s7, s2, 3")
    k("s_lshr_b32 s35, s3, 1")
    k("s_lshl_b32 s35, s35, 3")
    k("s_lshr_b32 s36, s7, 2")
    k(f"s_add_u32 s{RG}, s35, s36")
    k("s_and_b32 s35, s3, 1")
    k("s_lshl_b32 s35, s35, 2")
    k("s_and_b32 s36, s7, 3")
    k(f"s_add_u32 s{CSL}, s35, s36")
    k(f"s_and_b32 s{FH}, s{S_W}, 1")
    k(f"s_lshr_b32 s{KQ}, s{S_W}, 1")
    slice_params(k, CSL, BASE, CNT)
    srd(k, 12, A_BSP, 4096)
    U0, INV, ZO, WO_ = 52, 55, 58, 61
    k(f"s_mul_i32 s35, s{FH}, 3")
    k(f"s_add_u32 s{U0}, s{BASE}, s35")
    k("s_add_u32 s35, s35, 2")
    k(f"s_cmp_ge_u32 s35, s{CNT}")
    k(f"s_cselect_b32 s{INV}, {OOB}, 0")
    k(f"s_lshl_b32 s36, s{KQ}, 14")
    for s in range(3):
        k(f"s_add_u32 s35, s{U0}, {s}")
        k("s_lshl_b32 s35, s35, 16")
        k("s_add_u32 s35, s35, s36")
        k(f"s_add_u32 s{ZO+s}, s35, {W_Z2}")
    k(f"s_add_u32 s{ZO+2}, s{ZO+2}, s{INV}")
    for tu in range(4):
        k(f"s_lshl_b32 s35, s{RG}, 18")
        k(f"s_add_u32 s35, s35, {W_WSP + tu*65536}")
        k(f"s_add_u32 s{WO_+tu}, s35, s36")
    ACC, BUF, DEPTH = 16, 64, 4
    k("s_waitcnt lgkmcnt(0)")
    def loads(i):
        b = BUF + 28*(i % DEPTH)
        if i % 4 == 0 and i > 0:
            for q in range(3): k(f"s_add_u32 s{ZO+q}, s{ZO+q}, 4096")
            for q in range(4): k(f"s_add_u32 s{WO_+q}, s{WO_+q}, 4096")
        for s in range(3):
            k(f"buffer_load_dwordx4 {vr(b+4*s,4)}, v2, {sr(SRD_WS,4)}, s{ZO+s} offen offset:{(i%4)*1024} sc1")
        for tu in range(4):
            k(f"buffer_load_dwordx4 {vr(b+12+4*tu,4)}, v2, {sr(SRD_WS,4)}, s{WO_+tu} offen offset:{(i%4)*1024}")
    k("v_and_b32 v3, 15, v1")
    k("v_lshlrev_b32 v4, 1, v3")
    k(f"s_lshl_b32 s35, s{RG}, 7")
    k(f"s_lshl_b32 s36, s{KQ}, 5")
    k("s_add_u32 s35, s35, s36")
    k("buffer_load_ushort v5, v4, s[12:15], s35 offen")
    k(f"s_mul_i32 s35, s{RG}, {48*2048}")
    k(f"s_lshl_b32 s36, s{U0}, 11")
    k("s_add_u32 s35, s35, s36")
    k(f"s_lshr_b32 s36, s{KQ}, 1")
    k("s_lshl_b32 s36, s36, 10")
    k("s_add_u32 s35, s35, s36")
    k(f"s_and_b32 s36, s{KQ}, 1")
    k("s_lshl_b32 s36, s36, 3")
    k("s_add_u32 s35, s35, s36")
    k(f"s_add_u32 s35, s35, {W_Z1}")
    k(f"buffer_load_dwordx2 v[6:7], v2, {sr(SRD_WS,4)}, s35 offen sc1")
    k(f"buffer_load_dwordx2 v[8:9], v2, {sr(SRD_WS,4)}, s35 offen offset:2048 sc1")
    k("s_add_u32 s35, s35, 4096")
    k(f"buffer_load_dwordx2 v[10:11], v2, {sr(SRD_WS,4)}, s35 offen sc1")
    for i in range(DEPTH - 1): loads(i)
    for i in range(48): k(f"v_mov_b32 v{ACC+i}, 0")
    for i in range(16):
        if i + DEPTH - 1 < 16: loads(i + DEPTH - 1)
        rem = min(DEPTH - 1, 15 - i)
        k(f"s_waitcnt vmcnt({7*rem})")
        b = BUF + 28*(i % DEPTH)
        for tu in range(4):
            for s in range(3):
                a = ACC + 12*tu + 4*s
                k(f"{MF16} {vr(a,4)}, {vr(b+4*s,4)}, {vr(b+12+4*tu,4)}, {vr(a,4)}")
    k(f"s_lshl_b32 s35, s{FH}, 4")
    k(f"s_add_u32 s35, s35, s{KQ}")
    k("s_mul_i32 s35, s35, 3072")
    k("v_add_u32 v12, s35, v2")
    for d in range(4):
        for s in range(3):
            k(f"ds_write_b128 v12, {vr(ACC+12*d+4*s,4)} offset:{d*12288 + s*1024}")
    k(f"s_lshl_b32 s35, s{FH}, 4")
    k(f"s_lshl_b32 s36, s{KQ}, 2")
    k("s_add_u32 s35, s35, s36")
    k("s_mul_i32 s35, s35, 3072")
    k("v_add_u32 v12, s35, v2")
    k("s_waitcnt lgkmcnt(0)")
    k.stamp(); k("s_barrier"); k.stamp()
    for q in range(12): k(f"ds_read_b128 {vr(BUF+4*q,4)}, v12 offset:{q*1024}")
    k("v_lshrrev_b32 v13, 5, v1")
    k("v_lshlrev_b32 v13, 9, v13")
    k("v_lshl_add_u32 v13, v3, 4, v13")
    k("v_bfe_u32 v14, v1, 4, 1")
    k("v_lshl_add_u32 v13, v14, 3, v13")
    k(f"s_mul_i32 s35, s{RG}, {88*1024}")
    k(f"s_lshr_b32 s36, s{KQ}, 1")
    k(f"s_mul_i32 s36, s36, {44*1024}")
    k("s_add_u32 s35, s35, s36")
    k(f"s_lshl_b32 s36, s{U0}, 10")
    k("s_add_u32 s35, s35, s36")
    k(f"s_and_b32 s36, s{KQ}, 1")
    k("s_lshl_b32 s36, s36, 8")
    k("s_add_u32 s35, s35, s36")
    k(f"s_add_u32 s35, s35, {W_Y}")
    k(f"s_add_u32 s36, s35, s{INV}")
    k("v_lshlrev_b32 v5, 16, v5")
    k("s_waitcnt lgkmcnt(0)")
    for q in range(12):
        k(f"v_add_f32 v{BUF+q}, v{BUF+q}, v{BUF+12+q}")
        k(f"v_add_f32 v{BUF+24+q}, v{BUF+24+q}, v{BUF+36+q}")
        k(f"v_add_f32 v{BUF+q}, v{BUF+q}, v5")
        k(f"v_add_f32 v{BUF+q}, v{BUF+q}, v{BUF+24+q}")
    for s in range(3):
        for h in range(2):
            z = 6 + 2*s + h
            k(f"v_lshlrev_b32 v14, 16, v{z}")
            k(f"v_and_b32 v15, 0xffff0000, v{z}")
            k(f"v_mul_f32 v14, v14, v{BUF+4*s+2*h}")
            k(f"v_mul_f32 v15, v15, v{BUF+4*s+2*h+1}")
            k(f"v_cvt_pk_bf16_f32 v{z}, v14, v15")
        so = 36 if s == 2 else 35
        k(f"buffer_store_dwordx2 {vr(6+2*s,2)}, v13, {sr(SRD_WS,4)}, s{so} offen offset:{s*1024} sc1")
    k.stamp(); k("s_waitcnt vmcnt(0)"); k.stamp_flush(4, W_STAMP)
    k(f"{END}:")
    k("s_endpgm")
    k.lds = 98304
    return k

HEADER = open('cdna_kernels/' + NAME + '.s.ref').read().split('; Override')[0]

def build(path, force_slow=False, extra_empty=0, stamps=False):
    Kern.STAMPS = stamps
    ks = []
    kp = k_prep(); kp.lds = 163840; ks.append(kp)
    ka = k_attn(force_slow); ka.lds = 131072 + 1024 + 8*2304; ks.append(ka)
    ks.append(gemm32_kernel("wo_kernel", 32, W_O, 65536, W_WO, 32768, epi_wo))
    ks.append(k_win())
    ks.append(k_sp())
    ks.append(gemm32_kernel("wout_kernel", 43, W_Y, 88*1024, W_WOUT, 44*1024, epi_out))
    txt = HEADER
    for kk in ks:
        txt += f"; @launch kernel={kk.name} grid=(256,1,1) block=(512,1,1) lds={kk.lds}\n"
    if extra_empty:
        e = Kern("empty_kernel", vgprs=8); e("s_endpgm"); e.lds = 0
        for i in range(extra_empty):
            txt += f"; @launch kernel=empty_kernel grid=(256,1,1) block=(512,1,1) lds=0\n"
        ks.append(e)
    txt += '.amdgcn_target "amdgcn-amd-amdhsa--gfx950"\n.text\n'
    for kk in ks: txt += kk.text()
    for kk in ks: txt += kk.desc()
    open(path, 'w').write(txt)
    return ks

if __name__ == '__main__':
    ks = build('cdna_kernels/' + NAME + '.s')
    for kk in ks: print(kk.name, 'lds', kk.lds, 'nops', kk.nops)
```

```python
import sys
from asmlib import *
from gen1 import (NAME, A_X, A_WQ, A_WK, A_WV, A_WO, A_WIN, A_WSP, A_BSP, A_WOUT, A_OUT, A_DBG, A_WS,
                  W_K, W_V, W_KN, W_O, W_H, W_HS, W_Z1, W_Z2, W_ZS, W_Y, W_WO, W_WIN, W_WOUT, W_WSP, W_FLAG, W_END, W_STAMP,
                  SLICE_BASE, SLICE_CNT, QSCALE, f2u, MF32, MF16, srd, swap_add, row_reduce, swap23, tr_lane_parts,
                  stats_mu_r, C0, C1, OOB, HEADER, VMASK)

S_W, S_G, S_J, SRD_WS, ONES = 4, 5, 6, 8, 28
NB, TB, KP = 29, 30, 31
WS = sr(SRD_WS, 4)
SDBG = 64
MODE = 68
F_O, F_H, F_Y, F_X = 0, 1024, 2048, 3072
F_Z = 0x20000
F_W = 0x20400
SPIN = 100000

class VM:
    def __init__(self, k): self.k = k; self.q = []
    def __call__(self, text, tag=None):
        self.k(text); self.q.append(tag)
    def wait(self, *tags):
        idx = [i for i, t in enumerate(self.q) if t in tags]
        if not idx: return
        n = len(self.q) - 1 - max(idx)
        self.k(f"s_waitcnt vmcnt({min(n, 63)})")
        self.q = self.q[max(idx)+1:] if n <= 63 else self.q[-63:]
    def all(self):
        self.k("s_waitcnt vmcnt(0)"); self.q = []

def interleave(a, b):
    out = []; i = j = 0
    while i < len(a) or j < len(b):
        if j >= len(b) or (i < len(a) and i * len(b) <= j * len(a)):
            out.append(a[i]); i += 1
        else:
            out.append(b[j]); j += 1
    return out

class Cap:
    def __init__(self, k): self.k = k
    def __enter__(self): self.save = self.k.lines; self.k.lines = []; return self
    def __exit__(self, *a): self.lines = self.k.lines; self.k.lines = self.save

def sadd(k, dst, *terms, const=0):
    first = True
    for (r, sh) in terms:
        t = dst if first else 49
        if isinstance(sh, str): k(f"s_mul_i32 s{t}, s{r}, {sh[1:]}")
        elif sh == 0: k(f"s_mov_b32 s{t}, s{r}") if first else None
        else: k(f"s_lshl_b32 s{t}, s{r}, {sh}")
        if not first: k(f"s_add_u32 s{dst}, s{dst}, s{r if sh == 0 else 49}")
        first = False
    if const: k(f"s_add_u32 s{dst}, s{dst}, {const}")

def store2(k, vm, text, tag=None):
    if not OPT['l2local']:
        vm(text + " sc1", tag); return
    la, lb = k.label(), k.label()
    k(f"s_cmp_eq_u32 s{MODE}, 0")
    k(f"s_cbranch_scc1 {la}")
    k(text)
    k(f"s_branch {lb}")
    k(f"{la}:")
    k(text + " sc1")
    k(f"{lb}:")
    vm.q.append(tag)

def group_sync(k, vm, foff, store_tag, between=None):
    vm.wait(store_tag)
    k.stamp(store_tag + ' acked')
    k("s_barrier")
    L = k.label()
    k(f"s_cmp_lg_u32 s{S_W}, 0")
    k(f"s_cbranch_scc1 {L}")
    k("s_mov_b64 exec, 1")
    q = list(vm.q)
    store2(k, vm, f"buffer_store_dword v14, v15, {WS}, s50 offen offset:{foff}")
    vm.q = q
    k("s_mov_b64 exec, -1")
    k(f"{L}:")
    if between: between()
    k(f"s_mov_b32 s48, {SPIN}")
    k("s_mov_b64 exec, 1")
    LP, LX = k.label("poll"), k.label("pollx")
    k(f"{LP}:")
    k(f"buffer_load_dword v13, v15, {WS}, s51 offen offset:{foff} sc1")
    k("s_sub_u32 s48, s48, 1")
    k("s_cmp_eq_u32 s48, 0")
    k(f"s_cbranch_scc1 {LX}")
    k("s_waitcnt vmcnt(0)")
    k("v_cmp_eq_u32 vcc, 0, v13")
    k(f"s_cbranch_vccnz {LP}")
    k(f"{LX}:")
    k("s_mov_b64 exec, -1")
    vm.q = []
    k.stamp('sync ok')

OPT = dict(l2local=False, force_slow=False)

def gen():
    k = Kern(NAME + "_kernel", vgprs=256, sgprs=100)
    vm = VM(k)
    END = "L_end"
    k("s_cmp_ge_u32 s2, 256")
    k(f"s_cbranch_scc1 {END}")
    if Kern.STAMPS: k(f"{Kern.STAMPOP} s[72:73]")
    SX, SWQ, SWK, SWV = 12, 16, 20, 24
    k(f"s_load_dwordx2 {sr(SX,2)}, s[0:1], {A_X}")
    k(f"s_load_dwordx2 {sr(SWK,2)}, s[0:1], {A_WK}")
    k(f"s_load_dwordx2 {sr(SWV,2)}, s[0:1], {A_WV}")
    k(f"s_load_dwordx2 {sr(SWQ,2)}, s[0:1], {A_WQ}")
    k(f"s_load_dwordx2 {sr(SRD_WS,2)}, s[0:1], {A_WS}")
    k(f"s_load_dwordx2 {sr(SDBG,2)}, s[0:1], {A_DBG}")
    for r, sz in ((SX, 2048*1024), (SWK, 16384), (SWV, 16384), (SWQ, 512*1024), (SRD_WS, W_END), (SDBG, 256)):
        k(f"s_mov_b32 s{r+2}, {sz}"); k(f"s_mov_b32 s{r+3}, 0x20000")
    k("v_lshrrev_b32 v1, 6, v0")
    k("v_and_b32 v2, 63, v0")
    k(f"v_readfirstlane_b32 s{S_W}, v1")
    k("v_mov_b32 v1, v2")
    k("v_lshlrev_b32 v2, 4, v1")
    if Kern.STAMPS:
        k("s_waitcnt lgkmcnt(0)"); k("v_mov_b32 v0, -1"); k("v_writelane_b32 v0, s72, 0"); k.nst = 1; k.stnames = ['start']
    k("s_and_b32 s3, s2, 7")
    k("s_lshr_b32 s7, s2, 3")
    k(f"s_and_b32 s{S_J}, s7, 7")
    k("s_lshr_b32 s7, s7, 3")
    k("s_lshl_b32 s3, s3, 2")
    k(f"s_add_u32 s{S_G}, s3, s7")
    k(f"s_mov_b32 s{ONES}, 0x3f803f80")
    k(f"s_and_b32 s{NB}, s{S_W}, 1")
    k(f"s_bfe_u32 s{TB}, s{S_W}, 0x10001")
    k(f"s_lshr_b32 s{KP}, s{S_W}, 2")
    L_X, L_WQ, L_SCR, L_WKV = 0, 65536, 114688, 131072
    L_ST, L_CSKV, L_CSQ, L_VT, L_KVP = L_SCR, L_SCR + 2048, L_SCR + 2560, L_SCR + 3072, L_SCR + 4096
    k("v_lshrrev_b32 v3, 3, v1")
    k("v_and_b32 v4, 7, v1")
    k(f"v_xor_b32 v5, s{NB}, v3")
    k("v_xor_b32 v5, v5, v4")
    k("v_lshlrev_b32 v5, 4, v5")
    k("v_lshl_add_u32 v5, v3, 10, v5")
    sadd(k, 33, (S_G, 16), (S_W, 13))
    k(f"s_lshl_b32 s35, s{S_W}, 10")
    TB1, KQ, ISKV = 55, 56, 57
    k(f"s_and_b32 s{TB1}, s{S_W}, 1")
    k(f"s_lshr_b32 s{KQ}, s{S_W}, 1")
    k(f"s_cmp_eq_u32 s{TB1}, s{S_J}")
    k(f"s_cselect_b32 s{ISKV}, 1, 0")
    k("s_waitcnt lgkmcnt(0)")
    LZ = k.label()
    k(f"s_cmp_lg_u32 s{S_W}, s{S_J}")
    k(f"s_cbranch_scc1 {LZ}")
    k(f"s_cmp_ge_u32 s{S_J}, 2")
    k(f"s_cbranch_scc1 {LZ}")
    k(f"s_sub_u32 s48, 0, s{S_J}")
    for q in range(4): k(f"v_mov_b32 v{16+q}, s48")
    k(f"s_cmp_eq_u32 s{S_J}, 0")
    k(f"s_cselect_b32 s48, {W_FLAG}, {W_ZS}".replace(f"{W_FLAG}, {W_ZS}", "s46, s47"))
    k.lines.insert(len(k.lines)-2, f"  s_mov_b32 s46, {W_FLAG}")
    k.lines.insert(len(k.lines)-2, f"  s_mov_b32 s47, {W_ZS}")
    k(f"s_lshl_b32 s47, s{S_G}, 12")
    k("s_add_u32 s48, s48, s47")
    for q in range(4):
        k(f"buffer_store_dwordx4 v[16:19], v2, {WS}, s48 offen offset:{q*1024} sc1")
    k(f"s_cmp_lg_u32 s2, 0")
    k(f"s_cbranch_scc1 {LZ}")
    k(f"s_mov_b32 s48, {W_FLAG + F_Z}")
    k(f"buffer_store_dwordx4 v[16:19], v2, {WS}, s48 offen sc1")
    k(f"buffer_store_dwordx4 v[16:19], v2, {WS}, s48 offen offset:1024 sc1")
    k(f"{LZ}:")
    for cb in range(8):
        k(f"s_add_u32 m0, s35, {L_X + cb*8064}")
        vm(f"buffer_load_dwordx4 v5, {sr(SX,4)}, s33 offen offset:{cb*128} lds", 'x')
    k(f"s_lshl_b32 s37, s{S_W}, 11")
    k(f"s_cmp_lt_u32 s{S_J}, 2")
    k(f"s_cselect_b32 s38, s37, {OOB}")
    for i in range(2):
        k(f"s_add_u32 m0, s37, {L_WKV}")
        vm(f"buffer_load_dwordx4 v2, {sr(SWK,4)}, s38 offen offset:{i*1024} lds", 'x')
        k(f"s_add_u32 m0, s37, {L_WKV + 16384}")
        vm(f"buffer_load_dwordx4 v2, {sr(SWV,4)}, s38 offen offset:{i*1024} lds", 'x')
    k("v_bfe_u32 v6, v3, 1, 1")
    k("v_lshlrev_b32 v6, 2, v6")
    k("v_xor_b32 v6, v6, v4")
    k("v_lshlrev_b32 v6, 4, v6")
    k("v_lshl_add_u32 v6, v3, 10, v6")
    k(f"s_lshl_b32 s36, s{S_J}, 7")
    k("v_add_u32 v6, s36, v6")
    k(f"s_lshl_b32 s34, s{S_W}, 13")
    for i in range(6):
        k(f"s_add_u32 s38, s34, {i*65536}")
        k(f"s_add_u32 m0, s35, {L_WQ + i*8192}")
        vm(f"buffer_load_dwordx4 v6, {sr(SWQ,4)}, s38 offen lds", 'wq')
    RES = 44
    k("v_and_b32 v8, 31, v1")
    k("v_lshlrev_b32 v7, 10, v8")
    k("v_lshrrev_b32 v9, 5, v1")
    k("v_lshl_add_u32 v7, v9, 4, v7")
    sadd(k, 52, (S_G, 16), (TB, 15), (S_J, 7), (NB, 6), (KP, 5))
    vm(f"buffer_load_dwordx4 {vr(RES,4)}, v7, {sr(SX,4)}, s52 offen", 'res')
    NT = 0
    if OPT.get('tlb', True):
        NT = 2
        k("v_lshlrev_b32 v36, 19, v1")
        k(f"s_cmp_eq_u32 s{S_W}, 7")
        k(f"s_cselect_b32 s38, 0, {OOB}")
        k(f"buffer_load_dword v236, v36, {WS}, s38 offen")
        k(f"buffer_load_dword v237, v1, {sr(SDBG,4)}, s38 offen")
    RP = 240
    k("s_lshl_b32 s42, s2, 3")
    k(f"s_add_u32 s42, s42, s{S_W}")
    k("v_lshrrev_b32 v21, 2, v1")
    k("v_and_b32 v22, 3, v1")
    k("v_lshlrev_b32 v22, 4, v22")
    RT, RDST, SRP, RO = 53, 54, 60, 74
    RV = 35
    L1, L2, L3, L5 = [k.label() for _ in range(4)]
    for q in range(4): k(f"s_mov_b32 s{RO+q}, {OOB}")
    k(f"s_mov_b32 s{RT}, 0")
    k(f"v_lshl_add_u32 v{RV}, v21, 10, v22")
    k("s_cmp_lt_u32 s2, 43")
    k(f"s_cbranch_scc1 {L1}")
    k("s_sub_u32 s44, s42, 344")
    k("s_cmp_lt_u32 s44, 256")
    k(f"s_cbranch_scc1 {L2}")
    srd(k, SRP, A_WOUT, 688*1024)
    k("s_sub_u32 s44, s44, 256")
    k("s_cmp_lt_u32 s44, 352")
    k(f"s_cbranch_scc0 {L5}")
    k(f"s_mul_i32 s45, s44, {(65536 + 21)//22}")
    k("s_lshr_b32 s45, s45, 16")
    k("s_mul_i32 s46, s45, 22")
    k("s_sub_u32 s46, s44, s46")
    sadd(k, RDST, (45, '*45056'), (46, 11), const=W_WOUT)
    k(f"s_branch {L3}")
    k(f"{L2}:")
    srd(k, SRP, A_WO, 512*1024)
    k("s_lshr_b32 s45, s44, 4")
    k("s_and_b32 s46, s44, 15")
    sadd(k, RDST, (44, 11), const=W_WO)
    k(f"{L3}:")
    k(f"s_mov_b32 s{RT}, 1")
    sadd(k, RO, (46, 15), (45, 6))
    k(f"s_add_u32 s{RO+1}, s{RO}, 16384")
    k(f"s_branch {L5}")
    k(f"{L1}:")
    srd(k, SRP, A_WIN, 512*2752)
    k(f"s_mov_b32 s{RT}, 2")
    k("s_mov_b32 s47, 2752")
    k(f"v_mul_lo_u32 v{RV}, v21, s47")
    k(f"v_add_u32 v{RV}, v{RV}, v22")
    sadd(k, RO, (S_W, f'*{64*2752}'), (2, 6))
    for q in range(1, 4): k(f"s_add_u32 s{RO+q}, s{RO+q-1}, {16*2752}")
    sadd(k, RDST, (2, 15), (S_W, 11), const=W_WIN)
    k(f"{L5}:")
    sadd(k, 50, (S_G, 12), (S_J, 7), const=W_FLAG)
    sadd(k, 51, (S_G, 12), (S_W, 7), const=W_FLAG)
    XA0, XA1, XB, WA, KA = 10, 11, 12, 13, 14
    k("v_and_b32 v16, 7, v1")
    k("v_bfe_u32 v17, v1, 3, 2")
    k("v_and_b32 v18, 1, v17")
    k("v_xor_b32 v18, v18, v16")
    k("v_xor_b32 v18, v18, v9")
    k("v_lshlrev_b32 v18, 4, v18")
    k("v_lshl_add_u32 v18, v16, 7, v18")
    k("v_lshl_add_u32 v18, v17, 10, v18")
    sadd(k, 39, (KP, 5), (TB, 12))
    k(f"v_xor_b32 v{XA0}, s39, v18")
    k(f"v_xor_b32 v{XA1}, 64, v{XA0}")
    sadd(k, 39, (KQ, 5), (TB1, 12))
    k(f"v_xor_b32 v{XB}, s39, v18")
    G_, JJ, SC = 24, 25, 26
    tr_lane_parts(k, G_, JJ, SC, 17)
    k(f"v_lshrrev_b32 v17, 1, v{G_}")
    k(f"v_lshl_add_u32 v17, v17, 3, v{JJ}")
    k(f"v_and_b32 v19, 1, v{G_}")
    k("v_lshlrev_b32 v20, 1, v19")
    k(f"v_lshrrev_b32 v21, 1, v{SC}")
    k("v_add_u32 v20, v20, v21")
    k(f"s_lshl_b32 s39, s{NB}, 2")
    k("v_add_u32 v20, s39, v20")
    k(f"v_lshrrev_b32 v21, 1, v{JJ}")
    k("v_lshlrev_b32 v21, 2, v21")
    k("v_xor_b32 v20, v20, v21")
    k("v_lshlrev_b32 v20, 4, v20")
    k("v_lshl_add_u32 v20, v17, 7, v20")
    k(f"v_and_b32 v21, 1, v{SC}")
    k("v_lshl_add_u32 v20, v21, 3, v20")
    sadd(k, 39, (KP, 11), const=L_WQ)
    k(f"v_add_u32 v{WA}, s39, v20")
    k("v_lshlrev_b32 v20, 14, v19")
    k("v_lshl_add_u32 v20, v17, 5, v20")
    k(f"v_lshl_add_u32 v20, v{SC}, 3, v20")
    sadd(k, 39, (KQ, 9), const=L_WKV)
    k(f"v_add_u32 v{KA}, s39, v20")
    swap23(k, 27, 8, 20)
    ACC, KVA, XF, WF = 48, 64, 80, 112
    SUM, SSQ, SUM2, SSQ2, CS = 28, 29, 30, 31, 32
    for i in range(16): k(f"v_mov_b32 v{KVA+i}, 0")
    for r in (SUM, SSQ, SUM2, SSQ2, CS): k(f"v_mov_b32 v{r}, 0")
    k(f"s_waitcnt vmcnt({7+NT})")
    k.stamp('x own')
    k("s_barrier")
    k.stamp('B1')
    for i in range(8): k(f"ds_read_b128 {vr(XF+4*i,4)}, v{XB} offset:{i*8192}")
    LK, LE = k.label(), k.label()
    k(f"s_cmp_lg_u32 s{ISKV}, 0")
    k(f"s_cbranch_scc1 {LK}")
    def statops(i):
        for q in range(4):
            r = XF + 4*i + q
            a, b = (SUM, SSQ) if q % 2 == 0 else (SUM2, SSQ2)
            k(f"v_dot2_f32_bf16 v{a}, v{r}, s{ONES}, v{a}")
            k(f"v_dot2_f32_bf16 v{b}, v{r}, v{r}, v{b}")
    for i in range(8):
        k(f"s_waitcnt lgkmcnt({7-i})")
        statops(i)
    k(f"s_branch {LE}")
    k(f"{LK}:")
    for i in range(3):
        k(f"ds_read_b64_tr_b16 {vr(WF+4*i,2)}, v{KA} offset:{i*2048}")
        k(f"ds_read_b64_tr_b16 {vr(WF+4*i+2,2)}, v{KA} offset:{i*2048+128}")
    for i in range(8):
        if i + 3 < 8:
            k(f"s_waitcnt lgkmcnt(4)")
            k(f"ds_read_b64_tr_b16 {vr(WF+4*(i+3),2)}, v{KA} offset:{(i+3)*2048}")
            k(f"ds_read_b64_tr_b16 {vr(WF+4*(i+3)+2,2)}, v{KA} offset:{(i+3)*2048+128}")
        else:
            k(f"s_waitcnt lgkmcnt({2*(7-i)})")
        k(f"{MF32} {vr(KVA,16)}, {vr(WF+4*i,4)}, {vr(XF+4*i,4)}, {vr(KVA,16)}")
        statops(i)
        for q in range(4): k(f"v_dot2_f32_bf16 v{CS}, v{WF+4*i+q}, s{ONES}, v{CS}")
    swap_add(k, CS, 20)
    sadd(k, 39, (KQ, 7), const=L_CSKV)
    k("v_lshlrev_b32 v20, 2, v27")
    k("v_add_u32 v20, s39, v20")
    k(f"ds_write_b32 v20, v{CS}")
    LV, LW_ = k.label(), k.label()
    sadd(k, 39, (KQ, 11), const=L_KVP - 2048)
    k("v_add_u32 v20, s39, v2")
    k(f"s_cmp_eq_u32 s{KQ}, 0")
    k(f"s_cbranch_scc1 {LV}")
    k(f"ds_write_b128 v20, {vr(KVA,4)}")
    k(f"ds_write_b128 v20, {vr(KVA+4,4)} offset:1024")
    k(f"s_cmp_eq_u32 s{KQ}, 1")
    k(f"s_cbranch_scc1 {LW_}")
    k(f"ds_write_b128 v20, {vr(KVA+8,4)} offset:6144")
    k(f"ds_write_b128 v20, {vr(KVA+12,4)} offset:7168")
    k(f"s_branch {LW_}")
    k(f"{LV}:")
    k(f"ds_write_b128 v20, {vr(KVA+8,4)} offset:8192")
    k(f"ds_write_b128 v20, {vr(KVA+12,4)} offset:9216")
    k(f"{LW_}:")
    k(f"{LE}:")
    k(f"v_add_f32 v{SUM}, v{SUM}, v{SUM2}")
    k(f"v_add_f32 v{SSQ}, v{SSQ}, v{SSQ2}")
    swap_add(k, SUM, 20); swap_add(k, SSQ, 21)
    sadd(k, 39, (TB1, 10), (KQ, 3), const=L_ST)
    k("v_lshlrev_b32 v20, 5, v8")
    k("v_add_u32 v20, s39, v20")
    k(f"ds_write_b64 v20, {vr(SUM,2)}")
    k(f"s_waitcnt vmcnt({1+NT}) lgkmcnt(0)")
    k.stamp('ph1')
    k("s_barrier")
    k.stamp('B2')
    MU, RS = 33, 34
    def read_stats(tbreg):
        sadd(k, 39, (tbreg, 10), const=L_ST)
        k("v_lshlrev_b32 v20, 5, v8")
        k("v_add_u32 v20, s39, v20")
        k(f"ds_read_b128 {vr(36,4)}, v20")
        k(f"ds_read_b128 {vr(40,4)}, v20 offset:16")
    def fin_stats():
        k("v_add_f32 v36, v36, v38"); k("v_add_f32 v37, v37, v39")
        k("v_add_f32 v40, v40, v42"); k("v_add_f32 v41, v41, v43")
        k("v_add_f32 v36, v36, v40"); k("v_add_f32 v37, v37, v41")
        stats_mu_r(k, 36, 37, MU, RS, 512, 20)
    LNOKV, LVW, LKVD = k.label(), k.label(), k.label()
    k(f"s_cmp_eq_u32 s{ISKV}, 0")
    k(f"s_cbranch_scc1 {LNOKV}")
    k(f"s_cmp_ge_u32 s{KQ}, 2")
    k(f"s_cbranch_scc1 {LNOKV}")
    k("s_setprio 3")
    read_stats(TB1)
    sadd(k, 39, (KQ, '*6144'), const=L_KVP)
    k("v_add_u32 v20, s39, v2")
    for p in range(3):
        k(f"ds_read_b128 {vr(XF+8*p,4)}, v20 offset:{p*2048}")
        k(f"ds_read_b128 {vr(XF+8*p+4,4)}, v20 offset:{p*2048+1024}")
    sadd(k, 39, (KQ, 6), const=L_CSKV)
    k("v_lshlrev_b32 v21, 5, v9")
    k("v_add_u32 v21, s39, v21")
    k("s_waitcnt lgkmcnt(6)")
    for p in range(4):
        k(f"ds_read_b128 {vr(WF+8*p,4)}, v21 offset:{p*128}")
        k(f"ds_read_b128 {vr(WF+8*p+4,4)}, v21 offset:{p*128+16}")
    fin_stats()
    LOWN = k.label()
    k(f"s_cmp_eq_u32 s{KQ}, 0")
    k(f"s_cbranch_scc1 {LOWN}")
    for i in range(8): k(f"v_mov_b32 v{KVA+i}, v{KVA+8+i}")
    k(f"{LOWN}:")
    k("s_waitcnt lgkmcnt(8)")
    for i in range(8):
        k(f"v_add_f32 v{KVA+i}, v{KVA+i}, v{XF+i}")
        k(f"v_add_f32 v{XF+8+i}, v{XF+8+i}, v{XF+16+i}")
    for i in range(8): k(f"v_add_f32 v{KVA+i}, v{KVA+i}, v{XF+8+i}")
    k("s_waitcnt lgkmcnt(0)")
    for i in range(8):
        k(f"v_add_f32 v{WF+i}, v{WF+i}, v{WF+8+i}")
        k(f"v_add_f32 v{WF+16+i}, v{WF+16+i}, v{WF+24+i}")
    for i in range(8): k(f"v_add_f32 v{WF+i}, v{WF+i}, v{WF+16+i}")
    for i in range(8): k(f"v_fma_f32 v{KVA+i}, -v{MU}, v{WF+i}, v{KVA+i}")
    for i in range(8): k(f"v_mul_f32 v{KVA+i}, v{KVA+i}, v{RS}")
    for i in range(4): k(f"v_cvt_pk_bf16_f32 v{XF+i}, v{KVA+2*i}, v{KVA+2*i+1}")
    sadd(k, 39, (S_G, 1), (S_J, 0))
    k("s_lshl_b32 s40, s39, 10")
    k("s_lshl_b32 s41, s39, 2")
    k(f"s_cmp_lg_u32 s{KQ}, 0")
    k(f"s_cbranch_scc1 {LVW}")
    k("v_lshl_add_u32 v20, v9, 5, v27")
    k("v_lshlrev_b32 v20, 4, v20")
    k(f"buffer_store_dwordx4 {vr(XF,4)}, v20, {WS}, s40 offen sc1")
    k(f"v_mov_b32 v{SUM}, 0")
    for q in range(4): k(f"v_dot2_f32_bf16 v{SUM}, v{XF+q}, v{XF+q}, v{SUM}")
    swap_add(k, SUM, 20)
    row_reduce(k, SUM, "v_max_f32")
    swap_add(k, SUM, 20, 16, "v_max_f32")
    k(f"v_add_u32 v{SUM}, 0xffff, v{SUM}")
    k(f"v_lshrrev_b32 v{SUM}, 16, v{SUM}")
    k(f"v_or_b32 v{SUM}, 1, v{SUM}")
    k(f"s_branch {LKVD}")
    k(f"{LVW}:")
    k("v_lshlrev_b32 v20, 5, v8")
    k("v_lshl_add_u32 v20, v9, 4, v20")
    k(f"v_add_u32 v20, {L_VT}, v20")
    k(f"ds_write_b128 v20, {vr(XF,4)}")
    k(f"v_and_b32 v19, 1, v{G_}")
    k(f"v_lshrrev_b32 v17, 1, v{G_}")
    k("v_lshlrev_b32 v20, 4, v19")
    k("v_lshl_add_u32 v20, v17, 3, v20")
    k(f"v_add_u32 v20, v20, v{JJ}")
    k("v_lshlrev_b32 v20, 5, v20")
    k("v_and_b32 v21, 3, v1")
    k("v_lshl_add_u32 v20, v21, 3, v20")
    k(f"v_add_u32 v20, {L_VT}, v20")
    k("s_waitcnt lgkmcnt(0)")
    k(f"ds_read_b64_tr_b16 {vr(WF,2)}, v20")
    k(f"ds_read_b64_tr_b16 {vr(WF+2,2)}, v20 offset:128")
    k("v_and_b32 v21, 15, v27")
    k("v_lshlrev_b32 v21, 4, v21")
    k("v_lshl_add_u32 v21, v17, 8, v21")
    k("v_lshl_add_u32 v21, v19, 9, v21")
    k(f"s_add_u32 s40, s40, {W_V}")
    k("s_add_u32 s41, s41, 2")
    k(f"v_mov_b32 v{SUM}, 1")
    k("s_waitcnt lgkmcnt(0)")
    k(f"buffer_store_dwordx4 {vr(WF,4)}, v21, {WS}, s40 offen sc1")
    k(f"{LKVD}:")
    k("v_mov_b32 v20, 0")
    k("s_waitcnt vmcnt(0)")
    k("s_mov_b64 exec, 1")
    k(f"buffer_store_short v{SUM}, v20, {sr(SDBG,4)}, s41 offen sc1")
    k("s_mov_b64 exec, -1")
    k("s_setprio 0")
    k(f"{LNOKV}:")
    k.stamp('kv pub')
    for i in range(6, 8):
        k(f"s_add_u32 s38, s34, {i*65536}")
        k(f"s_add_u32 m0, s35, {L_WKV + (i-6)*8192}")
        k(f"buffer_load_dwordx4 v6, {sr(SWQ,4)}, s38 offen lds")
    for q in range(4): k(f"buffer_load_dwordx4 {vr(RP+4*q,4)}, v{RV}, {sr(SRP,4)}, s{RO+q} offen")
    for i in range(16): k(f"v_mov_b32 v{ACC+i}, 0")
    k(f"v_mov_b32 v{CS}, 0")
    k(f"v_add_u32 v15, {L_WKV - L_WQ - 49152}, v{WA}")
    def qreads(i):
        a = XA0 if i % 2 == 0 else XA1
        k(f"ds_read_b128 {vr(XF+4*(i%4),4)}, v{a} offset:{(i//2)*8192}")
        wa = WA if i < 12 else 15
        k(f"ds_read_b64_tr_b16 {vr(WF+4*(i%4),2)}, v{wa} offset:{i*4096}")
        k(f"ds_read_b64_tr_b16 {vr(WF+4*(i%4)+2,2)}, v{wa} offset:{i*4096+512}")
    def qstep(i):
        k(f"{MF32} {vr(ACC,16)}, {vr(WF+4*(i%4),4)}, {vr(XF+4*(i%4),4)}, {vr(ACC,16)}")
        for q in range(4): k(f"v_dot2_f32_bf16 v{CS}, v{WF+4*(i%4)+q}, s{ONES}, v{CS}")
    for i in range(3): qreads(i)
    for i in range(12):
        if i + 3 < 12:
            qreads(i+3); k("s_waitcnt lgkmcnt(9)")
        else:
            k(f"s_waitcnt lgkmcnt({3*(11-i)})")
        qstep(i)
    k("s_waitcnt vmcnt(4)")
    vm.q = []
    k("s_barrier")
    for i in range(12, 16): qreads(i)
    for i in range(12, 16):
        k(f"s_waitcnt lgkmcnt({3*(15-i)})")
        qstep(i)
    swap_add(k, CS, 20)
    sadd(k, 39, (KP, 8), (NB, 7), const=L_CSQ)
    k("v_lshlrev_b32 v20, 2, v27")
    k("v_add_u32 v20, s39, v20")
    k(f"ds_write_b32 v20, v{CS}")
    read_stats(TB)
    k("s_waitcnt lgkmcnt(0)")
    k("s_barrier")
    sadd(k, 39, (S_W, 12), const=L_WQ)
    k("v_add_u32 v22, s39, v2")
    for q in range(4): k(f"ds_write_b128 v22, {vr(ACC+4*q,4)} offset:{q*1024}")
    fin_stats()
    sadd(k, 39, (NB, 7), const=L_CSQ)
    k("v_lshlrev_b32 v21, 5, v9")
    k("v_add_u32 v21, s39, v21")
    for h in range(2):
        for p in range(2):
            k(f"ds_read_b128 {vr(WF+16*p+8*h,4)}, v21 offset:{p*256 + h*64}")
            k(f"ds_read_b128 {vr(WF+16*p+8*h+4,4)}, v21 offset:{p*256 + h*64 + 16}")
    k("v_xor_b32 v22, 0x4000, v22")
    k(f"v_mul_f32 v35, {hex(f2u(QSCALE))}, v{RS}")
    k("s_waitcnt lgkmcnt(0)")
    k("s_barrier")
    for q in range(4): k(f"ds_read_b128 {vr(XF+4*q,4)}, v22 offset:{q*1024}")
    for i in range(16): k(f"v_add_f32 v{WF+i}, v{WF+i}, v{WF+16+i}")
    for i in range(16): k(f"v_fma_f32 v{ACC+i}, -v{MU}, v{WF+i}, v{ACC+i}")
    k("s_waitcnt lgkmcnt(0)")
    for i in range(16): k(f"v_add_f32 v{ACC+i}, v{ACC+i}, v{XF+i}")
    for i in range(16): k(f"v_mul_f32 v{ACC+i}, v{ACC+i}, v35")
    QA, QB, KF, VF, P = 16, 20, 24, 28, 36
    k(f"v_mov_b32 v10, v{G_}"); k(f"v_mov_b32 v11, v{JJ}"); k(f"v_mov_b32 v12, v{SC}")
    G_, JJ, SC = 10, 11, 12
    for i in range(8): k(f"v_cvt_pk_bf16_f32 v{QA+i}, v{ACC+2*i}, v{ACC+2*i+1}")
    k.stamp('Q done')
    FR = 80
    LR1, LR2, LRD = k.label(), k.label(), k.label()
    k(f"s_lshl_b32 s43, s{S_W}, 12")
    k("v_add_u32 v3, s43, v2")
    k("s_waitcnt vmcnt(0)")
    k(f"s_cmp_eq_u32 s{RT}, 0")
    k(f"s_cbranch_scc1 {LRD}")
    k(f"s_cmp_eq_u32 s{RT}, 2")
    k(f"s_cbranch_scc1 {LR2}")
    for i in range(2): k(f"ds_write_b128 v3, {vr(RP+4*i,4)} offset:{i*1024}")
    k(f"v_lshrrev_b32 v4, 1, v{G_}")
    k(f"v_lshl_add_u32 v4, v4, 3, v{JJ}")
    k("v_lshlrev_b32 v4, 6, v4")
    k(f"v_and_b32 v5, 1, v{G_}")
    k("v_lshl_add_u32 v4, v5, 5, v4")
    k(f"v_lshl_add_u32 v4, v{SC}, 3, v4")
    k("v_add_u32 v4, s43, v4")
    k("s_waitcnt lgkmcnt(0)")
    for i in range(2):
        k(f"ds_read_b64_tr_b16 {vr(FR+4*i,2)}, v4 offset:{i*1024}")
        k(f"ds_read_b64_tr_b16 {vr(FR+4*i+2,2)}, v4 offset:{i*1024+256}")
    k("s_waitcnt lgkmcnt(0)")
    for i in range(2):
        k(f"buffer_store_dwordx4 {vr(FR+4*i,4)}, v2, {WS}, s{RDST} offen offset:{i*1024} sc1")
    k(f"s_branch {LRD}")
    k(f"{LR2}:")
    for i in range(4): k(f"ds_write_b128 v3, {vr(RP+4*i,4)} offset:{i*1024}")
    k(f"v_lshl_add_u32 v4, v{G_}, 3, v{JJ}")
    k("v_lshlrev_b32 v4, 6, v4")
    k("v_and_b32 v5, 3, v1")
    k("v_lshl_add_u32 v4, v5, 3, v4")
    k("v_add_u32 v4, s43, v4")
    k("s_waitcnt lgkmcnt(0)")
    for a in range(2):
        for kb in range(2):
            f = FR + 4*(a*2+kb)
            k(f"ds_read_b64_tr_b16 {vr(f,2)}, v4 offset:{kb*2048 + a*32}")
            k(f"ds_read_b64_tr_b16 {vr(f+2,2)}, v4 offset:{kb*2048 + a*32 + 256}")
    k("v_mov_b32 v48, 0"); k("v_mov_b32 v49, 0")
    k("s_waitcnt lgkmcnt(0)")
    for q in range(8):
        for a in range(2): k(f"v_dot2_f32_bf16 v{48+a}, v{FR+8*a+q}, s{ONES}, v{48+a}")
    for a in range(2):
        swap_add(k, 48+a, 5, 32); swap_add(k, 48+a, 5, 16)
    k("v_and_b32 v5, 15, v1")
    k("v_lshlrev_b32 v5, 5, v5")
    sadd(k, 39, (S_W, 2), const=32768)
    k("v_add_u32 v4, s39, v5")
    k("ds_write_b32 v4, v48")
    k("ds_write_b32 v4, v49 offset:512")
    k("s_waitcnt lgkmcnt(0)")
    k("s_barrier")
    k("v_add_u32 v4, 32768, v5")
    for a in range(2):
        k(f"ds_read_b128 {vr(48+8*a,4)}, v4 offset:{a*512}")
        k(f"ds_read_b128 {vr(52+8*a,4)}, v4 offset:{a*512+16}")
    k("s_waitcnt lgkmcnt(0)")
    for a in range(2):
        b = 48 + 8*a
        for q in range(1, 8): k(f"v_add_f32 v{b}, v{b}, v{b+q}")
        k(f"v_mul_f32 v{b}, {hex(f2u(1.0/512))}, v{b}")
    for a in range(2):
        b = 48 + 8*a
        for q in range(8):
            r = FR + 8*a + q
            t = 64 + 2*(q % 4)
            k(f"v_lshlrev_b32 v{t}, 16, v{r}")
            k(f"v_and_b32 v{t+1}, 0xffff0000, v{r}")
            k(f"v_sub_f32 v{t}, v{t}, v{b}")
            k(f"v_sub_f32 v{t+1}, v{t+1}, v{b}")
            k(f"v_cvt_pk_bf16_f32 v{r}, v{t}, v{t+1}")
    k(f"s_add_u32 s48, s{RDST}, 16384")
    for kb in range(2):
        k(f"buffer_store_dwordx4 {vr(FR+4*kb,4)}, v2, {WS}, s{RDST} offen offset:{kb*1024} sc1")
        k(f"buffer_store_dwordx4 {vr(FR+8+4*kb,4)}, v2, {WS}, s48 offen offset:{kb*1024} sc1")
    k(f"{LRD}:")
    S0, S1, OA, OB = 48, 64, 80, 96
    KADR, VADR = 4, 5
    KH = KP
    k(f"s_lshl_b32 s36, s{KH}, 15")
    k(f"v_add_u32 v{KADR}, s36, v2")
    k("v_and_b32 v3, 15, v1")
    k("v_lshlrev_b32 v3, 4, v3")
    k("v_lshl_add_u32 v3, v9, 8, v3")
    k("v_add_u32 v3, 0x10000, v3")
    k(f"v_add_u32 v{VADR}, s36, v3")
    k("v_and_b32 v13, 27, v1")
    k("v_cmp_eq_u32 vcc, 16, v13")
    k(f"v_mov_b32 v14, s{ONES}")
    k("v_cndmask_b32 v14, 0, v14, vcc")
    for i in range(8): k(f"v_mov_b32 v{VF+i}, v14")
    k("v_mov_b32 v13, 0"); k("v_mov_b32 v14, 0")
    for q in range(4):
        k(f"v_dot2_f32_bf16 v13, v{QA+q}, v{QA+q}, v13")
        k(f"v_dot2_f32_bf16 v14, v{QB+q}, v{QB+q}, v14")
    swap_add(k, 13, 15); swap_add(k, 14, 15)
    k("v_max_f32 v13, v13, v14")
    row_reduce(k, 13, "v_max_f32"); swap_add(k, 13, 15, 16, "v_max_f32")
    for i in range(16): k(f"v_mov_b32 v{OA+i}, 0"); k(f"v_mov_b32 v{OB+i}, 0")
    k("v_lshlrev_b32 v6, 2, v1")
    srd(k, SRP, A_WSP, 2048*4096)
    k("v_and_b32 v12, 15, v1")
    k("v_lshlrev_b32 v12, 12, v12")
    k(f"v_lshl_add_u32 v12, v{G_}, 4, v12")
    k("s_lshr_b32 s39, s42, 4")
    k("s_and_b32 s40, s42, 15")
    sadd(k, 41, (39, 16), (40, 8))
    sadd(k, 35, (KH, 15), (S_W, 10))
    k("s_and_b32 s35, s35, 0x8fff")
    k.stamp('repack')
    L_KM = 163832
    LP, LX, LB = k.label("p0"), k.label("p0x"), k.label()
    k(f"s_cmp_lg_u32 s{S_W}, 0")
    k(f"s_cbranch_scc1 {LB}")
    k(f"s_mov_b32 s48, {SPIN}")
    k(f"{LP}:")
    k(f"buffer_load_dword v14, v6, {sr(SDBG,4)}, 0 offen sc1")
    k("s_sub_u32 s48, s48, 1")
    k("s_cmp_eq_u32 s48, 0")
    k(f"s_cbranch_scc1 {LX}")
    k("s_waitcnt vmcnt(0)")
    k("v_and_b32 v15, 0xffff, v14")
    k("v_lshrrev_b32 v14, 16, v14")
    k("v_min_u32 v14, v14, v15")
    k("v_cmp_eq_u32 vcc, 0, v14")
    k(f"s_cbranch_vccz {LX}")
    k(f"s_sleep {OPT.get('sleep0', 8)}")
    k(f"s_branch {LP}")
    k(f"{LX}:")
    k("v_lshlrev_b32 v14, 16, v15")
    row_reduce(k, 14, "v_max_f32"); swap_add(k, 14, 15, 16, "v_max_f32"); swap_add(k, 14, 15, 32, "v_max_f32")
    k(f"v_mov_b32 v15, {L_KM}")
    k("ds_write_b32 v15, v14")
    k(f"{LB}:")
    k("s_waitcnt lgkmcnt(0)")
    k("s_barrier")
    k.stamp('S0')
    vm.q = []
    for i in range(16):
        k(f"s_add_u32 s36, s35, {(i%2)*65536 + (i//2)*4096}")
        k("s_mov_b32 m0, s36")
        vm(f"buffer_load_dwordx4 v2, {WS}, s36 offen sc1 lds", f'kv{i//2}')
    k(f"v_mov_b32 v15, {L_KM}")
    k("ds_read_b32 v14, v15")
    k("s_getreg_b32 s39, hwreg(HW_REG_XCC_ID, 0, 4)")
    k("s_add_u32 s39, s39, 1")
    k("v_mov_b32 v15, s39")
    sadd(k, 39, (S_G, 12), (S_J, 2), const=W_FLAG + F_X)
    k("v_mov_b32 v10, 0")
    k("s_mov_b64 exec, 1")
    vm(f"buffer_store_dword v15, v10, {WS}, s39 offen sc1", 'xcc')
    k("s_mov_b64 exec, -1")
    k("s_waitcnt lgkmcnt(0)")
    k("v_mul_f32 v13, v13, v14")
    k(f"v_mov_b32 v14, {hex(f2u(-1.0 if OPT['force_slow'] else 1600.0))}")
    k("v_cmp_nle_f32 vcc, v13, v14")
    EXM = 44
    k(f"s_mov_b32 s{EXM}, {VMASK}")
    k(f"s_mov_b32 s{EXM+1}, {VMASK}")
    k("s_mov_b64 s[58:59], vcc")
    vm.wait('kv1')
    k("s_barrier")
    k.stamp('kv01')
    def vread(i, off):
        k(f"s_mov_b64 exec, {sr(EXM,2)}")
        k(f"ds_read_b128 {vr(VF+4*i,4)}, v{VADR} offset:{off + i*512}")
        k("s_mov_b64 exec, -1")
    def unit(S, Snext, Qnext, Oprev, Ocur, isA, t, extra):
        if not isA: k("s_waitcnt lgkmcnt(0)")
        k(f"{MF32} {vr(Snext,16)}, {vr(KF,4)}, {vr(Qnext,4)}, 0")
        k(f"v_exp_f32 v{S}, v{S}")
        k(f"v_exp_f32 v{S+1}, v{S+1}")
        k(f"{MF32} {vr(Oprev,16)}, {vr(VF+4,4)}, {vr(P+4,4)}, {vr(Oprev,16)}")
        if isA:
            k(f"ds_read_b128 {vr(KF,4)}, v{KADR} offset:{(t+1)*1024}")
            vread(1, t*1024)
        for i in range(1, 8):
            k(f"v_exp_f32 v{S+2*i}, v{S+2*i}")
            k(f"v_exp_f32 v{S+2*i+1}, v{S+2*i+1}")
            if i == 5:
                if isA: k("s_waitcnt lgkmcnt(2)")
                k(f"{MF32} {vr(Ocur,16)}, {vr(VF,4)}, {vr(P,4)}, {vr(Ocur,16)}")
                if not isA: vread(0, (t+1)*1024)
            k(f"v_cvt_pk_bf16_f32 v{P+i-1}, v{S+2*i-2}, v{S+2*i-1}")
            if i in (2, 3) and extra: extra.pop(0)()
        k(f"v_cvt_pk_bf16_f32 v{P+7}, v{S+14}, v{S+15}")
    def tiles(t0, n, extra=None):
        for t in range(t0, t0+n):
            unit(S0, S1, QB, OB, OA, True, t, extra)
            unit(S1, S0, QA, OA, OB, False, t, extra)
        while extra: extra.pop(0)()
    SLOW, JOIN = k.label("slow"), k.label("join")
    FAST = []
    k("s_cmp_lg_u64 s[58:59], 0")
    k(f"s_cselect_b32 s58, 1, 0")
    def wsp_load_list():
        def mk(q): return lambda: vm(f"buffer_load_dwordx4 {vr(RP+4*q,4)}, v12, {sr(SRP,4)}, s41 offen offset:{q*64}", 'wsp')
        return [mk(q) for q in range(4)]
    def duty1():
        vm.wait('wsp')
        sadd(k, 39, (42, 12), const=W_WSP)
        for q in range(4): vm(f"buffer_store_dwordx4 {vr(RP+4*q,4)}, v2, {WS}, s39 offen offset:{q*1024} sc1", 'wsps')
        k("s_barrier")
    def duty2():
        vm.all()
        k("s_barrier")
        L = k.label()
        k(f"s_cmp_lg_u32 s{S_W}, 0")
        k(f"s_cbranch_scc1 {L}")
        sadd(k, 39, (2, 2), const=W_FLAG + F_W)
        k("v_mov_b32 v13, 0")
        k("v_mov_b32 v14, 1")
        k("s_mov_b64 exec, 1")
        k(f"buffer_store_dword v14, v13, {WS}, s39 offen sc1")
        k("s_mov_b64 exec, -1")
        k(f"{L}:")
        k(f"s_mov_b32 s39, {W_FLAG + F_W}")
        sadd(k, 40, (S_G, 12), const=W_FLAG + F_X)
        k("v_and_b32 v13, 7, v1")
        k("v_lshlrev_b32 v13, 2, v13")
    def duty3_issue():
        L = k.label()
        k(f"s_cmp_lg_u32 s{S_W}, 0")
        k(f"s_cbranch_scc1 {L}")
        k(f"buffer_load_dwordx4 {vr(RP,4)}, v2, {WS}, s39 offen sc1")
        k(f"buffer_load_dword v{RP+4}, v13, {WS}, s40 offen sc1")
        k(f"{L}:")
    def duty3():
        LPp, LXx = k.label("wp"), k.label("wpx")
        k(f"s_cmp_lg_u32 s{S_W}, 0")
        k(f"s_cbranch_scc1 {LXx}")
        k(f"s_mov_b32 s48, {SPIN}")
        k(f"{LPp}:")
        k("s_waitcnt vmcnt(0)")
        k(f"v_min_u32 v14, v{RP}, v{RP+1}")
        k(f"v_min3_u32 v14, v14, v{RP+2}, v{RP+3}")
        k(f"v_min_u32 v14, v14, v{RP+4}")
        k("v_cmp_eq_u32 vcc, 0, v14")
        k(f"s_cbranch_vccz {LXx}")
        k("s_sub_u32 s48, s48, 1")
        k("s_cmp_eq_u32 s48, 0")
        k(f"s_cbranch_scc1 {LXx}")
        k("s_sleep 16")
        k(f"buffer_load_dwordx4 {vr(RP,4)}, v2, {WS}, s39 offen sc1")
        k(f"buffer_load_dword v{RP+4}, v13, {WS}, s40 offen sc1")
        k(f"s_branch {LPp}")
        k(f"{LXx}:")
        k("s_barrier")
        vm.q = []
        vm(f"buffer_load_dword v{RP+4}, v13, {WS}, s40 offen sc1", 'xc')
    def duty_mode():
        vm.wait('xc')
        k(f"v_readfirstlane_b32 s39, v{RP+4}")
        k(f"v_cmp_ne_u32 vcc, s39, v{RP+4}")
        k("s_cmp_eq_u64 vcc, 0")
        k(f"s_cselect_b32 s{MODE}, 1, 0")
    CG, PAR, INV, U02, U1 = 90, 91, 92, 93, 94
    def dparams():
        k(f"s_and_b32 s{CG}, s{S_W}, 3")
        k(f"s_xor_b32 s{CG}, s{CG}, s{KP}")
        k(f"s_and_b32 s{PAR}, s{CG}, 1")
        pb = sum(b << (8*i) for i, b in enumerate(SLICE_BASE[:4])); pb2 = sum(b << (8*i) for i, b in enumerate(SLICE_BASE[4:]))
        k(f"s_mov_b32 s39, {hex(pb)}"); k(f"s_mov_b32 s40, {hex(pb2)}")
        k(f"s_cmp_lt_u32 s{S_J}, 4")
        k("s_cselect_b32 s39, s39, s40")
        k(f"s_and_b32 s40, s{S_J}, 3")
        k("s_lshl_b32 s40, s40, 3")
        k("s_lshr_b32 s39, s39, s40")
        k("s_and_b32 s95, s39, 0xff")
        mask6 = sum(1 << i for i, c in enumerate(SLICE_CNT) if c == 6)
        k(f"s_lshr_b32 s96, {mask6}, s{S_J}")
        k("s_and_b32 s96, s96, 1")
        k("s_add_u32 s96, s96, 5")
        k(f"s_mul_i32 s39, s{CG}, 3")
        k("s_add_u32 s39, s39, 1")
        k("s_lshr_b32 s39, s39, 1")
        k(f"s_mov_b32 s{U02}, s39")
        k("s_cmp_ge_u32 s39, s96")
        k(f"s_cselect_b32 s{INV}, {OOB}, 0")
        k(f"s_lshr_b32 s40, s{CG}, 1")
        k("s_mul_i32 s40, s40, 3")
        k(f"s_add_u32 s{U1}, s40, 1")
    WOF, WI0, WI1, WI2 = 112, 176, 208, 48
    def win_off(s):
        if s == 0: sadd(k, 46, (U02, 0), (95, 0), const=43)
        elif s == 2: sadd(k, 46, (U02, 0), (95, 0))
        else:
            k(f"s_xor_b32 s46, s{PAR}, 1")
            k("s_mul_i32 s46, s46, 43")
            k(f"s_add_u32 s46, s46, s{U1}")
            k("s_add_u32 s46, s46, s95")
        k("s_lshl_b32 s46, s46, 14")
        k(f"s_lshl_b32 s47, s{KP}, 10")
        k("s_add_u32 s46, s46, s47")
        k(f"s_add_u32 s46, s46, {W_WIN}")
        if s != 1: k(f"s_add_u32 s46, s46, s{INV}")
    def wload_list(base, n, setup, tag):
        ex = []
        def mk(i):
            def f():
                if i == 0: setup()
                elif i % 2 == 0: k("s_add_u32 s46, s46, 4096")
                vm(f"buffer_load_dwordx4 {vr(base+4*i,4)}, v2, {WS}, s46 offen offset:{(i%2)*2048} sc1", tag)
            return f
        return [mk(i) for i in range(n)]
    def wo_setup(): sadd(k, 46, (S_J, 16), (NB, 15), (KP, 10), const=W_WO)
    pre = lambda: wload_list(WOF, 16, wo_setup, 'wo') + wload_list(WI0, 8, lambda: win_off(0), 'wi') + wload_list(WI1, 8, lambda: win_off(1), 'wi')
    k("s_cmp_lg_u32 s58, 0")
    k(f"s_cbranch_scc1 {SLOW}")
    qsave = list(vm.q)
    k(f"ds_read_b128 {vr(KF,4)}, v{KADR}")
    vread(0, 0)
    for i in range(4, 8): k(f"v_mov_b32 v{P+i}, 0")
    k("s_waitcnt lgkmcnt(1)")
    k(f"{MF32} {vr(S0,16)}, {vr(KF,4)}, {vr(QA,4)}, 0")
    dparams()
    tiles(0, 1)
    tiles(1, 4, wsp_load_list())
    k.stamp('t5')
    duty1()
    k.stamp('duty1')
    tiles(5, 3)
    duty2()
    k.stamp('duty2')
    tiles(8, 2)
    duty3_issue()
    tiles(10, 2)
    k.stamp('t12')
    duty3()
    k.stamp('duty3')
    tiles(12, 20, pre())
    duty_mode()
    k(f"{MF32} {vr(OB,16)}, {vr(VF+4,4)}, {vr(P+4,4)}, {vr(OB,16)}")
    k("s_waitcnt lgkmcnt(0)")
    k(f"{JOIN}:")
    k.stamp('attn end')
    qjoin = list(vm.q)
    L_C = 131072 + 1024
    T = 24
    sadd(k, 36, (S_W, '*2304'), const=L_C)
    k("v_add_u32 v13, s36, v2")
    k("v_add_u32 v14, s36, v6")
    LB_, LC_ = k.label(), k.label()
    k(f"s_cmp_eq_u32 s{KH}, 0")
    k(f"s_cbranch_scc1 {LB_}")
    k(f"ds_write_b128 v13, {vr(OA,4)}")
    k(f"ds_write_b128 v13, {vr(OA+4,4)} offset:1024")
    k(f"ds_write_b32 v14, v{OA+8} offset:2048")
    for i in range(9): k(f"v_mov_b32 v{OA+i}, v{OB+i}")
    k(f"s_branch {LC_}")
    k(f"{LB_}:")
    k(f"ds_write_b128 v13, {vr(OB,4)}")
    k(f"ds_write_b128 v13, {vr(OB+4,4)} offset:1024")
    k(f"ds_write_b32 v14, v{OB+8} offset:2048")
    k(f"{LC_}:")
    k(f"s_xor_b32 s37, s{S_W}, 4")
    sadd(k, 36, (37, '*2304'), const=L_C)
    k("v_add_u32 v13, s36, v2")
    k("v_add_u32 v14, s36, v6")
    sadd(k, 33, (S_G, 16), (TB, 15), (S_J, 12), (NB, 11), (KH, 10), const=W_O)
    k("s_waitcnt lgkmcnt(0)")
    k("s_barrier")
    k(f"ds_read_b128 {vr(T,4)}, v13")
    k(f"ds_read_b128 {vr(T+4,4)}, v13 offset:1024")
    k(f"ds_read_b32 v{T+8}, v14 offset:2048")
    k("v_mov_b32 v14, 1"); k("v_mov_b32 v15, 0")
    k("s_waitcnt lgkmcnt(0)")
    k(f"v_add_f32 v{OA+8}, v{OA+8}, v{T+8}")
    k(f"v_rcp_f32 v13, v{OA+8}")
    for i in range(8): k(f"v_add_f32 v{OA+i}, v{OA+i}, v{T+i}")
    for i in range(8): k(f"v_mul_f32 v{OA+i}, v{OA+i}, v13")
    for i in range(4): k(f"v_cvt_pk_bf16_f32 v{T+i}, v{OA+2*i}, v{OA+2*i+1}")
    store2(k, vm, f"buffer_store_dwordx4 {vr(T,4)}, v2, {WS}, s33 offen", 'o')
    def s1_between():
        for f in wload_list(WI2, 8, lambda: win_off(2), 'wi'): f()
    sadd(k, 33, (S_G, 16), (S_W, 12), const=W_O)
    k(f"s_lshl_b32 s35, s{S_W}, 12")
    ACC, AF = 80, 96
    sadd(k, 37, (TB, 15), (KP, 10))
    k("v_add_u32 v3, s37, v2")
    group_sync(k, vm, F_O, 'o', s1_between)
    for tb in range(2):
        k(f"s_add_u32 m0, s35, {tb*32768}")
        k(f"s_add_u32 s36, s33, {tb*32768}")
        for q in range(4):
            vm(f"buffer_load_dwordx4 v2, {WS}, s36 offen offset:{q*1024} sc1 lds", 'ot')
    for i in range(16): k(f"v_mov_b32 v{ACC+i}, 0")
    def gemm32(per, W, odd):
        for i in range(min(4, per)): k(f"ds_read_b128 {vr(AF+4*(i%4),4)}, v3 offset:{i*2048}")
        for i in range(per):
            k(f"s_waitcnt lgkmcnt({min(3, per-1-i)})")
            if odd and i == per - 1:
                LS = k.label()
                k(f"s_cmp_lg_u32 s{KP}, 0")
                k(f"s_cbranch_scc1 {LS}")
            k(f"{MF32} {vr(ACC,16)}, {vr(W+4*i,4)}, {vr(AF+4*(i%4),4)}, {vr(ACC,16)}")
            if odd and i == per - 1: k(f"{LS}:")
            if i + 4 < per: k(f"ds_read_b128 {vr(AF+4*(i%4),4)}, v3 offset:{(i+4)*2048}")
        LCc, LDd = k.label(), k.label()
        k(f"s_cmp_eq_u32 s{KP}, 0")
        k(f"s_cbranch_scc1 {LCc}")
        k(f"ds_write_b128 v4, {vr(ACC,4)}")
        k(f"ds_write_b128 v4, {vr(ACC+4,4)} offset:1024")
        for i in range(8): k(f"v_mov_b32 v{ACC+i}, v{ACC+8+i}")
        k(f"s_branch {LDd}")
        k(f"{LCc}:")
        k(f"ds_write_b128 v4, {vr(ACC+8,4)}")
        k(f"ds_write_b128 v4, {vr(ACC+12,4)} offset:1024")
        k(f"{LDd}:")
        for i in range(4):
            k(f"v_lshlrev_b32 v{T+2*i}, 16, v{RES+i}")
            k(f"v_and_b32 v{T+2*i+1}, 0xffff0000, v{RES+i}")
        for i in range(8): k(f"v_add_f32 v{ACC+i}, v{ACC+i}, v{T+i}")
        k("s_waitcnt lgkmcnt(0)")
        k("s_barrier")
        k(f"ds_read_b128 {vr(AF,4)}, v5")
        k(f"ds_read_b128 {vr(AF+4,4)}, v5 offset:1024")
        k("s_waitcnt lgkmcnt(0)")
        for i in range(8): k(f"v_add_f32 v{ACC+i}, v{ACC+i}, v{AF+i}")
        for i in range(4): k(f"v_cvt_pk_bf16_f32 v{RES+i}, v{ACC+2*i}, v{ACC+2*i+1}")
    L_C = 131072
    sadd(k, 39, (S_W, 11), const=L_C)
    k("v_add_u32 v4, s39, v2")
    k("v_xor_b32 v5, 0x2000, v4")
    k("v_and_b32 v10, 15, v1")
    k("v_lshlrev_b32 v12, 4, v10")
    k("v_lshl_add_u32 v12, v9, 8, v12")
    k("v_bfe_u32 v11, v1, 4, 1")
    k("v_lshl_add_u32 v12, v11, 14, v12")
    sadd(k, 43, (S_G, 16), (TB, 15), (S_J, 11), (NB, 10), (KP, 9), const=W_H)
    L_S = L_C + 16384
    sadd(k, 40, (KP, 10), (NB, 9), (TB, 8), const=L_S)
    k("v_lshlrev_b32 v11, 3, v8")
    k("v_add_u32 v11, s40, v11")
    vm.all()
    k.stamp('o landed')
    k("s_barrier")
    gemm32(16, WOF, False)
    store2(k, vm, f"buffer_store_dwordx4 {vr(RES,4)}, v12, {WS}, s43 offen", 'h')
    k(f"v_mov_b32 v{T}, 0"); k(f"v_mov_b32 v{T+1}, 0")
    for q in range(4):
        k(f"v_dot2_f32_bf16 v{T}, v{RES+q}, s{ONES}, v{T}")
        k(f"v_dot2_f32_bf16 v{T+1}, v{RES+q}, v{RES+q}, v{T+1}")
    swap_add(k, T, T+2); swap_add(k, T+1, T+3)
    k(f"ds_write_b64 v11, {vr(T,2)}")
    def pub_addr(vdst):
        k(f"v_lshrrev_b32 v{vdst}, 4, v1")
        k(f"v_lshlrev_b32 v{vdst}, 10, v{vdst}")
        k(f"v_lshl_add_u32 v{vdst}, v10, 4, v{vdst}")
        k(f"s_lshr_b32 s40, s{S_J}, 1")
        k(f"s_and_b32 s41, s{S_J}, 1")
        sadd(k, 47, (S_G, 12), (40, 8), (41, 3))
    def publish(wsoff, ls, tag):
        L = k.label()
        k(f"s_cmp_lg_u32 s{S_W}, 0")
        k(f"s_cbranch_scc1 {L}")
        k("v_lshlrev_b32 v13, 3, v1")
        k(f"v_add_u32 v13, {ls}, v13")
        for p in range(4): k(f"ds_read_b64 {vr(T+2*p,2)}, v13 offset:{p*512}")
        pub_addr(T+8)
        k(f"s_add_u32 s47, s47, {wsoff}")
        k("s_waitcnt lgkmcnt(0)")
        k(f"v_add_f32 v{T}, v{T}, v{T+2}"); k(f"v_add_f32 v{T+1}, v{T+1}, v{T+3}")
        k(f"v_add_f32 v{T+4}, v{T+4}, v{T+6}"); k(f"v_add_f32 v{T+5}, v{T+5}, v{T+7}")
        k(f"v_add_f32 v{T}, v{T}, v{T+4}"); k(f"v_add_f32 v{T+1}, v{T+1}, v{T+5}")
        q = list(vm.q)
        store2(k, vm, f"buffer_store_dwordx2 {vr(T,2)}, v{T+8}, {WS}, s47 offen")
        vm.q = q
        if tag: k("s_waitcnt vmcnt(0)")
        k(f"{L}:")
    k("s_waitcnt lgkmcnt(0)")
    k("s_barrier")
    publish(W_HS, L_S, True)
    FH, KQ2 = NB, 97
    k(f"s_lshr_b32 s{KQ2}, s{S_W}, 1")
    WSPO = 98
    sadd(k, WSPO, (S_G, 18), (FH, 17), (KQ2, 14), const=W_WSP)
    def wsp_dma(step0):
        region = 65536 if (step0 % 8) < 4 else 0
        sadd(k, 38, (KQ2, 14), (FH, 11), const=region)
        for s in range(4):
            for u in range(2):
                k(f"s_add_u32 m0, s38, {s*4096 + u*1024}")
                k(f"s_add_u32 s36, s{WSPO}, {u*65536 + (step0+s)*1024}")
                vm(f"buffer_load_dwordx4 v2, {WS}, s36 offen sc1 lds", f'sp{step0}')
    sadd(k, 33, (S_G, 16), (S_W, 11), const=W_H)
    k(f"s_lshl_b32 s35, s{S_W}, 11")
    group_sync(k, vm, F_H, 'h', lambda: wsp_dma(0))
    for tu in range(4):
        k(f"s_add_u32 m0, s35, {tu*16384}")
        k(f"s_add_u32 s36, s33, {tu*16384}")
        for q in range(2):
            vm(f"buffer_load_dwordx4 v2, {WS}, s36 offen offset:{q*1024} sc1 lds", 'ht')
    DACC, HF, ST = 112, 80, 16
    for i in range(48): k(f"v_mov_b32 v{DACC+i}, 0")
    k(f"s_lshl_b32 s38, s{KP}, 10")
    k("v_add_u32 v3, s38, v2")
    sadd(k, 74, (S_G, 12), (KP, 11))
    k(f"s_add_u32 s75, s74, {W_ZS}")
    k(f"s_add_u32 s74, s74, {W_HS}")
    k(f"s_lshr_b32 s39, s{CG}, 1")
    sadd(k, 38, (KP, 1), (39, 0))
    sadd(k, 39, (38, '*6144'), const=L_C)
    k("v_add_u32 v4, s39, v2")
    k("s_xor_b32 s38, s38, 2")
    sadd(k, 39, (38, '*6144'), const=L_C)
    k("v_add_u32 v5, s39, v2")
    k(f"s_xor_b32 s38, s{PAR}, 1")
    k("s_lshl_b32 s38, s38, 12")
    k("s_add_u32 s39, s39, s38")
    TW, TR, Z1A, Z1B = 40, 41, 42, 43
    k("v_lshrrev_b32 v13, 4, v1")
    k(f"v_lshlrev_b32 v{TW}, 5, v10")
    k(f"v_lshl_add_u32 v{TW}, v13, 3, v{TW}")
    k(f"v_add_u32 v{TW}, s39, v{TW}")
    k(f"v_bfe_u32 v{TR}, v1, 2, 2")
    k(f"v_lshl_add_u32 v{TR}, v13, 3, v{TR}")
    k(f"v_lshlrev_b32 v{TR}, 5, v{TR}")
    k("v_and_b32 v13, 3, v1")
    k(f"v_lshl_add_u32 v{TR}, v13, 3, v{TR}")
    k(f"v_add_u32 v{TR}, s39, v{TR}")
    L_S2, L_Z1 = L_C + 24576, 151552
    k("v_lshlrev_b32 v13, 3, v1")
    sadd(k, 39, (U02, 11), (KP, 10), const=L_Z1)
    k(f"v_add_u32 v{Z1A}, s39, v13")
    sadd(k, 39, (U1, 11), (KP, 10), const=L_Z1)
    k(f"v_add_u32 v{Z1B}, s39, v13")
    sadd(k, 39, (CG, 9), (KP, 8), const=L_S2)
    k("v_lshlrev_b32 v11, 3, v10")
    k("v_add_u32 v11, s39, v11")
    sadd(k, 39, (U02, 0), (95, 0))
    sadd(k, 33, (39, 16), (S_G, 11), (KP, 10), (INV, 0), const=W_Z2)
    sadd(k, 39, (U1, 0), (95, 0))
    sadd(k, 34, (39, 16), (S_G, 11), (KP, 10), const=W_Z2)
    k(f"v_mov_b32 v12, {hex(f2u(C0))}")
    k(f"s_mov_b32 s57, {hex(f2u(C1))}")
    vm.all()
    k.stamp('h landed')
    k("s_barrier")
    vm(f"buffer_load_dwordx4 {vr(ST,4)}, v2, {WS}, s74 offen sc1", 'hs')
    vm(f"buffer_load_dwordx4 {vr(ST+4,4)}, v2, {WS}, s74 offen offset:1024 sc1", 'hs')
    WI = [WI0, WI1, WI2]
    WOUT = 168
    def finish_stats(src, n, t):
        for u in range(2):
            b = src + 4*u
            k(f"v_add_f32 v{b}, v{b}, v{b+2}")
            k(f"v_add_f32 v{b+1}, v{b+1}, v{b+3}")
        for w_ in (16, 32):
            for u in range(2):
                for q in range(2): k(f"v_mov_b32 v{t+2*u+q}, v{src+4*u+q}")
            for u in range(2):
                for q in range(2): k(f"v_permlane{w_}_swap_b32 v{src+4*u+q}, v{t+2*u+q}")
            for u in range(2):
                for q in range(2): k(f"v_add_f32 v{src+4*u+q}, v{src+4*u+q}, v{t+2*u+q}")
        with Cap(k) as c0: stats_mu_r(k, src, src+1, src+2, src+3, n, t)
        with Cap(k) as c1: stats_mu_r(k, src+4, src+5, src+6, src+7, n, t+1)
        k.lines += interleave(c0.lines, c1.lines)
    def mpass(slots):
        def hread(i):
            for tu in range(4): k(f"ds_read_b128 {vr(HF+16*(i%2)+4*tu,4)}, v3 offset:{tu*16384 + i*2048}")
        hread(0)
        for i in range(8):
            if i + 1 < 8: hread(i+1)
            for tu in range(4):
                k(f"s_waitcnt lgkmcnt({(4 if i+1 < 8 else 0) + 3 - tu})")
                for s in slots:
                    a = DACC + 16*s + 4*tu
                    k(f"{MF16} {vr(a,4)}, {vr(WI[s]+4*i,4)}, {vr(HF+16*(i%2)+4*tu,4)}, {vr(a,4)}")
    def send(slots, off):
        La, Lb = k.label(), k.label()
        k(f"s_cmp_eq_u32 s{KP}, 0")
        k(f"s_cbranch_scc1 {La}")
        for n, s in enumerate(slots):
            for u in range(2): k(f"ds_write_b128 v4, {vr(DACC+16*s+4*u,4)} offset:{off + (2*n+u)*1024}")
        for n, s in enumerate(slots):
            for q in range(8): k(f"v_mov_b32 v{DACC+16*s+q}, v{DACC+16*s+8+q}")
        k(f"s_branch {Lb}")
        k(f"{La}:")
        for n, s in enumerate(slots):
            for u in range(2): k(f"ds_write_b128 v4, {vr(DACC+16*s+8+4*u,4)} offset:{off + (2*n+u)*1024}")
        k(f"{Lb}:")
    def recv(slots, off):
        for n, s in enumerate(slots):
            for u in range(2): k(f"ds_read_b128 {vr(DACC+16*s+8+4*u,4)}, v5 offset:{off + (2*n+u)*1024}")
    def gelu(slots):
        regs = [(DACC+16*s+4*u+q, ST+4*u+3) for s in slots for u in range(2) for q in range(4)]
        for (x, r) in regs: k(f"v_add_f32 v{x}, v{x}, v{x+8}")
        for (x, r) in regs: k(f"v_mul_f32 v{x}, v{x}, v{r}")
        for (x, r) in regs: k(f"v_mul_f32 v{x+8}, v{x}, v{x}")
        for (x, r) in regs: k(f"v_fma_f32 v{x+8}, v{x+8}, s57, v12")
        for (x, r) in regs: k(f"v_mul_f32 v{x+8}, v{x+8}, v{x}")
        for (x, r) in regs: k(f"v_exp_f32 v{x+8}, v{x+8}")
        for (x, r) in regs: k(f"v_add_f32 v{x+8}, 1.0, v{x+8}")
        for (x, r) in regs: k(f"v_rcp_f32 v{x+8}, v{x+8}")
        for (x, r) in regs: k(f"v_mul_f32 v{x}, v{x}, v{x+8}")
    ZST = 160
    nst0 = getattr(k, 'nst', 0)
    def dvariant(par):
        z2s = [0, 1] if par == 0 else [0]
        z1s = [2] if par == 0 else [1, 2]
        o1, o2 = par*4096, (1-par)*4096
        qv = list(vm.q)
        if Kern.STAMPS: k.nst = nst0; k.stnames = k.stnames[:nst0]
        mpass(z2s)
        send(z2s, o1)
        vm.wait('hs')
        finish_stats(ST, 512, T)
        k("s_waitcnt lgkmcnt(0)")
        k.stamp('D pass1')
        k("s_barrier")
        recv(z2s, o1)
        k("s_waitcnt lgkmcnt(0)")
        with Cap(k) as c1:
            gelu(z2s)
            for u in range(2):
                b = DACC + 4*u
                k(f"v_add_f32 v{T+2*u}, v{b}, v{b+1}")
                k(f"v_mul_f32 v{T+2*u+1}, v{b}, v{b}")
            for q in (2, 3):
                for u in range(2): k(f"v_add_f32 v{T+2*u}, v{T+2*u}, v{DACC+4*u+q}")
            for q in (1, 2, 3):
                for u in range(2): k(f"v_fmac_f32 v{T+2*u+1}, v{DACC+4*u+q}, v{DACC+4*u+q}")
            if par == 0:
                for q in range(4):
                    for u in range(2):
                        k(f"v_add_f32 v{T+2*u}, v{T+2*u}, v{DACC+16+4*u+q}")
                        k(f"v_fmac_f32 v{T+2*u+1}, v{DACC+16+4*u+q}, v{DACC+16+4*u+q}")
            for w_ in (16, 32):
                for q in range(4): k(f"v_mov_b32 v{T+4+q}, v{T+q}")
                for q in range(4): k(f"v_permlane{w_}_swap_b32 v{T+q}, v{T+4+q}")
                for q in range(4): k(f"v_add_f32 v{T+q}, v{T+q}, v{T+4+q}")
        with Cap(k) as c2:
            mpass(z1s)
        m = c2.lines
        cut = (len(m) if par == 0 else len(m) // 2) if OPT.get('dinter', True) else 0
        k.lines += interleave(m[:cut], c1.lines)
        k(f"ds_write_b64 v11, {vr(T,2)}")
        k(f"ds_write_b64 v11, {vr(T+2,2)} offset:128")
        k("s_waitcnt lgkmcnt(0)")
        k.stamp('D gelu2')
        k("s_barrier")
        publish(W_ZS, L_S2, False)
        k.lines += m[cut:]
        send(z1s, o2)
        vm(f"buffer_load_dwordx4 {vr(ZST,4)}, v2, {WS}, s75 offen sc1", 'zs')
        vm(f"buffer_load_dwordx4 {vr(ZST+4,4)}, v2, {WS}, s75 offen offset:1024 sc1", 'zs')
        k("s_waitcnt lgkmcnt(0)")
        k.stamp('D pass2')
        k("s_barrier")
        recv(z1s, o2)
        wsp_dma(4)
        k("s_waitcnt lgkmcnt(0)")
        gelu(z1s)
        for s in z1s:
            for q in range(4): k(f"v_cvt_pk_bf16_f32 v{DACC+16*s+8+q}, v{DACC+16*s+2*q}, v{DACC+16*s+2*q+1}")
        LPz, LXz = k.label("zp"), k.label("zpx")
        k(f"s_mov_b32 s48, {SPIN}")
        vm.wait('zs')
        k.stamp('D gelu1')
        k(f"{LPz}:")
        k(f"v_max_u32 v{T}, v{ZST}, v{ZST+2}")
        k(f"v_max3_u32 v{T}, v{T}, v{ZST+4}, v{ZST+6}")
        k(f"v_cmp_eq_u32 vcc, -1, v{T}")
        k(f"s_cbranch_vccz {LXz}")
        k("s_sub_u32 s48, s48, 1")
        k("s_cmp_eq_u32 s48, 0")
        k(f"s_cbranch_scc1 {LXz}")
        k(f"buffer_load_dwordx4 {vr(ZST,4)}, v2, {WS}, s75 offen sc1")
        k(f"buffer_load_dwordx4 {vr(ZST+4,4)}, v2, {WS}, s75 offen offset:1024 sc1")
        k("s_waitcnt vmcnt(0)")
        k(f"s_branch {LPz}")
        k(f"{LXz}:")
        k.stamp('zs ok')
        finish_stats(ZST, 688, T)
        for u in range(2): k(f"v_mul_f32 v{ZST+4*u+2}, v{ZST+4*u+2}, v{ZST+4*u+3}")
        for n, s in enumerate(z2s):
            for u in range(2):
                for q in range(4):
                    x = DACC + 16*s + 4*u + q
                    k(f"v_fma_f32 v{x}, v{x}, v{ZST+4*u+3}, -v{ZST+4*u+2}")
                for q in range(2):
                    k(f"v_cvt_pk_bf16_f32 v{DACC+16*s+8+2*u+q}, v{DACC+16*s+4*u+2*q}, v{DACC+16*s+4*u+2*q+1}")
                k(f"ds_write_b64 v{TW}, {vr(DACC+16*s+8+2*u,2)} offset:{n*1024 + u*512}")
        k("s_waitcnt lgkmcnt(0)")
        for n, s in enumerate(z2s):
            k(f"ds_read_b64_tr_b16 {vr(DACC+16*s,2)}, v{TR} offset:{n*1024}")
            k(f"ds_read_b64_tr_b16 {vr(DACC+16*s+2,2)}, v{TR} offset:{n*1024+128}")
        for n, s in enumerate(z2s):
            k(f"s_waitcnt lgkmcnt({2*(len(z2s)-1-n)})")
            k(f"buffer_store_dwordx4 {vr(DACC+16*s,4)}, v2, {WS}, s{33+s} offen sc1")
        vm.q = qv
    LD1, LDJ = k.label("d1"), k.label("dj")
    k(f"s_cmp_lg_u32 s{PAR}, 0")
    k(f"s_cbranch_scc1 {LD1}")
    dvariant(0)
    k(f"s_branch {LDJ}")
    k(f"{LD1}:")
    dvariant(1)
    k(f"{LDJ}:")
    vm.q = ['z2']
    def wout_setup(): sadd(k, 46, (S_J, '*90112'), (NB, '*45056'), (KP, 10), const=W_WOUT)
    for f in wload_list(WOUT, 22, wout_setup, 'wout'): f()
    srd(k, 60, A_BSP, 4096)
    srd(k, 16, A_OUT, 2048*1024)
    U0, INV2 = 53, 54
    sadd(k, U0, (FH, '*3'), (95, 0))
    k(f"s_mul_i32 s39, s{FH}, 3")
    k("s_add_u32 s39, s39, 2")
    k("s_cmp_ge_u32 s39, s96")
    k(f"s_cselect_b32 s{INV2}, {OOB}, 0")
    sadd(k, 33, (U0, 16), (KQ2, 14), const=W_Z2)
    k("s_add_u32 s34, s33, 65536")
    k("s_add_u32 s35, s34, 65536")
    k(f"s_add_u32 s35, s35, s{INV2}")
    k(f"s_lshl_b32 s39, s{KQ2}, 14")
    k("v_add_u32 v3, s39, v2")
    k("v_add_u32 v4, 0x10000, v3")
    sadd(k, 40, (S_J, 7), const=W_FLAG + F_Z)
    sadd(k, 41, (40, 0), (S_G, 2))
    vm.wait('z2')
    k.stamp('z2 acked')
    k("s_barrier")
    LW0, LP3, LX3 = k.label(), k.label("p3"), k.label("p3x")
    k(f"s_cmp_lg_u32 s{S_W}, 0")
    k(f"s_cbranch_scc1 {LW0}")
    k("s_mov_b64 exec, 1")
    k(f"buffer_store_dword v14, v15, {WS}, s41 offen sc1")
    k("s_mov_b64 exec, -1")
    k(f"{LW0}:")
    LZa, LZb = k.label(), k.label()
    for u in range(2): k(f"ds_write_b64 v{Z1A}, {vr(DACC+32+8+2*u,2)} offset:{u*512}")
    k(f"s_cmp_eq_u32 s{PAR}, 0")
    k(f"s_cbranch_scc1 {LZa}")
    for u in range(2): k(f"ds_write_b64 v{Z1B}, {vr(DACC+16+8+2*u,2)} offset:{u*512}")
    k(f"{LZa}:")
    k("v_lshlrev_b32 v13, 1, v10")
    sadd(k, 39, (S_G, 7), (KQ2, 5))
    k("s_waitcnt lgkmcnt(0)")
    vm(f"buffer_load_ushort v160, v13, s[60:63], s39 offen", 'bsp')
    EACC, ZB, DEPTH = 112, 48, 5
    WFR = [16, 20, 24, 28, 32, 36, 40, 108]
    for i in range(48): k(f"v_mov_b32 v{EACC+i}, 0")
    k(f"s_cmp_lg_u32 s{S_W}, 0")
    k(f"s_cbranch_scc1 {LZb}")
    k("v_and_b32 v13, 31, v1")
    k("v_lshlrev_b32 v13, 2, v13")
    k(f"s_mov_b32 s48, {SPIN}")
    k(f"{LP3}:")
    k(f"buffer_load_dword v161, v13, {WS}, s40 offen sc1")
    k("s_sub_u32 s48, s48, 1")
    k("s_cmp_eq_u32 s48, 0")
    k(f"s_cbranch_scc1 {LX3}")
    k("s_waitcnt vmcnt(0)")
    k("v_cmp_eq_u32 vcc, 0, v161")
    k(f"s_cbranch_vccnz {LP3}")
    k(f"{LX3}:")
    k(f"{LZb}:")
    k("s_barrier")
    k.stamp('S3 done')
    def zload(i):
        if i % 4 == 0 and i > 0:
            for q in range(3): k(f"s_add_u32 s{33+q}, s{33+q}, 4096")
        for s in range(3):
            vm(f"buffer_load_dwordx4 {vr(ZB+12*(i%DEPTH)+4*s,4)}, v2, {WS}, s{33+s} offen offset:{(i%4)*1024} sc1", f'z{i}')
    def wread(i):
        a = 4 if (i % 8) < 4 else 3
        for tu in range(4):
            k(f"ds_read_b128 {vr(WFR[4*(i%2)+tu],4)}, v{a} offset:{(i%4)*4096 + tu*1024}")
    for i in range(DEPTH): zload(i)
    wread(0)
    for i in range(16):
        pre_ok = (i + 1 < 16) and ((i + 1) % 4 != 0 or i + 1 == 4)
        if pre_ok: wread(i+1)
        vm.wait(f'z{i}')
        for tu in range(4):
            k(f"s_waitcnt lgkmcnt({(4 if pre_ok else 0) + 3 - tu})")
            for s in range(3):
                a = EACC + 12*tu + 4*s
                k(f"{MF16} {vr(a,4)}, {vr(ZB+12*(i%DEPTH)+4*s,4)}, {vr(WFR[4*(i%2)+tu],4)}, {vr(a,4)}")
        if i + DEPTH < 16: zload(i + DEPTH)
        if i in (3, 7, 11):
            if i > 3: vm.wait(f'sp{i+1}')
            k("s_barrier")
            if i > 3: wread(i+1)
            if i < 11: wsp_dma(i + 5)
    k.stamp('E main')
    L_RED = 65536
    sadd(k, 39, (FH, '*36864'), const=L_RED)
    k("v_add_u32 v5, s39, v2")
    KEEP = 48
    LRJ = k.label("rj")
    labs = [k.label("rk") for _ in range(4)]
    for q in range(1, 4):
        k(f"s_cmp_eq_u32 s{KQ2}, {q}")
        k(f"s_cbranch_scc1 {labs[q]}")
    for q in range(4):
        k(f"{labs[q]}:")
        for d in range(4):
            if d == q: continue
            off = d*9216 + (q - (1 if q > d else 0))*3072
            for s in range(3): k(f"ds_write_b128 v5, {vr(EACC+12*d+4*s,4)} offset:{off + s*1024}")
        for r in range(12): k(f"v_mov_b32 v{KEEP+r}, v{EACC+12*q+r}")
        if q < 3: k(f"s_branch {LRJ}")
    k(f"{LRJ}:")
    sadd(k, 39, (FH, '*36864'), (KQ2, '*9216'), const=L_RED)
    k("v_add_u32 v5, s39, v2")
    k("v_lshlrev_b32 v13, 3, v1")
    sadd(k, 39, (FH, '*6144'), (KQ2, 9), const=L_Z1)
    k("v_add_u32 v13, s39, v13")
    for s in range(3): k(f"ds_read_b64 {vr(162+2*s,2)}, v13 offset:{s*2048}")
    k("v_lshlrev_b32 v12, 9, v9")
    k("v_lshl_add_u32 v12, v10, 4, v12")
    k("v_bfe_u32 v13, v1, 4, 1")
    k("v_lshl_add_u32 v12, v13, 3, v12")
    k(f"s_lshr_b32 s39, s{KQ2}, 1")
    k(f"s_and_b32 s40, s{KQ2}, 1")
    sadd(k, 33, (S_G, '*90112'), (39, '*45056'), (U0, 10), (40, 8), const=W_Y)
    k(f"s_add_u32 s34, s33, s{INV2}")
    k("v_lshlrev_b32 v160, 16, v160")
    for r in range(12): k(f"v_add_f32 v{KEEP+r}, v{KEEP+r}, v160")
    k("s_waitcnt lgkmcnt(0)")
    k("s_barrier")
    RB = 64
    for q in range(9): k(f"ds_read_b128 {vr(RB+4*q,4)}, v5 offset:{q*1024}")
    for s in range(3):
        for h in range(2):
            k(f"v_lshlrev_b32 v{16+4*s+2*h}, 16, v{162+2*s+h}")
            k(f"v_and_b32 v{16+4*s+2*h+1}, 0xffff0000, v{162+2*s+h}")
    k("s_waitcnt lgkmcnt(6)")
    for r in range(12): k(f"v_add_f32 v{KEEP+r}, v{KEEP+r}, v{RB+r}")
    k("s_waitcnt lgkmcnt(0)")
    for r in range(12): k(f"v_add_f32 v{RB+12+r}, v{RB+12+r}, v{RB+24+r}")
    for r in range(12): k(f"v_add_f32 v{KEEP+r}, v{KEEP+r}, v{RB+12+r}")
    for r in range(12): k(f"v_mul_f32 v{KEEP+r}, v{KEEP+r}, v{16+r}")
    for r in range(6): k(f"v_cvt_pk_bf16_f32 v{162+r}, v{KEEP+2*r}, v{KEEP+2*r+1}")
    for s in range(3):
        store2(k, vm, f"buffer_store_dwordx2 {vr(162+2*s,2)}, v12, {WS}, s{34 if s == 2 else 33} offen offset:{s*1024}", 'y')
    pb = sum(b << (8*i) for i, b in enumerate(SLICE_BASE[:4])); pb2 = sum(b << (8*i) for i, b in enumerate(SLICE_BASE[4:]))
    k(f"s_mov_b32 s39, {hex(pb)}"); k(f"s_mov_b32 s40, {hex(pb2)}")
    k(f"s_cmp_lt_u32 s{S_W}, 4")
    k("s_cselect_b32 s39, s39, s40")
    k(f"s_and_b32 s40, s{S_W}, 3")
    k("s_lshl_b32 s40, s40, 3")
    k("s_lshr_b32 s39, s39, s40")
    k("s_and_b32 s39, s39, 0xff")
    k("s_lshl_b32 s35, s39, 10")
    sadd(k, 33, (S_G, '*90112'), (35, 0), const=W_Y)
    mask6 = sum(1 << i for i, c in enumerate(SLICE_CNT) if c == 6)
    k(f"s_lshr_b32 s34, {mask6}, s{S_W}")
    k("s_and_b32 s34, s34, 1")
    sadd(k, 37, (TB, '*45056'), (KP, 10))
    k("v_add_u32 v3, s37, v2")
    sadd(k, 39, (S_W, 11), const=L_C)
    k("v_add_u32 v4, s39, v2")
    k("v_xor_b32 v5, 0x2000, v4")
    for i in range(16): k(f"v_mov_b32 v{ACC+i}, 0")
    group_sync(k, vm, F_Y, 'y')
    for tb in range(2):
        k(f"s_add_u32 m0, s35, {tb*45056}")
        k(f"s_add_u32 s36, s33, {tb*45056}")
        for q in range(4): k(f"buffer_load_dwordx4 v2, {WS}, s36 offen offset:{q*1024} sc1 lds")
        k(f"s_add_u32 m0, s35, {tb*45056 + 4096}")
        k(f"s_add_u32 s36, s33, {tb*45056 + 4096}")
        k(f"buffer_load_dwordx4 v2, {WS}, s36 offen sc1 lds")
    L6 = k.label()
    k("s_cmp_eq_u32 s34, 0")
    k(f"s_cbranch_scc1 {L6}")
    for tb in range(2):
        k(f"s_add_u32 m0, s35, {tb*45056 + 5120}")
        k(f"s_add_u32 s36, s33, {tb*45056 + 5120}")
        k(f"buffer_load_dwordx4 v2, {WS}, s36 offen sc1 lds")
    k(f"{L6}:")
    vm.all()
    k.stamp('y landed')
    k("s_barrier")
    gemm32(22, WOUT, True)
    k(f"buffer_store_dwordx4 {vr(RES,4)}, v7, s[16:19], s52 offen")
    if Kern.STAMPS:
        k.stamp('out issued'); k("s_waitcnt vmcnt(0)"); k.stamp_flush(0, W_STAMP)
    k(f"{END}:")
    k("s_endpgm")
    k(f"{SLOW}:")
    vm.q = list(qsave)
    dparams()
    for f in wsp_load_list(): f()
    duty1(); duty2(); duty3_issue(); duty3()
    for f in pre(): f()
    duty_mode()
    from gen1 import attn_slow
    attn_slow(k, QA, OA, S0, S1, P, KF, VF, KH)
    attn_slow(k, QB, OB, S0, S1, P, KF, VF, KH)
    k("s_waitcnt vmcnt(0)")
    k(f"s_branch {JOIN}")
    return k

def build(path, stamps=False, **opt):
    Kern.STAMPS = stamps
    Kern.STAMPOP = 's_memtime' if opt.get('cyc') else 's_memrealtime'
    OPT.update(dict(l2local=False, force_slow=False)); OPT.update(opt)
    k = gen()
    txt = HEADER + "; @launch grid=(256,1,1) block=(512,1,1) lds=163840\n"
    txt += '.amdgcn_target "amdgcn-amd-amdhsa--gfx950"\n.text\n' + k.text() + k.desc()
    open(path, 'w').write(txt)
    if stamps:
        import json; json.dump(k.stnames, open(path + '.json', 'w'))
    return k

if __name__ == '__main__':
    k = build('v2.s'); print('lines', len(k.lines), 'nops', k.nops)
    build('v2_st.s', stamps=True)
    build('v2_l2.s', l2local=True)
    build('v2_l2_st.s', stamps=True, l2local=True)
    build('v2_slow.s', force_slow=True)
```

```python
import sys
from asmlib import *
from gen1 import (NAME, A_X, A_WQ, A_WK, A_WV, A_WO, A_WIN, A_WSP, A_BSP, A_WOUT, A_OUT, A_DBG, A_WS,
                  W_K, W_V, W_O, W_H, W_HS, W_Z2, W_ZS, W_Y, W_WO, W_WIN, W_WOUT, W_WSP, W_FLAG, W_END, W_STAMP,
                  SLICE_BASE, SLICE_CNT, QSCALE, f2u, MF32, MF16, srd, swap_add, row_reduce, swap23, tr_lane_parts,
                  stats_mu_r, C0, C1, OOB, HEADER, VMASK, attn_slow)
from gen2 import VM, interleave, Cap, sadd

S_W, S_G, S_J, SRD_WS, ONES = 4, 5, 6, 8, 28
NB, TB, KP, KQ = 29, 30, 31, 32
WS = sr(SRD_WS, 4)
SDBG, MODE, NON = 64, 68, 78
F_O, F_H, F_Y, F_X = 0, 1024, 2048, 3072
F_Z, F_W, F_S, F_W2 = 0x20000, 0x20400, 0x21000, 0x20800
SPIN = 100000
OPT = {}
PB = sum(b << (8*i) for i, b in enumerate(SLICE_BASE[:4])); PB2 = sum(b << (8*i) for i, b in enumerate(SLICE_BASE[4:]))
MASK6 = sum(1 << i for i, c in enumerate(SLICE_CNT) if c == 6)

def store2(k, vm, texts, tag=None):
    if isinstance(texts, str): texts = [texts]
    if not OPT['l2local']:
        for t in texts: vm(t + " sc1", tag)
        return
    la, lb = k.label(), k.label()
    k(f"s_cmp_eq_u32 s{MODE}, 0")
    k(f"s_cbranch_scc1 {la}")
    for t in texts: k(t)
    k(f"s_branch {lb}")
    k(f"{la}:")
    for t in texts: k(t + " sc1")
    k(f"{lb}:")
    vm.q += [tag] * len(texts)

def group_sync(k, vm, foff, store_tag, between=None):
    vm.wait(store_tag)
    k.stamp(store_tag + ' acked')
    k("s_barrier")
    L = k.label()
    k(f"s_cmp_lg_u32 s{S_W}, 0")
    k(f"s_cbranch_scc1 {L}")
    k("s_mov_b64 exec, 1")
    q = list(vm.q)
    store2(k, vm, f"buffer_store_dword v14, v15, {WS}, s50 offen offset:{foff}")
    vm.q = q
    k("s_mov_b64 exec, -1")
    k(f"{L}:")
    if between: between()
    k(f"s_mov_b32 s48, {SPIN}")
    k("s_mov_b64 exec, 1")
    LP, LX = k.label("poll"), k.label("pollx")
    k(f"{LP}:")
    k(f"buffer_load_dword v13, v15, {WS}, s51 offen offset:{foff} sc1")
    k("s_sub_u32 s48, s48, 1")
    k("s_cmp_eq_u32 s48, 0")
    k(f"s_cbranch_scc1 {LX}")
    k("s_waitcnt vmcnt(0)")
    k("v_cmp_eq_u32 vcc, 0, v13")
    k(f"s_cbranch_vccnz {LP}")
    k(f"{LX}:")
    k("s_mov_b64 exec, -1")
    vm.q = []
    k.stamp('sync ok')

def slice_of(k, idx, base_dst, six_dst):
    k(f"s_mov_b32 s39, {hex(PB)}"); k(f"s_mov_b32 s40, {hex(PB2)}")
    k(f"s_cmp_lt_u32 s{idx}, 4")
    k("s_cselect_b32 s39, s39, s40")
    k(f"s_and_b32 s40, s{idx}, 3")
    k("s_lshl_b32 s40, s40, 3")
    k("s_lshr_b32 s39, s39, s40")
    k(f"s_and_b32 s{base_dst}, s39, 0xff")
    k(f"s_lshr_b32 s{six_dst}, {MASK6}, s{idx}")
    k(f"s_and_b32 s{six_dst}, s{six_dst}, 1")

def pk(op, d, a, b, c=None, mods=''):
    ops = [vr(d, 2), a if isinstance(a, str) else vr(a, 2), b if isinstance(b, str) else vr(b, 2)]
    if c is not None: ops.append(c if isinstance(c, str) else vr(c, 2))
    return f"v_pk_{op}_f32 " + ", ".join(ops) + (" " + mods if mods else "")

def gen():
    k = Kern(NAME + "_kernel", vgprs=256, sgprs=100)
    vm = VM(k)
    END = "L_end"
    k("s_cmp_ge_u32 s2, 256")
    k(f"s_cbranch_scc1 {END}")
    if Kern.STAMPS: k(f"{Kern.STAMPOP} s[72:73]")
    SX, SWQ, SWK = 12, 16, 20
    k("s_lshr_b32 s7, s2, 3")
    k(f"s_and_b32 s{S_J}, s7, 7")
    k(f"s_lshr_b32 s33, s{S_J}, 2")
    k("s_lshl_b32 s33, s33, 3")
    k(f"s_add_u32 s33, s33, {A_WK}")
    k(f"s_load_dwordx2 {sr(SX,2)}, s[0:1], {A_X}")
    k(f"s_load_dwordx2 {sr(SWK,2)}, s[0:1], s33")
    k(f"s_load_dwordx2 {sr(SRD_WS,2)}, s[0:1], {A_WS}")
    k(f"s_load_dwordx2 {sr(SDBG,2)}, s[0:1], {A_DBG}")
    k(f"s_load_dwordx2 {sr(SWQ,2)}, s[0:1], {A_WQ}")
    k(f"s_memrealtime {sr(NON,2)}")
    for r, sz in ((SX, 2048*1024), (SWK, 16384), (SWQ, 512*1024), (SRD_WS, W_END), (SDBG, 256)):
        k(f"s_mov_b32 s{r+2}, {sz}"); k(f"s_mov_b32 s{r+3}, 0x20000")
    k("v_lshrrev_b32 v1, 6, v0")
    k("v_and_b32 v2, 63, v0")
    k(f"v_readfirstlane_b32 s{S_W}, v1")
    k("v_mov_b32 v1, v2")
    k("v_lshlrev_b32 v2, 4, v1")
    if Kern.STAMPS:
        k("s_waitcnt lgkmcnt(0)"); k("v_mov_b32 v0, -1"); k("v_writelane_b32 v0, s72, 0"); k.nst = 1; k.stnames = ['start']
    k("s_and_b32 s3, s2, 7")
    k("s_lshr_b32 s7, s7, 3")
    k("s_lshl_b32 s3, s3, 2")
    k(f"s_add_u32 s{S_G}, s3, s7")
    TU, KIND = 55, 56
    k(f"s_and_b32 s{TU}, s{S_J}, 3")
    k(f"s_lshr_b32 s{KIND}, s{S_J}, 2")
    L_X, L_WQ, L_W, L_SCR = 0, 65536, 131072, 147456
    L_ST, L_CSQ, L_KS, L_KM = L_SCR, L_SCR + 4096, L_SCR + 5120, L_SCR + 6144
    k("v_lshrrev_b32 v3, 3, v1")
    k("v_and_b32 v4, 7, v1")
    k("v_xor_b32 v5, v3, v4")
    k("v_lshlrev_b32 v5, 4, v5")
    k("v_lshl_add_u32 v5, v3, 10, v5")
    k("v_xor_b32 v6, 16, v5")
    sadd(k, 33, (S_G, 16), (S_W, 7))
    k("s_lshl_b32 s86, s7, 1")
    k(f"s_sub_u32 s34, s{S_W}, s86")
    k("s_and_b32 s34, s34, 7")
    k("s_lshl_b32 s34, s34, 13")
    k(f"s_lshl_b32 s35, s{TU}, 1")
    k(f"s_lshl_b32 s37, s{S_W}, 11")
    def xdma(i):
        k(f"s_add_u32 s36, s35, {i}")
        k("s_and_b32 s36, s36, 7")
        k("s_lshl_b32 s38, s36, 10")
        k("s_add_u32 m0, s38, s34")
        k("s_lshl_b32 s36, s36, 13")
        k("s_add_u32 s36, s36, s33")
        vm(f"buffer_load_dwordx4 v{5 + i%2}, {sr(SX,4)}, s36 offen lds", 'xc' if i < 2 else 'x')
    k("v_bfe_u32 v14, v3, 1, 1")
    k("v_lshlrev_b32 v14, 2, v14")
    k("v_xor_b32 v14, v14, v4")
    k("v_lshlrev_b32 v14, 4, v14")
    k("v_lshl_add_u32 v14, v3, 10, v14")
    k(f"s_lshl_b32 s36, s{S_J}, 7")
    k("v_add_u32 v14, s36, v14")
    k(f"s_lshl_b32 s57, s{S_W}, 10")
    k(f"s_lshl_b32 s87, s{S_W}, 13")
    def wqdma(i):
        k(f"s_add_u32 s38, s86, {i}")
        k("s_and_b32 s38, s38, 7")
        k("s_lshl_b32 s38, s38, 16")
        k(f"s_add_u32 m0, s57, {L_WQ + i*8192}")
        k("s_add_u32 s38, s38, s87")
        vm(f"buffer_load_dwordx4 v14, {sr(SWQ,4)}, s38 offen lds", 'wqa' if i < 4 else 'wqb')
    k("s_waitcnt lgkmcnt(0)")
    xdma(0); xdma(1)
    k(f"s_add_u32 m0, s37, {L_W}")
    for i in range(2): vm(f"buffer_load_dwordx4 v2, {sr(SWK,4)}, s37 offen offset:{i*1024} lds", 'xc')
    sadd(k, 50, (S_G, 12), (S_J, 7), const=W_FLAG)
    sadd(k, 51, (S_G, 12), (S_W, 7), const=W_FLAG)
    k("v_and_b32 v10, 15, v1")
    k("v_mov_b32 v15, 0")
    LZ, LN = k.label(), k.label()
    k(f"s_cmp_lg_u32 s{S_W}, 0")
    k(f"s_cbranch_scc1 {LZ}")
    k("s_cmp_lg_u32 s2, 0")
    k(f"s_cbranch_scc1 {LN}")
    k(f"s_or_b32 s{NON}, s{NON}, 1")
    k(f"v_mov_b32 v16, s{NON}"); k(f"v_mov_b32 v17, s{NON+1}")
    k("s_mov_b64 exec, 1")
    k(f"buffer_store_dwordx2 v[16:17], v15, {sr(SDBG,4)}, 0 offen sc1")
    k("s_mov_b64 exec, -1")
    k(f"{LN}:")
    for q in range(4): k(f"v_mov_b32 v{16+q}, 0")
    k("v_lshlrev_b32 v20, 10, v1")
    k("v_add_u32 v20, s50, v20")
    sadd(k, 39, (S_G, 12), (S_J, 2), const=W_FLAG + F_X); k("v_writelane_b32 v20, s39, 3")
    sadd(k, 39, (S_J, 7), (S_G, 2), const=W_FLAG + F_Z); k("v_writelane_b32 v20, s39, 4")
    sadd(k, 39, (2, 2), const=W_FLAG + F_W); k("v_writelane_b32 v20, s39, 5")
    sadd(k, 39, (2, 2), const=W_FLAG + F_W2); k("v_writelane_b32 v20, s39, 6")
    k("s_mov_b64 exec, 127")
    k(f"buffer_store_dword v16, v20, {WS}, 0 offen sc1")
    k("s_mov_b64 exec, -1")
    def pub_addr(vdst, sdst):
        k(f"v_lshrrev_b32 v{vdst}, 4, v1")
        k(f"v_lshlrev_b32 v{vdst}, 10, v{vdst}")
        k(f"v_lshl_add_u32 v{vdst}, v10, 4, v{vdst}")
        k(f"s_lshr_b32 s40, s{S_J}, 1")
        k(f"s_and_b32 s41, s{S_J}, 1")
        sadd(k, sdst, (S_G, 12), (40, 8), (41, 3))
    pub_addr(20, 47)
    k(f"s_add_u32 s47, s47, {W_ZS}")
    k("v_mov_b32 v18, -1"); k("v_mov_b32 v19, -1")
    k(f"buffer_store_dwordx2 v[18:19], v20, {WS}, s47 offen sc1")
    k(f"s_sub_u32 s47, s47, {W_ZS - W_HS}")
    k(f"buffer_store_dwordx2 v[18:19], v20, {WS}, s47 offen sc1")
    k(f"{LZ}:")
    k("s_barrier")
    wqdma(0); wqdma(1)
    k(f"s_mov_b32 s{ONES}, 0x3f803f80")
    k(f"s_and_b32 s{NB}, s{S_W}, 1")
    k(f"s_bfe_u32 s{TB}, s{S_W}, 0x10001")
    k(f"s_lshr_b32 s{KP}, s{S_W}, 2")
    k(f"s_lshr_b32 s{KQ}, s{S_W}, 1")
    RES = 44
    k("v_and_b32 v8, 31, v1")
    k("v_lshlrev_b32 v7, 10, v8")
    k("v_lshrrev_b32 v9, 5, v1")
    k("v_lshl_add_u32 v7, v9, 4, v7")
    sadd(k, 52, (S_G, 16), (TB, 15), (S_J, 7), (NB, 6), (KP, 5))
    RP, RV, WV = 244, 252, 253
    k("s_lshl_b32 s42, s2, 3")
    k(f"s_add_u32 s42, s42, s{S_W}")
    RT, RDST, SRP, SRS, RO = 53, 54, 60, 24, 74
    L1, L2, L3, L5 = [k.label() for _ in range(4)]
    k(f"s_mov_b32 s{RO}, {OOB}"); k(f"s_mov_b32 s{RO+1}, {OOB}")
    k(f"s_mov_b32 s{RT}, 0")
    k("v_lshrrev_b32 v16, 2, v1")
    k("v_and_b32 v17, 3, v1")
    k("v_lshlrev_b32 v17, 4, v17")
    k(f"v_lshl_add_u32 v{RV}, v16, 10, v17")
    k("s_cmp_lt_u32 s2, 86")
    k(f"s_cbranch_scc1 {L1}")
    k("s_sub_u32 s44, s42, 688")
    k("s_cmp_lt_u32 s44, 256")
    k(f"s_cbranch_scc1 {L2}")
    srd(k, SRP, A_WOUT, 688*1024)
    k("s_sub_u32 s44, s44, 256")
    k("s_cmp_lt_u32 s44, 352")
    k(f"s_cbranch_scc0 {L5}")
    k(f"s_mul_i32 s45, s44, {(65536 + 21)//22}")
    k("s_lshr_b32 s45, s45, 16")
    k("s_mul_i32 s46, s45, 22")
    k("s_sub_u32 s46, s44, s46")
    sadd(k, RDST, (45, '*45056'), (46, 11), const=W_WOUT)
    k(f"s_branch {L3}")
    k(f"{L2}:")
    srd(k, SRP, A_WO, 512*1024)
    k("s_lshr_b32 s45, s44, 4")
    k("s_and_b32 s46, s44, 15")
    sadd(k, RDST, (44, 11), const=W_WO)
    k(f"{L3}:")
    k(f"s_mov_b32 s{RT}, 1")
    sadd(k, RO, (46, 15), (45, 6))
    k(f"s_add_u32 s{RO+1}, s{RO}, 16384")
    k(f"s_branch {L5}")
    k(f"{L1}:")
    srd(k, SRP, A_WIN, 512*2752)
    k(f"s_mov_b32 s{RT}, 2")
    k("s_mov_b32 s47, 2752")
    k("v_lshrrev_b32 v16, 1, v1")
    k(f"v_mul_lo_u32 v{RV}, v16, s47")
    k("v_and_b32 v17, 1, v1")
    k(f"v_lshl_add_u32 v{RV}, v17, 4, v{RV}")
    sadd(k, RO, (S_W, f'*{64*2752}'), (2, 5))
    k(f"s_add_u32 s{RO+1}, s{RO}, {32*2752}")
    sadd(k, RDST, (2, 14), (S_W, 11), const=W_WIN)
    k(f"{L5}:")
    srd(k, SRS, A_WSP, 2048*4096)
    k(f"v_lshlrev_b32 v{WV}, 12, v10")
    k("v_lshrrev_b32 v16, 4, v1")
    k(f"v_lshl_add_u32 v{WV}, v16, 4, v{WV}")
    k("s_lshr_b32 s39, s42, 4")
    k("s_and_b32 s40, s42, 15")
    sadd(k, 43, (39, 16), (40, 8))
    SPS = 224
    def rest2():
        for i in range(2, 8): wqdma(i)
    def late_loads():
        vm(f"buffer_load_dwordx4 {vr(RES,4)}, v7, {sr(SX,4)}, s52 offen", 'res')
        for q in range(2): vm(f"buffer_load_dwordx4 {vr(RP+4*q,4)}, v{RV}, {sr(SRP,4)}, s{RO+q} offen", 'rp')
    k("s_waitcnt lgkmcnt(0)")
    G_, JJ, SC = 24, 25, 26
    tr_lane_parts(k, G_, JJ, SC, 17)
    k("v_and_b32 v17, 7, v1")
    k("v_bfe_u32 v18, v1, 3, 1")
    k(f"v_xor_b32 v19, v{G_}, v17")
    k("v_xor_b32 v19, v19, v18")
    k("v_lshlrev_b32 v19, 4, v19")
    k("v_lshl_add_u32 v19, v17, 7, v19")
    k("v_lshl_add_u32 v19, v18, 10, v19")
    sadd(k, 39, (34, 0), (TU, 11))
    k("v_add_u32 v19, s39, v19")
    k("v_xor_b32 v20, 64, v19")
    k(f"v_lshl_add_u32 v21, v{G_}, 3, v{JJ}")
    k("v_lshlrev_b32 v21, 5, v21")
    k("v_and_b32 v22, 3, v1")
    k("v_lshl_add_u32 v21, v22, 3, v21")
    k(f"s_add_u32 s39, s37, {L_W}")
    k("v_add_u32 v21, s39, v21")
    XF, WF, KA_, CSA, SMA, SS = 80, 112, 64, 68, 72, 76
    ON4 = 36
    for i in range(13): k(f"v_mov_b32 v{KA_+i}, 0")
    for i in range(4): k(f"v_mov_b32 v{ON4+i}, s{ONES}")
    k("v_add_u32 v22, s39, v2")
    k("v_lshlrev_b32 v23, 3, v10")
    k(f"v_add_u32 v23, {L_KS}, v23")
    k(f"s_lshl_b32 s39, s{S_W}, 7")
    k("v_add_u32 v18, s39, v23")
    LCa, LCb = k.label(), k.label()
    k(f"s_cmp_eq_u32 s{S_W}, 0")
    k(f"s_cbranch_scc1 {LCa}")
    vm.wait('xc')
    k(f"s_branch {LCb}")
    k(f"{LCa}:")
    k("s_waitcnt vmcnt(5)")
    k(f"buffer_load_dwordx2 v[28:29], v15, {sr(SDBG,4)}, 0 offen sc1")
    k(f"{LCb}:")
    k.stamp('crit own')
    k(f"ds_read_b128 {vr(XF,4)}, v19")
    k(f"ds_read_b64_tr_b16 {vr(WF,2)}, v21")
    k(f"ds_read_b64_tr_b16 {vr(WF+2,2)}, v21 offset:128")
    k(f"ds_read_b128 {vr(XF+4,4)}, v20")
    k(f"ds_read_b64_tr_b16 {vr(WF+4,2)}, v21 offset:1024")
    k(f"ds_read_b64_tr_b16 {vr(WF+6,2)}, v21 offset:1152")
    for s_ in range(2):
        k(f"s_waitcnt lgkmcnt({3-3*s_})")
        k(f"{MF16} {vr(KA_,4)}, {vr(WF+4*s_,4)}, {vr(XF+4*s_,4)}, {vr(KA_,4)}")
        k(f"{MF16} {vr(CSA,4)}, {vr(WF+4*s_,4)}, {vr(ON4,4)}, {vr(CSA,4)}")
        k(f"{MF16} {vr(SMA,4)}, {vr(ON4,4)}, {vr(XF+4*s_,4)}, {vr(SMA,4)}")
        for q in range(4): k(f"v_dot2_f32_bf16 v{SS}, v{XF+4*s_+q}, v{XF+4*s_+q}, v{SS}")
    swap_add(k, SS, 17, 16); swap_add(k, SS, 17, 32)
    k(f"ds_write_b128 v22, {vr(KA_,4)}")
    k(f"ds_write_b128 v22, {vr(CSA,4)} offset:1024")
    k(f"v_mov_b32 v{SMA+1}, v{SS}")
    k(f"ds_write_b64 v18, {vr(SMA,2)}")
    k("s_waitcnt lgkmcnt(0)")
    k.stamp('kv mfma')
    k("s_barrier")
    for i in range(2, 8): xdma(i)
    LNOKV, LVW, LKVD = k.label(), k.label(), k.label()
    k(f"s_cmp_lg_u32 s{S_W}, 0")
    k(f"s_cbranch_scc1 {LNOKV}")
    k("s_setprio 3")
    PA, PC, PS = 80, 112, 144
    for w_ in range(1, 8): k(f"ds_read_b64 {vr(PS+2*w_,2)}, v23 offset:{w_*128}")
    for w_ in range(1, 8): k(f"ds_read_b128 {vr(PC+4*w_,4)}, v22 offset:{w_*2048+1024}")
    swap23(k, 27, 1, 20)
    k(f"s_lshr_b32 s39, s{TU}, 1")
    sadd(k, 40, (S_G, 11), (39, 10))
    k(f"s_and_b32 s39, s{TU}, 1")
    k(f"v_and_b32 v20, 1, v{G_}")
    k("v_lshlrev_b32 v20, 3, v20")
    k("v_and_b32 v27, 15, v27")
    k("v_lshl_add_u32 v20, v27, 4, v20")
    k("s_waitcnt lgkmcnt(7)")
    for w_ in range(1, 8): k(f"ds_read_b128 {vr(PA+4*w_,4)}, v22 offset:{w_*2048}")
    for (a_, b_) in ((1, 2), (3, 4), (5, 6), (1, 3), (5, 7), (1, 5)): k(pk('add', PS+2*a_, PS+2*a_, PS+2*b_))
    k(pk('add', SMA, SMA, PS+2))
    stats_mu_r(k, SMA, SMA+1, 34, 35, 512, 21)
    k("s_waitcnt lgkmcnt(7)")
    def tree(P_, dst):
        for (a_, b_) in ((1, 2), (3, 4), (5, 6), (1, 3), (5, 7), (1, 5)):
            for h in (0, 2): k(pk('add', P_+4*a_+h, P_+4*a_+h, P_+4*b_+h))
        for h in (0, 2): k(pk('add', dst+h, dst+h, P_+4+h))
    tree(PC, CSA)
    for h in (0, 2): k(pk('fma', KA_+h, 34, CSA+h, KA_+h, "op_sel_hi:[0,1,1] neg_lo:[1,0,0] neg_hi:[1,0,0]"))
    k("s_waitcnt lgkmcnt(0)")
    tree(PA, KA_)
    for h in (0, 2): k(pk('mul', KA_+h, KA_+h, 34, None, "op_sel:[0,1] op_sel_hi:[1,1]"))
    for i in range(2): k(f"v_cvt_pk_bf16_f32 v{XF+i}, v{KA_+2*i}, v{KA_+2*i+1}")
    k("v_mov_b32 v30, 0")
    k(f"s_cmp_lg_u32 s{KIND}, 0")
    k(f"s_cbranch_scc1 {LVW}")
    k("v_lshl_add_u32 v20, v9, 9, v20")
    k("s_lshl_b32 s39, s39, 8")
    k("s_add_u32 s40, s40, s39")
    k(f"buffer_store_dwordx2 {vr(XF,2)}, v20, {WS}, s40 offen sc1")
    for q in range(2): k(f"v_dot2_f32_bf16 v30, v{XF+q}, v{XF+q}, v30")
    swap_add(k, 30, 21, 16); swap_add(k, 30, 21, 32)
    row_reduce(k, 30, "v_max_f32")
    k(f"s_branch {LKVD}")
    k(f"{LVW}:")
    k("v_lshlrev_b32 v17, 5, v10")
    k(f"v_lshl_add_u32 v17, v{G_}, 3, v17")
    k(f"v_add_u32 v17, {L_W}, v17")
    k(f"ds_write_b64 v17, {vr(XF,2)}")
    k("v_lshlrev_b32 v17, 3, v1")
    k(f"v_add_u32 v17, {L_W}, v17")
    k("v_lshl_add_u32 v20, v9, 8, v20")
    k("s_lshl_b32 s39, s39, 9")
    k("s_add_u32 s40, s40, s39")
    k(f"s_add_u32 s40, s40, {W_V}")
    k("s_waitcnt lgkmcnt(0)")
    k(f"ds_read_b64_tr_b16 {vr(XF+2,2)}, v17")
    k("s_waitcnt lgkmcnt(0)")
    k(f"buffer_store_dwordx2 {vr(XF+2,2)}, v20, {WS}, s40 offen sc1")
    k(f"{LKVD}:")
    k(f"{LNOKV}:")
    rest2()
    LF0 = k.label()
    k(f"s_cmp_lg_u32 s{S_W}, 0")
    k(f"s_cbranch_scc1 {LF0}")
    k("s_waitcnt vmcnt(6)")
    LNa, LNb = k.label("np"), k.label("npx")
    k(f"s_mov_b32 s48, {SPIN}")
    k(f"{LNa}:")
    k("v_cmp_ne_u32 vcc, 0, v28")
    k(f"s_cbranch_vccnz {LNb}")
    k("s_sub_u32 s48, s48, 1")
    k("s_cmp_eq_u32 s48, 0")
    k(f"s_cbranch_scc1 {LNb}")
    k(f"buffer_load_dwordx2 v[28:29], v15, {sr(SDBG,4)}, 0 offen sc1")
    k("s_waitcnt vmcnt(0)")
    k(f"s_branch {LNa}")
    k(f"{LNb}:")
    sadd(k, 41, (S_G, 7), (S_J, 4), const=W_FLAG + F_S)
    k("v_mov_b32 v31, 0")
    k("s_mov_b64 exec, 1")
    k(f"buffer_store_dwordx4 v[28:31], v15, {WS}, s41 offen sc1")
    k("s_mov_b64 exec, -1")
    k(f"v_readfirstlane_b32 s{NON}, v28"); k(f"v_readfirstlane_b32 s{NON+1}, v29")
    k("s_setprio 0")
    k(f"{LF0}:")
    k.stamp('kv pub')
    k("v_lshlrev_b32 v16, 7, v1")
    k("v_bfe_u32 v17, v1, 1, 3")
    k("v_lshl_add_u32 v16, v17, 4, v16")
    k("v_add_u32 v16, s34, v16")
    for c in range(1, 8): k(f"v_xor_b32 v{16+c}, {c*16}, v16")
    for r in range(4): k(f"v_mov_b32 v{64+r}, 0")
    vm.wait('x')
    k.stamp('x own')
    for c in range(8): k(f"ds_read_b128 {vr(XF+4*c,4)}, v{16+c}")
    for c in range(8):
        k(f"s_waitcnt lgkmcnt({7-c})")
        for q in range(4):
            x = XF + 4*c + q
            k(f"v_dot2_f32_bf16 v{64+2*(q%2)}, v{x}, s{ONES}, v{64+2*(q%2)}")
            k(f"v_dot2_f32_bf16 v{65+2*(q%2)}, v{x}, v{x}, v{65+2*(q%2)}")
    k("v_lshlrev_b32 v16, 6, v1")
    sadd(k, 39, (S_W, 3), const=L_ST)
    k("v_add_u32 v16, s39, v16")
    k(pk('add', 64, 64, 66))
    k("ds_write_b64 v16, v[64:65]")
    XA0, XA1, WA = 11, 12, 13
    k("v_and_b32 v16, 7, v1")
    k("v_bfe_u32 v17, v1, 3, 2")
    k("v_and_b32 v18, 1, v17")
    k("v_xor_b32 v18, v18, v16")
    k("v_xor_b32 v18, v18, v9")
    k("v_lshlrev_b32 v18, 4, v18")
    k("v_lshl_add_u32 v18, v16, 7, v18")
    k("v_lshl_add_u32 v18, v17, 10, v18")
    sadd(k, 39, (KP, 5), (TB, 12))
    k(f"v_xor_b32 v{XA0}, s39, v18")
    k(f"v_xor_b32 v{XA1}, 64, v{XA0}")
    k(f"v_lshrrev_b32 v17, 1, v{G_}")
    k(f"v_lshl_add_u32 v17, v17, 3, v{JJ}")
    k(f"v_and_b32 v19, 1, v{G_}")
    k("v_lshlrev_b32 v20, 1, v19")
    k(f"v_lshrrev_b32 v21, 1, v{SC}")
    k("v_add_u32 v20, v20, v21")
    k(f"s_lshl_b32 s39, s{NB}, 2")
    k("v_add_u32 v20, s39, v20")
    k(f"v_lshrrev_b32 v21, 1, v{JJ}")
    k("v_lshlrev_b32 v21, 2, v21")
    k("v_xor_b32 v20, v20, v21")
    k("v_lshlrev_b32 v20, 4, v20")
    k("v_lshl_add_u32 v20, v17, 7, v20")
    k(f"v_and_b32 v21, 1, v{SC}")
    k("v_lshl_add_u32 v20, v21, 3, v20")
    sadd(k, 39, (KP, 11), const=L_WQ)
    k(f"v_add_u32 v{WA}, s39, v20")
    swap23(k, 27, 8, 20)
    ACC, CS = 48, 32
    for i in range(16): k(f"v_mov_b32 v{ACC+i}, 0")
    k(f"v_mov_b32 v{CS}, 0"); k(f"v_mov_b32 v{CS+1}, 0")
    def qreads(i):
        a = XA0 if i % 2 == 0 else XA1
        k(f"ds_read_b128 {vr(XF+4*(i%8),4)}, v{a} offset:{(i//2)*8192}")
        k(f"ds_read_b64_tr_b16 {vr(WF+4*(i%8),2)}, v{WA} offset:{i*4096}")
        k(f"ds_read_b64_tr_b16 {vr(WF+4*(i%8)+2,2)}, v{WA} offset:{i*4096+512}")
    def qhalf(i0):
        for i in range(i0, i0+5): qreads(i)
        for i in range(i0, i0+8):
            if i + 5 < i0 + 8:
                k("s_waitcnt lgkmcnt(12)"); qreads(i+5)
            else:
                k(f"s_waitcnt lgkmcnt({3*(i0+7-i)})")
            k(f"{MF32} {vr(ACC,16)}, {vr(WF+4*(i%8),4)}, {vr(XF+4*(i%8),4)}, {vr(ACC,16)}")
            for q in range(4): k(f"v_dot2_f32_bf16 v{CS+q%2}, v{WF+4*(i%8)+q}, s{ONES}, v{CS+q%2}")
    S0, S1, OA, OB = 48, 64, 80, 96
    QA, QB, KF, VF, P, V0B = 16, 20, 24, 28, 36, 240
    KADR, VADR = 4, 5
    KH = KP
    k(f"s_lshl_b32 s36, s{KH}, 15")
    k(f"v_add_u32 v{KADR}, s36, v2")
    k("v_lshlrev_b32 v3, 4, v10")
    k("v_lshl_add_u32 v3, v9, 8, v3")
    k("v_add_u32 v3, 0x18000, v3")
    k(f"v_add_u32 v{VADR}, s36, v3")
    k("v_and_b32 v6, 27, v1")
    k("v_cmp_eq_u32 vcc, 16, v6")
    k(f"v_mov_b32 v6, s{ONES}")
    k("v_cndmask_b32 v6, 0, v6, vcc")
    for i in range(4): k(f"v_mov_b32 v{V0B+i}, v6")
    sadd(k, 35, (KH, 15), (S_W, 10))
    k("s_and_b32 s35, s35, 0x8fff")
    EXM = 44
    k(f"s_mov_b32 s{EXM}, {VMASK}")
    k(f"s_mov_b32 s{EXM+1}, {VMASK}")
    k("s_waitcnt lgkmcnt(0)")
    vm.wait('wqa')
    k.stamp('wqa own')
    k("s_barrier")
    k.stamp('B1p')
    sadd(k, 39, (TB, 11), const=L_ST)
    k("v_lshlrev_b32 v21, 6, v8")
    k("v_add_u32 v21, s39, v21")
    for q in range(4): k(f"ds_read_b128 {vr(144+4*q,4)}, v21 offset:{q*16}")
    MU, RS = 34, 35
    with Cap(k) as cq: qhalf(0)
    with Cap(k) as cs_:
        for (a_, b_) in ((144, 146), (148, 150), (152, 154), (156, 158), (144, 148), (152, 156), (144, 152)): k(pk('add', a_, a_, b_))
        stats_mu_r(k, 144, 145, MU, RS, 512, 20)
        k(f"v_mul_f32 v{RS}, {hex(f2u(QSCALE))}, v{RS}")
    h_ = len(cq.lines) // 2
    k.lines += cq.lines[:h_] + interleave(cq.lines[h_:], cs_.lines)
    k.stamp('qh0')
    vm.wait('wqb')
    k("s_barrier")
    k.stamp('B2p')
    FL = 160
    def s0_issue():
        k(f"s_mov_b32 s39, {W_FLAG + F_S}")
        for q in range(4): k(f"buffer_load_dwordx4 {vr(FL+4*q,4)}, v2, {WS}, s39 offen offset:{q*1024} sc1")
    def s0_check():
        k("s_waitcnt vmcnt(0)")
        for q in range(4):
            k(f"v_xor_b32 v{FL+4*q}, s{NON}, v{FL+4*q}")
            k(f"v_xor_b32 v{FL+4*q+1}, s{NON+1}, v{FL+4*q+1}")
        k(f"v_or3_b32 v{FL}, v{FL}, v{FL+1}, v{FL+4}")
        k(f"v_or3_b32 v{FL+1}, v{FL+5}, v{FL+8}, v{FL+9}")
        k(f"v_or3_b32 v{FL}, v{FL}, v{FL+12}, v{FL+13}")
        k(f"v_or_b32 v{FL}, v{FL}, v{FL+1}")
        k(f"v_cmp_ne_u32 vcc, 0, v{FL}")
    def s0_kmax():
        k(f"v_max_f32 v{FL+2}, v{FL+2}, v{FL+6}")
        k(f"v_max3_f32 v{FL+2}, v{FL+2}, v{FL+10}, v{FL+14}")
        row_reduce(k, FL+2, "v_max_f32"); swap_add(k, FL+2, FL, 16, "v_max_f32"); swap_add(k, FL+2, FL, 32, "v_max_f32")
        k(f"v_mov_b32 v{FL+3}, 1")
        k(f"v_mov_b32 v{FL}, {L_KM}")
        k(f"ds_write_b64 v{FL}, {vr(FL+2,2)}")
    with Cap(k) as cq: qhalf(8)
    h_ = len(cq.lines) * OPT.get('s0at', 4) // 8
    k.lines += cq.lines[:h_]
    LE0 = k.label()
    k(f"s_cmp_lg_u32 s{S_W}, 0")
    k(f"s_cbranch_scc1 {LE0}")
    s0_issue()
    k(f"{LE0}:")
    k.lines += cq.lines[h_:]
    k.stamp('Q mfma')
    sadd(k, 39, (S_W, 12), const=L_WQ)
    k("v_add_u32 v22, s39, v2")
    k(f"v_add_f32 v{CS}, v{CS}, v{CS+1}")
    swap_add(k, CS, 20)
    sadd(k, 39, (KP, 8), (NB, 7), const=L_CSQ)
    k("v_lshlrev_b32 v20, 2, v27")
    k("v_add_u32 v20, s39, v20")
    k(f"ds_write_b32 v20, v{CS}")
    for q in range(4): k(f"ds_write_b128 v22, {vr(ACC+4*q,4)} offset:{q*1024}")
    k("v_xor_b32 v22, 0x4000, v22")
    sadd(k, 39, (NB, 7), const=L_CSQ)
    k("v_lshlrev_b32 v20, 5, v9")
    k("v_add_u32 v20, s39, v20")
    k(f"v_mov_b32 v21, {L_KM}")
    LE1, LE2 = k.label(), k.label()
    k(f"s_cmp_lg_u32 s{S_W}, 0")
    k(f"s_cbranch_scc1 {LE1}")
    s0_check()
    k(f"s_cbranch_vccz {LE2}")
    k(f"v_mov_b32 v{FL+3}, 0")
    k(f"ds_write_b64 v21, {vr(FL+2,2)}")
    k(f"s_branch {LE1}")
    k(f"{LE2}:")
    s0_kmax()
    k(f"{LE1}:")
    k("s_waitcnt lgkmcnt(0)")
    k.stamp('preB3')
    k("s_barrier")
    k("ds_read_b64 v[30:31], v21")
    for h in range(2):
        for p in range(2):
            k(f"ds_read_b128 {vr(WF+16*p+8*h,4)}, v20 offset:{p*256 + h*64}")
            k(f"ds_read_b128 {vr(WF+16*p+8*h+4,4)}, v20 offset:{p*256 + h*64 + 16}")
    for q in range(4): k(f"ds_read_b128 {vr(XF+4*q,4)}, v22 offset:{q*1024}")
    k("s_waitcnt lgkmcnt(12)")
    k("v_readfirstlane_b32 s88, v31")
    vm.q = []
    def kvdma(i):
        k(f"s_add_u32 s36, s35, {(i%2)*65536 + (i//2)*4096}")
        k(f"s_add_u32 m0, s35, {(i%2)*98304 + (i//2)*4096}")
        vm(f"buffer_load_dwordx4 v2, {WS}, s36 offen sc1 lds", f'kv{i//2}')
    LL0 = k.label()
    k("s_cmp_eq_u32 s88, 0")
    k(f"s_cbranch_scc1 {LL0}")
    for i in range(4): kvdma(i)
    k(f"{LL0}:")
    k("s_waitcnt lgkmcnt(4)")
    for i in range(0, 16, 2): k(pk('add', WF+i, WF+i, WF+16+i))
    for i in range(0, 16, 2): k(pk('fma', ACC+i, MU, WF+i, ACC+i, "op_sel_hi:[0,1,1] neg_lo:[1,0,0] neg_hi:[1,0,0]"))
    k("s_waitcnt lgkmcnt(0)")
    for i in range(0, 16, 2): k(pk('add', ACC+i, ACC+i, XF+i))
    for i in range(0, 16, 2): k(pk('mul', ACC+i, ACC+i, MU, None, "op_sel:[0,1] op_sel_hi:[1,1]"))
    k(f"v_mov_b32 v11, v{G_}"); k(f"v_mov_b32 v12, v{JJ}"); k(f"v_mov_b32 v13, v{SC}")
    G_, JJ, SC = 11, 12, 13
    k("v_mov_b32 v14, v30")
    for i in range(8): k(f"v_cvt_pk_bf16_f32 v{QA+i}, v{ACC+2*i}, v{ACC+2*i+1}")
    for i in range(8): k(f"v_mov_b32 v{VF+i}, v6")
    k("v_mov_b32 v6, 0"); k("v_mov_b32 v40, 0")
    for q in range(4):
        k(f"v_dot2_f32_bf16 v6, v{QA+q}, v{QA+q}, v6")
        k(f"v_dot2_f32_bf16 v40, v{QB+q}, v{QB+q}, v40")
    swap_add(k, 6, 38); swap_add(k, 40, 39)
    k("v_max_f32 v6, v6, v40")
    row_reduce(k, 6, "v_max_f32"); swap_add(k, 6, 38, 16, "v_max_f32")
    k.stamp('Q done')
    LL1, LP, LX, LB = k.label(), k.label("p0"), k.label("p0x"), k.label()
    k("s_cmp_lg_u32 s88, 0")
    k(f"s_cbranch_scc1 {LL1}")
    k(f"s_cmp_lg_u32 s{S_W}, 0")
    k(f"s_cbranch_scc1 {LB}")
    k(f"s_mov_b32 s48, {SPIN}")
    k(f"{LP}:")
    s0_issue()
    s0_check()
    k(f"s_cbranch_vccz {LX}")
    k("s_sub_u32 s48, s48, 1")
    k("s_sleep 4")
    k("s_cmp_lg_u32 s48, 0")
    k(f"s_cbranch_scc1 {LP}")
    k(f"{LX}:")
    s0_kmax()
    k("s_waitcnt lgkmcnt(0)")
    k(f"{LB}:")
    k("s_barrier")
    vm.q = []
    for i in range(4): kvdma(i)
    k(f"v_mov_b32 v14, {L_KM}")
    k("ds_read_b32 v14, v14")
    k("s_waitcnt lgkmcnt(0)")
    k(f"{LL1}:")
    k.stamp('S0')
    late_loads()
    k("s_getreg_b32 s39, hwreg(HW_REG_XCC_ID, 0, 4)")
    k("s_add_u32 s39, s39, 1")
    k("v_mov_b32 v38, s39")
    sadd(k, 39, (S_G, 12), (S_J, 2), const=W_FLAG + F_X)
    k("s_mov_b64 exec, 1")
    vm(f"buffer_store_dword v38, v15, {WS}, s39 offen sc1", 'xcc')
    k("s_mov_b64 exec, -1")
    k("v_mul_f32 v6, v6, v14")
    k(f"v_mov_b32 v14, {hex(f2u(-1.0 if OPT['force_slow'] else 1560.0))}")
    k("v_cmp_nle_f32 vcc, v6, v14")
    k("s_cmp_lg_u64 vcc, 0")
    k("s_cselect_b32 s58, 1, 0")
    vm.wait('kv1')
    k("s_barrier")
    k.stamp('kv01')
    V0 = [VF, V0B]
    def unit(S, Snext, Qnext, Oprev, Ocur, isA, t, extra):
        if not isA: k("s_waitcnt lgkmcnt(0)")
        k(f"{MF32} {vr(Snext,16)}, {vr(KF,4)}, {vr(Qnext,4)}, 0")
        k(f"v_exp_f32 v{S}, v{S}")
        k(f"v_exp_f32 v{S+1}, v{S+1}")
        for i in range(1, 8):
            k(f"v_exp_f32 v{S+2*i}, v{S+2*i}")
            k(f"v_exp_f32 v{S+2*i+1}, v{S+2*i+1}")
            if i == 1:
                if not (isA and t == 0): k(f"{MF32} {vr(Oprev,16)}, {vr(VF+4,4)}, {vr(P+4,4)}, {vr(Oprev,16)}")
                if isA:
                    k(f"ds_read_b128 {vr(KF,4)}, v{KADR} offset:{(t+1)*1024}")
                    k(f"s_mov_b64 exec, {sr(EXM,2)}")
                    k(f"ds_read_b128 {vr(VF+4,4)}, v{VADR} offset:{t*1024 + 512}")
                    k(f"ds_read_b128 {vr(V0[(t+1)%2],4)}, v{VADR} offset:{(t+1)*1024}")
                    k("s_mov_b64 exec, -1")
            if i == 5:
                k(f"{MF32} {vr(Ocur,16)}, {vr(V0[t%2],4)}, {vr(P,4)}, {vr(Ocur,16) if t else 0}")
            k(f"v_cvt_pk_bf16_f32 v{P+i-1}, v{S+2*i-2}, v{S+2*i-1}")
            if i in slots_ and extra: extra.pop(0)()
        k(f"v_cvt_pk_bf16_f32 v{P+7}, v{S+14}, v{S+15}")
    slots_ = (3, 6)
    PH = [0]; NBAR = [0]
    def tiles(t0, n, extra=None):
        for t in range(t0, t0+n):
            if OPT.get('prio'):
                ph = (t - PH[0]) % 4
                if ph == 0 and t > PH[0]: k("s_barrier"); NBAR[0] += 1
                k(f"s_setprio {3 - ph}")
            unit(S0, S1, QB, OB, OA, True, t, extra)
            unit(S1, S0, QA, OA, OB, False, t, extra)
        while extra: extra.pop(0)()
    SLOW, JOIN = k.label("slow"), k.label("join")
    nop_ = lambda: None
    def early_list():
        ex = []
        for i in range(4, 16): ex += [(lambda i=i: kvdma(i)), nop_]
        return ex
    nop_ = lambda: None
    def wsp_list():
        ex = []
        for q in range(4):
            ex += [(lambda q=q: vm(f"buffer_load_dwordx4 {vr(SPS+4*q,4)}, v{WV}, {sr(SRS,4)}, s43 offen offset:{q*64}", 'wsp')), nop_, nop_, nop_]
        return ex
    DUM = 248
    def warm(setup, n, step=1024):
        def mk(i):
            def f():
                if i == 0: setup()
                elif i % 4 == 0: k(f"s_add_u32 s46, s46, {4*step}")
                vm(f"buffer_load_dwordx4 {vr(DUM,4)}, v2, {WS}, s46 offen offset:{(i%4)*step} sc1", 'dum')
            return f
        return [mk(i) for i in range(n)]
    L_RS = 66560
    FR, RT0 = 128, 136
    def duty2():
        LR2, LRD, LRE = k.label(), k.label(), k.label()
        sadd(k, 41, (S_W, 11), const=L_RS)
        k(f"v_add_u32 v{RT0}, s41, v2")
        k(f"s_cmp_eq_u32 s{RT}, 0")
        k(f"s_cbranch_scc1 {LRD}")
        for i in range(2): k(f"ds_write_b128 v{RT0}, {vr(RP+4*i,4)} offset:{i*1024}")
        k(f"s_cmp_eq_u32 s{RT}, 2")
        k(f"s_cbranch_scc1 {LR2}")
        a, b = RT0+1, RT0+2
        k(f"v_lshrrev_b32 v{a}, 1, v{G_}")
        k(f"v_lshl_add_u32 v{a}, v{a}, 3, v{JJ}")
        k(f"v_lshlrev_b32 v{a}, 6, v{a}")
        k(f"v_and_b32 v{b}, 1, v{G_}")
        k(f"v_lshl_add_u32 v{a}, v{b}, 5, v{a}")
        k(f"v_lshl_add_u32 v{a}, v{SC}, 3, v{a}")
        k(f"v_add_u32 v{a}, s41, v{a}")
        k("s_waitcnt lgkmcnt(0)")
        for i in range(2):
            k(f"ds_read_b64_tr_b16 {vr(FR+4*i,2)}, v{a} offset:{i*1024}")
            k(f"ds_read_b64_tr_b16 {vr(FR+4*i+2,2)}, v{a} offset:{i*1024+256}")
        k("s_waitcnt lgkmcnt(0)")
        for i in range(2): k(f"buffer_store_dwordx4 {vr(FR+4*i,4)}, v2, {WS}, s{RDST} offen offset:{i*1024} sc1")
        k(f"s_branch {LRD}")
        k(f"{LR2}:")
        k(f"v_lshl_add_u32 v{a}, v{G_}, 3, v{JJ}")
        k(f"v_lshlrev_b32 v{a}, 5, v{a}")
        k(f"v_and_b32 v{b}, 3, v1")
        k(f"v_lshl_add_u32 v{a}, v{b}, 3, v{a}")
        k(f"v_add_u32 v{a}, s41, v{a}")
        k("s_waitcnt lgkmcnt(0)")
        for kb in range(2):
            k(f"ds_read_b64_tr_b16 {vr(FR+4*kb,2)}, v{a} offset:{kb*1024}")
            k(f"ds_read_b64_tr_b16 {vr(FR+4*kb+2,2)}, v{a} offset:{kb*1024+128}")
        k(f"v_mov_b32 v{b}, 0")
        k(f"v_lshlrev_b32 v{a}, 5, v10")
        sadd(k, 39, (S_W, 2), const=L_RS + 16384)
        k(f"v_add_u32 v{a}, s39, v{a}")
        k("s_waitcnt lgkmcnt(0)")
        for q in range(8): k(f"v_dot2_f32_bf16 v{b}, v{FR+q}, s{ONES}, v{b}")
        swap_add(k, b, RT0+3, 32); swap_add(k, b, RT0+3, 16)
        k(f"ds_write_b32 v{a}, v{b}")
        k("s_waitcnt lgkmcnt(0)")
        k(f"{LRD}:")
        k("s_barrier")
        k(f"s_cmp_lg_u32 s{RT}, 2")
        k(f"s_cbranch_scc1 {LRE}")
        k(f"v_lshlrev_b32 v{a}, 5, v10")
        k(f"v_add_u32 v{a}, {L_RS + 16384}, v{a}")
        c = RT0 + 4
        k(f"ds_read_b128 {vr(c,4)}, v{a}")
        k(f"ds_read_b128 {vr(c+4,4)}, v{a} offset:16")
        k("s_waitcnt lgkmcnt(0)")
        k(pk('add', c, c, c+2)); k(pk('add', c+4, c+4, c+6)); k(pk('add', c, c, c+4))
        k(f"v_add_f32 v{c}, v{c}, v{c+1}")
        k(f"v_mul_f32 v{c}, {hex(f2u(1.0/512))}, v{c}")
        for q in range(8):
            r = FR + q; t = c + 2 + 2*(q % 3)
            k(f"v_lshlrev_b32 v{t}, 16, v{r}")
            k(f"v_and_b32 v{t+1}, 0xffff0000, v{r}")
            k(pk('add', t, t, c, None, "op_sel_hi:[1,0] neg_lo:[0,1] neg_hi:[0,1]"))
            k(f"v_cvt_pk_bf16_f32 v{r}, v{t}, v{t+1}")
        for kb in range(2): k(f"buffer_store_dwordx4 {vr(FR+4*kb,4)}, v2, {WS}, s{RDST} offen offset:{kb*1024} sc1")
        k(f"{LRE}:")
        vm.q.append('st0')
    def raise_flag(foff, sync=True, wait=None):
        if sync:
            if wait: vm.wait(wait)
            else: vm.all()
            k("s_barrier")
        L = k.label()
        k(f"s_cmp_lg_u32 s{S_W}, 0")
        k(f"s_cbranch_scc1 {L}")
        sadd(k, 39, (2, 2), const=W_FLAG + foff)
        k("v_mov_b32 v14, 1")
        k("s_mov_b64 exec, 1")
        k(f"buffer_store_dword v14, v15, {WS}, s39 offen sc1")
        k("s_mov_b64 exec, -1")
        k(f"{L}:")
    def wsp_store():
        vm.wait('wsp')
        sadd(k, 39, (42, 12), const=W_WSP)
        for q in range(4): vm(f"buffer_store_dwordx4 {vr(SPS+4*q,4)}, v2, {WS}, s39 offen offset:{q*1024} sc1", 'st')
    def chk_loads(foff, xcc):
        k(f"s_mov_b32 s39, {W_FLAG + foff}")
        k(f"buffer_load_dwordx4 {vr(RP,4)}, v2, {WS}, s39 offen sc1")
        if xcc: k(f"buffer_load_dword v254, v13, {WS}, s89 offen sc1")
    def chk_issue(foff, xcc=False):
        L = k.label()
        if xcc:
            sadd(k, 89, (S_G, 12), const=W_FLAG + F_X)
            k("v_and_b32 v13, 7, v1")
            k("v_lshlrev_b32 v13, 2, v13")
        k(f"s_cmp_lg_u32 s{S_W}, 0")
        k(f"s_cbranch_scc1 {L}")
        chk_loads(foff, xcc)
        k(f"{L}:")
    def chk(foff, xcc=False, bar=True):
        LPp, LXx = k.label("wp"), k.label("wpx")
        k(f"s_cmp_lg_u32 s{S_W}, 0")
        k(f"s_cbranch_scc1 {LXx}")
        k(f"s_mov_b32 s48, {SPIN}")
        k(f"{LPp}:")
        k("s_waitcnt vmcnt(0)")
        k(f"v_min_u32 v14, v{RP}, v{RP+1}")
        k(f"v_min3_u32 v14, v14, v{RP+2}, v{RP+3}")
        if xcc: k(f"v_min_u32 v14, v14, v254")
        k("v_cmp_eq_u32 vcc, 0, v14")
        k(f"s_cbranch_vccz {LXx}")
        k("s_sub_u32 s48, s48, 1")
        k("s_cmp_eq_u32 s48, 0")
        k(f"s_cbranch_scc1 {LXx}")
        k("s_sleep 16")
        chk_loads(foff, xcc)
        k(f"s_branch {LPp}")
        k(f"{LXx}:")
        if bar: k("s_barrier")
        if xcc: vm(f"buffer_load_dword v254, v13, {WS}, s89 offen sc1", 'xc')
    def duty_mode():
        vm.wait('xc')
        k("v_readfirstlane_b32 s39, v254")
        k("v_cmp_ne_u32 vcc, s39, v254")
        k("s_cmp_eq_u64 vcc, 0")
        k(f"s_cselect_b32 s{MODE}, 1, 0")
    CG, PAR, INV, U02, U1, SB, SIX = 90, 91, 92, 93, 94, 95, 96
    def dparams():
        k(f"s_and_b32 s{CG}, s{S_W}, 3")
        k(f"s_xor_b32 s{CG}, s{CG}, s{KP}")
        k(f"s_and_b32 s{PAR}, s{CG}, 1")
        slice_of(k, S_J, SB, SIX)
        k(f"s_mul_i32 s39, s{CG}, 3")
        k("s_add_u32 s39, s39, 1")
        k(f"s_lshr_b32 s{U02}, s39, 1")
        k(f"s_sub_u32 s39, s{U02}, s{SIX}")
        k("s_cmp_eq_u32 s39, 5")
        k(f"s_cselect_b32 s{INV}, {OOB}, 0")
        k(f"s_lshr_b32 s40, s{CG}, 1")
        k("s_mul_i32 s40, s40, 3")
        k(f"s_add_u32 s{U1}, s40, 1")
    WOF, WI0, WI1, WI2 = 112, 176, 208, 48
    def win_off(s):
        if s == 0: sadd(k, 46, (U02, 0), (SB, 0), const=43)
        elif s == 2: sadd(k, 46, (U02, 0), (SB, 0))
        else:
            k(f"s_xor_b32 s46, s{PAR}, 1")
            k("s_mul_i32 s46, s46, 43")
            k(f"s_add_u32 s46, s46, s{U1}")
            k(f"s_add_u32 s46, s46, s{SB}")
        k("s_lshl_b32 s46, s46, 14")
        k(f"s_lshl_b32 s47, s{KP}, 10")
        k("s_add_u32 s46, s46, s47")
        k(f"s_add_u32 s46, s46, {W_WIN}")
        if s != 1: k(f"s_add_u32 s46, s46, s{INV}")
    def wload_list(base, n, setup, tag, step=2048):
        per = 4096 // step
        def mk(i):
            def f():
                if i == 0: setup()
                elif i % per == 0: k("s_add_u32 s46, s46, 4096")
                vm(f"buffer_load_dwordx4 {vr(base+4*i,4)}, v2, {WS}, s46 offen offset:{(i%per)*step} sc1", tag)
            return f
        return [mk(i) for i in range(n)]
    def wo_setup(): sadd(k, 46, (S_J, 16), (NB, 15), (KP, 10), const=W_WO)
    def pre1():
        ex = wload_list(WOF, 16, wo_setup, 'wo') + wload_list(WI0, 8, lambda: win_off(0), 'wi')
        return ex
    def wi2_warm():
        win_off(2); k("s_lshl_b32 s47, s7, 12"); k("s_add_u32 s46, s46, s47")
    def pre2():
        ex = wload_list(WI1, 8, lambda: win_off(1), 'wi')
        if OPT.get('warm', True):
            ex += warm(wi2_warm, 2, 2048)
            ex += warm(lambda: sadd(k, 46, (S_J, '*90112'), (7, '*22528'), (S_W, '*3072'), const=W_WOUT), 3)
        if OPT.get('own', True):
            ex += warm(lambda: sadd(k, 46, (S_G, 16), (TB, 15), (S_J, 12), (NB, 11), (KH, 10), const=W_O), 1)
            ex += warm(lambda: sadd(k, 46, (S_G, 16), (KQ, 14), (S_J, 11), (NB, 10), const=W_H), 1)
            ex += warm(lambda: sadd(k, 46, (S_G, '*90112'), (NB, '*45056'), (SB, 10), (KQ, 10), const=W_Y), 1)
            ex += warm(lambda: sadd(k, 46, (S_G, '*90112'), (NB, '*45056'), (SB, 10), (TB, 10), const=W_Y + 4096), 1)
        return ex
    def pre3():
        return warm(lambda: sadd(k, 46, (S_G, 18), (S_J, 15), (S_W, 12), const=W_WSP), 4) if OPT.get('warm', True) else []
    k("s_cmp_lg_u32 s58, 0")
    k(f"s_cbranch_scc1 {SLOW}")
    qsave = list(vm.q)
    k(f"ds_read_b128 {vr(KF,4)}, v{KADR}")
    k(f"s_mov_b64 exec, {sr(EXM,2)}")
    k(f"ds_read_b128 {vr(VF,4)}, v{VADR}")
    k("s_mov_b64 exec, -1")
    k("s_waitcnt lgkmcnt(0)")
    k(f"{MF32} {vr(S0,16)}, {vr(KF,4)}, {vr(QA,4)}, 0")
    dparams()
    el = early_list(); wl_ = wsp_list()
    nb = []
    def seg(t0, n, ex=None):
        PH[0] = t0; NBAR[0] = 0
        tiles(t0, n, ex); nb.append(NBAR[0])
    seg(0, 6, el)
    k.stamp('t6'); vm.wait('kv7'); duty2(); k.stamp('repack')
    seg(6, 4, wl_)
    k.stamp('t10'); raise_flag(F_W, wait='st0'); k.stamp('flagW')
    seg(10, 7, [nop_]*12 + [wsp_store] + [nop_]*7 + [lambda: chk_issue(F_W, True)])
    k.stamp('t17'); vm.all(); chk(F_W, True); raise_flag(F_W2, False); k.stamp('chkW')
    seg(17, 15, pre1() + pre2() + pre3())
    if OPT.get('prio'): k("s_setprio 0")
    duty_mode()
    k(f"{MF32} {vr(OB,16)}, {vr(VF+4,4)}, {vr(P+4,4)}, {vr(OB,16)}")
    k(f"{JOIN}:")
    k.stamp('attn end')
    chk_issue(F_W2); chk(F_W2, bar=False)
    L_C = 66560
    T = 24
    sadd(k, 36, (S_W, '*2304'), const=L_C)
    k("v_add_u32 v13, s36, v2")
    k("v_lshlrev_b32 v6, 2, v1")
    k("v_add_u32 v14, s36, v6")
    k(f"s_xor_b32 s37, s{S_W}, 4")
    sadd(k, 36, (37, '*2304'), const=L_C)
    k("v_add_u32 v11, s36, v2")
    k("v_add_u32 v12, s36, v6")
    sadd(k, 33, (S_G, 16), (TB, 15), (S_J, 12), (NB, 11), (KH, 10), const=W_O)
    LB_, LC_ = k.label(), k.label()
    k(f"s_cmp_eq_u32 s{KH}, 0")
    k(f"s_cbranch_scc1 {LB_}")
    k(f"ds_write_b128 v13, {vr(OA,4)}")
    k(f"ds_write_b128 v13, {vr(OA+4,4)} offset:1024")
    k(f"ds_write_b32 v14, v{OA+8} offset:2048")
    for i in range(9): k(f"v_mov_b32 v{OA+i}, v{OB+i}")
    k(f"s_branch {LC_}")
    k(f"{LB_}:")
    k(f"ds_write_b128 v13, {vr(OB,4)}")
    k(f"ds_write_b128 v13, {vr(OB+4,4)} offset:1024")
    k(f"ds_write_b32 v14, v{OB+8} offset:2048")
    k(f"{LC_}:")
    k("v_mov_b32 v14, 1")
    k("s_waitcnt lgkmcnt(0)")
    k("s_barrier")
    k(f"ds_read_b32 v{T+8}, v12 offset:2048")
    k(f"ds_read_b128 {vr(T,4)}, v11")
    k(f"ds_read_b128 {vr(T+4,4)}, v11 offset:1024")
    k("s_waitcnt lgkmcnt(2)")
    k(f"v_add_f32 v{OA+8}, v{OA+8}, v{T+8}")
    k(f"v_rcp_f32 v{OA+8}, v{OA+8}")
    k("s_waitcnt lgkmcnt(0)")
    for i in range(0, 8, 2): k(pk('add', OA+i, OA+i, T+i))
    for i in range(0, 8, 2): k(pk('mul', OA+i, OA+i, OA+8, None, "op_sel_hi:[1,0]"))
    for i in range(4): k(f"v_cvt_pk_bf16_f32 v{T+i}, v{OA+2*i}, v{OA+2*i+1}")
    store2(k, vm, f"buffer_store_dwordx4 {vr(T,4)}, v2, {WS}, s33 offen", 'o')
    ACC, AF = 80, 96
    L_C = 131072
    L_S = L_C + 16384
    RU = T + 8
    def unpack_res():
        for i in range(4):
            k(f"v_lshlrev_b32 v{RU+2*i}, 16, v{RES+i}")
            k(f"v_and_b32 v{RU+2*i+1}, 0xffff0000, v{RES+i}")
    def setup1():
        pub_addr(6, 76)
        sadd(k, 33, (S_G, 16), (S_W, 12), const=W_O)
        k(f"s_lshl_b32 s35, s{S_W}, 12")
        sadd(k, 37, (TB, 15), (KP, 10))
        k("v_add_u32 v3, s37, v2")
        sadd(k, 39, (S_W, 11), const=L_C)
        k("v_add_u32 v4, s39, v2")
        k("v_xor_b32 v5, 0x2000, v4")
        k("v_lshlrev_b32 v12, 4, v10")
        k("v_lshl_add_u32 v12, v9, 8, v12")
        k("v_bfe_u32 v11, v1, 4, 1")
        k("v_lshl_add_u32 v12, v11, 14, v12")
        sadd(k, 43, (S_G, 16), (TB, 15), (S_J, 11), (NB, 10), (KP, 9), const=W_H)
        sadd(k, 40, (KP, 10), (NB, 9), (TB, 8), const=L_S)
        k("v_lshlrev_b32 v11, 3, v8")
        k("v_add_u32 v11, s40, v11")

        unpack_res()

    group_sync(k, vm, F_O, 'o', setup1)
    for tb in range(2):
        k(f"s_add_u32 m0, s35, {tb*32768}")
        k(f"s_add_u32 s36, s33, {tb*32768}")
        for q in range(4): vm(f"buffer_load_dwordx4 v2, {WS}, s36 offen offset:{q*1024} sc1 lds", 'ot')
    vm.all()
    k.stamp('o landed')
    k("s_barrier")
    wl = wload_list(WI2, 8, lambda: win_off(2), 'wi')
    for i in range(4): k(f"ds_read_b128 {vr(AF+4*i,4)}, v3 offset:{i*2048}")
    for i in range(16):
        k(f"s_waitcnt lgkmcnt({min(3, 15-i)})")
        k(f"{MF32} {vr(ACC,16)}, {vr(WOF+4*i,4)}, {vr(AF+4*(i%4),4)}, {vr(ACC,16) if i else 0}")
        if i + 4 < 16: k(f"ds_read_b128 {vr(AF+4*(i%4),4)}, v3 offset:{(i+4)*2048}")
        if wl: wl.pop(0)()
    LCc, LDd = k.label(), k.label()
    k(f"s_cmp_eq_u32 s{KP}, 0")
    k(f"s_cbranch_scc1 {LCc}")
    k(f"ds_write_b128 v4, {vr(ACC,4)}")
    k(f"ds_write_b128 v4, {vr(ACC+4,4)} offset:1024")
    for i in range(0, 8, 2): k(pk('add', ACC+i, ACC+8+i, RU+i))
    k(f"s_branch {LDd}")
    k(f"{LCc}:")
    k(f"ds_write_b128 v4, {vr(ACC+8,4)}")
    k(f"ds_write_b128 v4, {vr(ACC+12,4)} offset:1024")
    for i in range(0, 8, 2): k(pk('add', ACC+i, ACC+i, RU+i))
    k(f"{LDd}:")
    k("s_waitcnt lgkmcnt(0)")
    k("s_barrier")
    k(f"ds_read_b128 {vr(AF,4)}, v5")
    k(f"ds_read_b128 {vr(AF+4,4)}, v5 offset:1024")
    k(f"v_mov_b32 v{T}, 0"); k(f"v_mov_b32 v{T+1}, 0")
    k("s_waitcnt lgkmcnt(0)")
    for i in range(0, 8, 2): k(pk('add', ACC+i, ACC+i, AF+i))
    for i in range(4): k(f"v_cvt_pk_bf16_f32 v{RES+i}, v{ACC+2*i}, v{ACC+2*i+1}")
    store2(k, vm, f"buffer_store_dwordx4 {vr(RES,4)}, v12, {WS}, s43 offen", 'h')
    for q in range(4):
        k(f"v_dot2_f32_bf16 v{T}, v{RES+q}, s{ONES}, v{T}")
        k(f"v_dot2_f32_bf16 v{T+1}, v{RES+q}, v{RES+q}, v{T+1}")
    k(f"v_mov_b32 v{T+2}, v{T}"); k(f"v_mov_b32 v{T+3}, v{T+1}")
    k(f"v_permlane32_swap_b32 v{T}, v{T+2}"); k(f"v_permlane32_swap_b32 v{T+1}, v{T+3}")
    k(pk('add', T, T, T+2))
    k(f"ds_write_b64 v11, {vr(T,2)}")
    def publish(wsoff, ls, wait):
        L = k.label()
        k(f"s_cmp_lg_u32 s{S_W}, 0")
        k(f"s_cbranch_scc1 {L}")
        k("v_lshlrev_b32 v13, 3, v1")
        k(f"v_add_u32 v13, {ls}, v13")
        for p in range(4): k(f"ds_read_b64 {vr(T+2*p,2)}, v13 offset:{p*512}")
        k(f"s_add_u32 s47, s76, {wsoff}")
        k("s_waitcnt lgkmcnt(0)")
        k(pk('add', T, T, T+2)); k(pk('add', T+4, T+4, T+6)); k(pk('add', T, T, T+4))
        q = list(vm.q)
        store2(k, vm, f"buffer_store_dwordx2 {vr(T,2)}, v6, {WS}, s47 offen")
        vm.q = q
        if wait: k("s_waitcnt vmcnt(0)")
        k(f"{L}:")
    FH = NB
    WSPO = 98
    def wsp_dma_list(step0):
        region = 65536 if (step0 % 8) < 4 else 0
        def mk(s, u):
            def f():
                k(f"s_add_u32 m0, s99, {region + s*4096 + u*1024}")
                k(f"s_add_u32 s36, s{WSPO}, {u*65536 + (step0+s)*1024}")
                vm(f"buffer_load_dwordx4 v2, {WS}, s36 offen sc1 lds", f'sp{step0}')
            return f
        return [mk(s, u) for s in range(4) for u in range(2)]
    DACC, ST = 112, 16
    HFB = [80, 96, 160]
    TW, TR, Z1A, Z1B = 40, 41, 42, 43
    L_S2, L_Z1 = 49152, 151552
    def setup2():
        publish(W_HS, L_S, False)
        sadd(k, WSPO, (S_G, 18), (FH, 17), (KQ, 14), const=W_WSP)
        sadd(k, 99, (KQ, 14), (FH, 11))
        sadd(k, 33, (S_G, 16), (S_W, 11), const=W_H)
        k(f"s_lshl_b32 s35, s{S_W}, 11")
        k(f"s_lshl_b32 s38, s{KP}, 10")
        k("v_add_u32 v3, s38, v2")
        sadd(k, 74, (S_G, 12), (KP, 11))
        k(f"s_add_u32 s75, s74, {W_ZS}")
        k(f"s_add_u32 s74, s74, {W_HS}")
        k(f"s_lshr_b32 s39, s{CG}, 1")
        sadd(k, 38, (KP, 1), (39, 0))
        sadd(k, 39, (38, '*6144'), (PAR, 12), const=L_C)
        k("v_add_u32 v4, s39, v2")
        k("s_xor_b32 s38, s38, 2")
        sadd(k, 39, (38, '*6144'), (PAR, 12), const=L_C)
        k("v_add_u32 v5, s39, v2")
        k(f"s_lshl_b32 s39, s{S_W}, 12")
        k("v_add_u32 v12, s39, v2")
        sadd(k, 39, (S_W, 11), const=32768)
        k("v_lshrrev_b32 v13, 4, v1")
        k(f"v_lshlrev_b32 v{TW}, 5, v10")
        k(f"v_lshl_add_u32 v{TW}, v13, 3, v{TW}")
        k(f"v_add_u32 v{TW}, s39, v{TW}")
        k(f"v_bfe_u32 v{TR}, v1, 2, 2")
        k(f"v_lshl_add_u32 v{TR}, v13, 3, v{TR}")
        k(f"v_lshlrev_b32 v{TR}, 5, v{TR}")
        k("v_and_b32 v13, 3, v1")
        k(f"v_lshl_add_u32 v{TR}, v13, 3, v{TR}")
        k(f"v_add_u32 v{TR}, s39, v{TR}")
        k("v_lshlrev_b32 v13, 3, v1")
        sadd(k, 39, (U02, 11), (KP, 10), const=L_Z1)
        k(f"v_add_u32 v{Z1A}, s39, v13")
        sadd(k, 39, (U1, 11), (KP, 10), const=L_Z1)
        k(f"v_add_u32 v{Z1B}, s39, v13")
        sadd(k, 39, (CG, 9), (KP, 8), const=L_S2)
        k("v_lshlrev_b32 v11, 3, v10")
        k("v_add_u32 v11, s39, v11")
        sadd(k, 39, (U02, 0), (SB, 0))
        sadd(k, 80, (39, 16), (S_G, 11), (KP, 10), (INV, 0), const=W_Z2)
        sadd(k, 39, (U1, 0), (SB, 0))
        sadd(k, 81, (39, 16), (S_G, 11), (KP, 10), const=W_Z2)
    k("s_waitcnt lgkmcnt(0)")
    group_sync(k, vm, F_H, 'h', setup2)
    for tu in range(4):
        k(f"s_add_u32 m0, s35, {tu*16384}")
        k(f"s_add_u32 s36, s33, {tu*16384}")
        for q in range(2): vm(f"buffer_load_dwordx4 v2, {WS}, s36 offen offset:{q*1024} sc1 lds", 'ht')
    vm.all()
    k.stamp('h landed')
    k("s_barrier")
    vm(f"buffer_load_dwordx4 {vr(ST,4)}, v2, {WS}, s74 offen sc1", 'hs')
    vm(f"buffer_load_dwordx4 {vr(ST+4,4)}, v2, {WS}, s74 offen offset:1024 sc1", 'hs')
    WI = [WI0, WI1, WI2]
    def sum_stats(src, t):
        for u in range(2): k(pk('add', src+4*u, src+4*u, src+4*u+2))
        for w_ in (16, 32):
            for u in range(2):
                for q in range(2): k(f"v_mov_b32 v{src+4*u+2+q}, v{src+4*u+q}")
            for u in range(2):
                for q in range(2): k(f"v_permlane{w_}_swap_b32 v{src+4*u+q}, v{src+4*u+2+q}")
            for u in range(2): k(pk('add', src+4*u, src+4*u, src+4*u+2))
    def mpass(slots, extra=None):
        def hread(i):
            for tu in range(4): k(f"ds_read_b128 {vr(HFB[i%3]+4*tu,4)}, v3 offset:{tu*16384 + i*2048}")
        hread(0); hread(1)
        for i in range(8):
            if i + 2 < 8: hread(i+2)
            ahead = min(2, 7 - i)
            for tu in range(4):
                k(f"s_waitcnt lgkmcnt({4*ahead + 3 - tu})")
                for s in slots:
                    a = DACC + 16*s + 4*tu
                    k(f"{MF16} {vr(a,4)}, {vr(WI[s]+4*i,4)}, {vr(HFB[i%3]+4*tu,4)}, {vr(a,4) if i else 0}")
            if extra: extra.pop(0)()
    def send(slots, ar, off):
        La, Lb = k.label(), k.label()
        k(f"s_cmp_eq_u32 s{KP}, 0")
        k(f"s_cbranch_scc1 {La}")
        for n, s in enumerate(slots):
            for u in range(2): k(f"ds_write_b128 v{ar}, {vr(DACC+16*s+4*u,4)} offset:{off + (2*n+u)*1024}")
        for n, s in enumerate(slots):
            for q in range(8): k(f"v_mov_b32 v{DACC+16*s+q}, v{DACC+16*s+8+q}")
        k(f"s_branch {Lb}")
        k(f"{La}:")
        for n, s in enumerate(slots):
            for u in range(2): k(f"ds_write_b128 v{ar}, {vr(DACC+16*s+8+4*u,4)} offset:{off + (2*n+u)*1024}")
        k(f"{Lb}:")
    def recv(slots, ar, off):
        for n, s in enumerate(slots):
            for u in range(2): k(f"ds_read_b128 {vr(DACC+16*s+8+4*u,4)}, v{ar} offset:{off + (2*n+u)*1024}")
    def gelu(slots, scale):
        prs = [(DACC+16*s+4*u+q, ST+4*u) for s in slots for u in range(2) for q in (0, 2)]
        for (x, c) in prs: k(pk('add', x, x, x+8))
        for (x, c) in prs: k(pk('mul', x+8, x, x))
        for (x, c) in prs: k(pk('fma', x+8, x+8, c, c, "op_sel:[0,0,1] op_sel_hi:[1,0,1]"))
        for (x, c) in prs: k(pk('mul', x+8, x+8, x))
        for (x, c) in prs:
            k(f"v_exp_f32 v{x+8}, v{x+8}"); k(f"v_exp_f32 v{x+9}, v{x+9}")
        for (x, c) in prs: k(pk('add', x+8, x+8, "1.0", None, "op_sel_hi:[1,0]"))
        if scale:
            for (x, c) in prs: k(pk('mul', x, x, c+2, None, "op_sel_hi:[1,0]"))
        for (x, c) in prs:
            k(f"v_rcp_f32 v{x+8}, v{x+8}"); k(f"v_rcp_f32 v{x+9}, v{x+9}")
        for (x, c) in prs: k(pk('mul', x, x, x+8))
    ZST = 240
    HOLD = 176
    def hold_loads(h):
        for s_ in range(4*h, 4*h+4):
            for u in range(2):
                k(f"s_add_u32 s36, s{WSPO}, {u*65536 + (8+s_)*1024}")
                vm(f"buffer_load_dwordx4 {vr(HOLD+8*s_+4*u,4)}, v2, {WS}, s36 offen sc1", 'hold')
    def validate(R, so):
        LPz, LXz = k.label("zp"), k.label("zpx")
        k(f"s_mov_b32 s48, {SPIN}")
        k(f"{LPz}:")
        k(f"v_max_u32 v{T}, v{R}, v{R+2}")
        k(f"v_max3_u32 v{T}, v{T}, v{R+4}, v{R+6}")
        k(f"v_cmp_eq_u32 vcc, -1, v{T}")
        k(f"s_cbranch_vccz {LXz}")
        k("s_sub_u32 s48, s48, 1")
        k("s_cmp_eq_u32 s48, 0")
        k(f"s_cbranch_scc1 {LXz}")
        k(f"buffer_load_dwordx4 {vr(R,4)}, v2, {WS}, s{so} offen sc1")
        k(f"buffer_load_dwordx4 {vr(R+4,4)}, v2, {WS}, s{so} offen offset:1024 sc1")
        k("s_waitcnt vmcnt(0)")
        k(f"s_branch {LPz}")
        k(f"{LXz}:")
    nst0 = getattr(k, 'nst', 0)
    def hstats():
        sum_stats(ST, T)
        for u in range(2): k(pk('mul', ST+4*u, ST+4*u, "s[82:83]"))
        for u in range(2): k(f"v_fma_f32 v{ST+4*u+3}, -v{ST+4*u}, v{ST+4*u}, v{ST+4*u+1}")
        for u in range(2): k(f"v_max_f32 v{ST+4*u+3}, 0, v{ST+4*u+3}")
        for u in range(2): k(f"v_add_f32 v{ST+4*u+3}, {hex(f2u(1e-5))}, v{ST+4*u+3}")
        for u in range(2): k(f"v_rsq_f32 v{ST+4*u+2}, v{ST+4*u+3}")
        for u in range(2): k(f"v_mul_f32 v{ST+4*u+3}, {hex(f2u(1e-5))}, v{ST+4*u+3}")
        for u in range(2): k(f"v_mul_f32 v{ST+4*u+1}, {hex(f2u(C0))}, v{ST+4*u+2}")
        for u in range(2): k(f"v_mul_f32 v{ST+4*u}, v{ST+4*u+2}, v{ST+4*u+2}")
        for u in range(2): k(f"v_mul_f32 v{ST+4*u}, v{ST+4*u}, v{ST+4*u+2}")
        for u in range(2): k(f"v_mul_f32 v{ST+4*u}, {hex(f2u(C1))}, v{ST+4*u}")
    def dmain():
        with Cap(k) as cm: mpass([0, 1, 2], wsp_dma_list(0))
        with Cap(k) as cs: hstats()
        half = len(cm.lines) // 2
        nd = sum(1 for l in cm.lines[:half] if 'buffer_load' in l)
        k.lines += cm.lines[:half]
        k(f"s_waitcnt vmcnt({nd})")
        validate(ST, 74)
        k.lines += interleave(cm.lines[half:], cs.lines)
    def dvariant(par):
        z2s = [0, 1] if par == 0 else [0]
        z1s = [2] if par == 0 else [1, 2]
        qv = list(vm.q)
        if Kern.STAMPS: k.nst = nst0; k.stnames = k.stnames[:nst0]
        send(z2s, 4, 0)
        k("s_waitcnt lgkmcnt(0)")
        k.stamp('D mfma')
        k("s_barrier")
        k("v_xor_b32 v3, 0x5000, v12")
        recv(z2s, 5, 0)
        send(z1s, 12, 0)
        hold_loads(0)
        k(f"s_waitcnt lgkmcnt({2*len(z1s)})")
        gelu(z2s, False)
        for u in range(2):
            b = DACC + 4*u
            k(pk('add', T+4*u, b, b+2))
            k(pk('mul', T+4*u+2, b, b))
        for u in range(2): k(pk('fma', T+4*u+2, DACC+4*u+2, DACC+4*u+2, T+4*u+2))
        if par == 0:
            for q in (0, 2):
                for u in range(2):
                    b = DACC + 16 + 4*u + q
                    k(pk('add', T+4*u, T+4*u, b))
                    k(pk('fma', T+4*u+2, b, b, T+4*u+2))
        for u in range(2):
            k(f"v_add_f32 v{T+4*u}, v{T+4*u}, v{T+4*u+1}")
            k(f"v_add_f32 v{T+4*u+1}, v{T+4*u+2}, v{T+4*u+3}")
        for w_ in (16, 32):
            for u in range(2):
                for q in range(2): k(f"v_mov_b32 v{T+4*u+2+q}, v{T+4*u+q}")
            for u in range(2):
                for q in range(2): k(f"v_permlane{w_}_swap_b32 v{T+4*u+q}, v{T+4*u+2+q}")
            for u in range(2): k(pk('add', T+4*u, T+4*u, T+4*u+2))
        k(f"ds_write_b64 v11, {vr(T,2)}")
        k(f"ds_write_b64 v11, {vr(T+4,2)} offset:128")
        k("s_waitcnt lgkmcnt(0)")
        k.stamp('D gelu2')
        k("s_barrier")
        publish(W_ZS, L_S2, False)
        recv(z1s, 3, 0)
        k("s_waitcnt lgkmcnt(0)")
        with Cap(k) as cg_: gelu(z1s, True)
        hz = len(cg_.lines) * OPT.get('zsat', (0, 4))[par] // 8
        k.lines += cg_.lines[:hz]
        vm(f"buffer_load_dwordx4 {vr(ZST,4)}, v2, {WS}, s75 offen sc1", 'zs')
        vm(f"buffer_load_dwordx4 {vr(ZST+4,4)}, v2, {WS}, s75 offen offset:1024 sc1", 'zs')
        k.lines += cg_.lines[hz:]
        for s in z1s:
            for q in range(4): k(f"v_cvt_pk_bf16_f32 v{DACC+16*s+8+q}, v{DACC+16*s+2*q}, v{DACC+16*s+2*q+1}")
        k.stamp('D gelu1')
        vm.wait('zs')
        validate(ZST, 75)
        k.stamp('zs ok')
        sum_stats(ZST, T)
        for u in range(2): k(pk('mul', ZST+4*u, ZST+4*u, "s[84:85]"))
        for u in range(2): k(f"v_fma_f32 v{ZST+4*u+1}, -v{ZST+4*u}, v{ZST+4*u}, v{ZST+4*u+1}")
        for u in range(2): k(f"v_max_f32 v{ZST+4*u+1}, 0, v{ZST+4*u+1}")
        for u in range(2): k(f"v_add_f32 v{ZST+4*u+1}, v{ZST+4*u+1}, v{ST+4*u+3}")
        for u in range(2): k(f"v_rsq_f32 v{ZST+4*u+1}, v{ZST+4*u+1}")
        for u in range(2): k(f"v_mul_f32 v{ZST+4*u}, v{ZST+4*u}, v{ZST+4*u+1}")
        for n, s in enumerate(z2s):
            for u in range(2):
                for q in (0, 2):
                    x = DACC + 16*s + 4*u + q
                    k(pk('fma', x, x, ZST+4*u, ZST+4*u, "op_sel:[0,1,0] op_sel_hi:[1,1,0] neg_lo:[0,0,1] neg_hi:[0,0,1]"))
                for q in range(2):
                    k(f"v_cvt_pk_bf16_f32 v{DACC+16*s+8+2*u+q}, v{DACC+16*s+4*u+2*q}, v{DACC+16*s+4*u+2*q+1}")
                k(f"ds_write_b64 v{TW}, {vr(DACC+16*s+8+2*u,2)} offset:{n*1024 + u*512}")
        for s in z1s:
            a = Z1A if s == 2 else Z1B
            for u in range(2): k(f"ds_write_b64 v{a}, {vr(DACC+16*s+8+2*u,2)} offset:{u*512}")
        k(f"s_waitcnt lgkmcnt({2*len(z1s)})")
        for n, s in enumerate(z2s):
            k(f"ds_read_b64_tr_b16 {vr(DACC+16*s,2)}, v{TR} offset:{n*1024}")
            k(f"ds_read_b64_tr_b16 {vr(DACC+16*s+2,2)}, v{TR} offset:{n*1024+128}")
        for n, s in enumerate(z2s):
            k(f"s_waitcnt lgkmcnt({2*(len(z2s)-1-n)})")
            k(f"buffer_store_dwordx4 {vr(DACC+16*s,4)}, v2, {WS}, s{80+s} offen sc1")
        k.stamp('z2 issued')
        vm.q = qv
        return ['z2']
    HOLD = 176
    k(f"s_mov_b32 s82, {hex(f2u(1.0/512))}"); k(f"s_mov_b32 s83, {hex(f2u(1.0/512))}")
    k(f"s_mov_b32 s84, {hex(f2u(1.0/688))}"); k(f"s_mov_b32 s85, {hex(f2u(1.0/688))}")
    dmain()
    nst0 = getattr(k, 'nst', 0)
    LD1, LDJ = k.label("d1"), k.label("dj")
    k(f"s_cmp_lg_u32 s{PAR}, 0")
    k(f"s_cbranch_scc1 {LD1}")
    dvariant(0)
    k(f"s_branch {LDJ}")
    k(f"{LD1}:")
    vm.q = dvariant(1)
    k(f"{LDJ}:")
    srd(k, 60, A_BSP, 4096)
    srd(k, 16, A_OUT, 2048*1024)
    U0, INV2 = 53, 54
    sadd(k, U0, (FH, '*3'), (SB, 0))
    k(f"s_cmp_gt_u32 s{FH}, s{SIX}")
    k(f"s_cselect_b32 s{INV2}, {OOB}, 0")
    if OPT.get('efake'): sadd(k, 33, (FH, '*196608'), (KQ, 14), const=W_Z2)
    else: sadd(k, 33, (U0, 16), (KQ, 14), const=W_Z2)
    k("s_add_u32 s34, s33, 65536")
    k("s_add_u32 s35, s34, 65536")
    k(f"s_add_u32 s35, s35, s{INV2}")
    k(f"s_lshl_b32 s39, s{KQ}, 14")
    k("v_add_u32 v3, s39, v2")
    k("v_add_u32 v4, 0x10000, v3")
    k("v_add_u32 v5, s99, v2")
    k("v_add_u32 v11, 0x10000, v5")
    sadd(k, 40, (S_J, 7), const=W_FLAG + F_Z)
    sadd(k, 41, (40, 0), (S_G, 2))
    vm.wait('z2')
    k.stamp('z2 acked')
    k("s_barrier")
    LW0, LP3, LX3, LZa, LZb = k.label(), k.label("p3"), k.label("p3x"), k.label(), k.label()
    k(f"s_cmp_lg_u32 s{S_W}, 0")
    k(f"s_cbranch_scc1 {LW0}")
    k("s_mov_b64 exec, 1")
    k(f"buffer_store_dword v14, v15, {WS}, s41 offen sc1")
    k("s_mov_b64 exec, -1")
    k(f"{LW0}:")
    for f in wsp_dma_list(4): f()
    hold_loads(1)
    k("v_lshlrev_b32 v13, 1, v10")
    sadd(k, 39, (S_G, 7), (KQ, 5))
    k("s_waitcnt lgkmcnt(0)")
    vm(f"buffer_load_ushort v160, v13, s[60:63], s39 offen", 'bsp')
    EACC, ZB, DEPTH = 112, 48, 5
    WFR = [16, 20, 24, 28, 32, 36, 40, 108]
    k(f"s_cmp_lg_u32 s{S_W}, 0")
    k(f"s_cbranch_scc1 {LZb}")
    k(f"s_mov_b32 s48, {SPIN}")
    k(f"{LP3}:")
    if OPT.get('s3smem', True):
        k(f"s_buffer_load_dwordx16 s[80:95], {WS}, s40 glc")
        k("s_add_u32 s41, s40, 64")
        k("s_sub_u32 s48, s48, 1")
        k("s_cmp_eq_u32 s48, 0")
        k(f"s_cbranch_scc1 {LX3}")
        k("s_waitcnt lgkmcnt(0)")
        for q in range(1, 8): k(f"s_and_b64 s[80:81], s[80:81], s[{80+2*q}:{81+2*q}]")
        k("s_and_b32 s36, s80, s81")
        k(f"s_cbranch_scc0 {LP3}")
        LP4 = k.label("p4")
        k(f"{LP4}:")
        k(f"s_buffer_load_dwordx16 s[80:95], {WS}, s41 glc")
        k("s_sub_u32 s48, s48, 1")
        k("s_cmp_eq_u32 s48, 0")
        k(f"s_cbranch_scc1 {LX3}")
        k("s_waitcnt lgkmcnt(0)")
        for q in range(1, 8): k(f"s_and_b64 s[80:81], s[80:81], s[{80+2*q}:{81+2*q}]")
        k("s_and_b32 s36, s80, s81")
        k(f"s_cbranch_scc0 {LP4}")
    else:
        k("v_lshlrev_b32 v13, 2, v8")
        k(f"buffer_load_dword v161, v13, {WS}, s40 offen sc1")
        k("s_sub_u32 s48, s48, 1")
        k("s_cmp_eq_u32 s48, 0")
        k(f"s_cbranch_scc1 {LX3}")
        k("s_waitcnt vmcnt(0)")
        k("v_cmp_eq_u32 vcc, 0, v161")
        k(f"s_cbranch_vccnz {LP3}")
    k(f"{LX3}:")
    k("s_waitcnt lgkmcnt(0)")
    k(f"{LZb}:")
    k("s_barrier")
    k.stamp('S3 done')
    WOUT = 176
    def zload(i):
        if i % 4 == 0 and i > 0:
            for q in range(3): k(f"s_add_u32 s{33+q}, s{33+q}, 4096")
        for s in range(3):
            vm(f"buffer_load_dwordx4 {vr(ZB+12*(i%DEPTH)+4*s,4)}, v2, {WS}, s{33+s} offen offset:{(i%4)*1024} sc1", f'z{i}')
    def wread(i):
        a = 4 if (i % 8) < 4 else 3
        for tu in range(4): k(f"ds_read_b128 {vr(WFR[4*(i%2)+tu],4)}, v{a} offset:{(i%4)*4096 + tu*1024}")
    def wout_setup(): sadd(k, 46, (S_J, '*90112'), (NB, '*45056'), (KQ, 10), const=W_WOUT)
    wo_l = wload_list(WOUT, 11, wout_setup, 'wout', step=4096)
    if OPT.get('nowout'): wo_l = []
    for i in range(DEPTH): zload(i)
    wread(0)
    for i in range(16):
        pre_ok = (i + 1) % 4 != 0
        if pre_ok: wread(i+1)
        nw = 0
        if 4 <= i < 12:
            base = HOLD + 8*(i-4); a = 11 if i < 8 else 5
            for u in range(2): k(f"ds_write_b128 v{a}, {vr(base+4*u,4)} offset:{(i%4)*4096 + u*1024}")
            nw = 2
        vm.wait(f'z{i}')
        for tu in range(4):
            k(f"s_waitcnt lgkmcnt({(4 if pre_ok else 0) + nw + 3 - tu})")
            for s_ in range(3):
                a = EACC + 12*tu + 4*s_
                k(f"{MF16} {vr(a,4)}, {vr(ZB+12*(i%DEPTH)+4*s_,4)}, {vr(WFR[4*(i%2)+tu],4)}, {vr(a,4) if i else 0}")
        if i + DEPTH < 16: zload(i + DEPTH)
        elif i >= 12:
            for _ in range(3):
                if wo_l: wo_l.pop(0)()
        if i in (3, 7, 11):
            if i > 3: k("s_waitcnt lgkmcnt(0)")
            k.stamp(f'E{i}')
            k("s_barrier")
            wread(i+1)
    assert not wo_l
    k.stamp('E main')
    L_RED = 65536
    sadd(k, 39, (FH, '*36864'), const=L_RED)
    k("v_add_u32 v5, s39, v2")
    KEEP = 48
    LRJ = k.label("rj")
    labs = [k.label("rk") for _ in range(4)]
    for q in range(1, 4):
        k(f"s_cmp_eq_u32 s{KQ}, {q}")
        k(f"s_cbranch_scc1 {labs[q]}")
    k("v_lshlrev_b32 v160, 16, v160") if False else None
    for q in range(4):
        k(f"{labs[q]}:")
        for d in range(4):
            if d == q: continue
            off = d*9216 + (q - (1 if q > d else 0))*3072
            for s in range(3): k(f"ds_write_b128 v5, {vr(EACC+12*d+4*s,4)} offset:{off + s*1024}")
        k("v_lshlrev_b32 v160, 16, v160")
        for r in range(0, 12, 2): k(pk('add', KEEP+r, EACC+12*q+r, 160, None, "op_sel_hi:[1,0]"))
        if q < 3: k(f"s_branch {LRJ}")
    k(f"{LRJ}:")
    sadd(k, 39, (FH, '*36864'), (KQ, '*9216'), const=L_RED)
    k("v_add_u32 v5, s39, v2")
    k("v_lshlrev_b32 v13, 3, v1")
    sadd(k, 39, (FH, '*6144'), (KQ, 9), const=L_Z1)
    k("v_add_u32 v13, s39, v13")
    for s in range(3): k(f"ds_read_b64 {vr(162+2*s,2)}, v13 offset:{s*2048}")
    k("v_lshlrev_b32 v12, 9, v9")
    k("v_lshl_add_u32 v12, v10, 4, v12")
    k("v_bfe_u32 v13, v1, 4, 1")
    k("v_lshl_add_u32 v12, v13, 3, v12")
    sadd(k, 33, (S_G, '*90112'), (KP, '*45056'), (U0, 10), (TB, 8), const=W_Y)
    k(f"s_add_u32 s34, s33, s{INV2}")
    k("s_waitcnt lgkmcnt(0)")
    k("s_barrier")
    RB = 64
    for q in range(9): k(f"ds_read_b128 {vr(RB+4*q,4)}, v5 offset:{q*1024}")
    for s in range(3):
        for h in range(2):
            k(f"v_lshlrev_b32 v{16+4*s+2*h}, 16, v{162+2*s+h}")
            k(f"v_and_b32 v{16+4*s+2*h+1}, 0xffff0000, v{162+2*s+h}")
    for p in range(3):
        k(f"s_waitcnt lgkmcnt({6-3*p})")
        for r in range(0, 12, 2): k(pk('add', KEEP+r, KEEP+r, RB+12*p+r))
    for r in range(0, 12, 2): k(pk('mul', KEEP+r, KEEP+r, 16+r))
    for r in range(6): k(f"v_cvt_pk_bf16_f32 v{162+r}, v{KEEP+2*r}, v{KEEP+2*r+1}")
    store2(k, vm, [f"buffer_store_dwordx2 {vr(162+2*s,2)}, v12, {WS}, s{34 if s == 2 else 33} offen offset:{s*1024}" for s in range(3)], 'y')
    FA, AF = 48, 80
    L_FR = 98304
    def setup4():
        slice_of(k, S_W, 35, 34)
        k("s_lshl_b32 s35, s35, 10")
        sadd(k, 33, (S_G, '*90112'), (35, 0), const=W_Y)
        k(f"s_lshl_b32 s37, s{KQ}, 10")
        k("v_add_u32 v3, s37, v2")
        sadd(k, 39, (NB, '*24576'), const=L_FR)
        k("v_add_u32 v4, s39, v2")
        sadd(k, 39, (NB, '*24576'), (KQ, '*6144'), const=L_FR)
        k("v_add_u32 v5, s39, v2")
        unpack_res()
    group_sync(k, vm, F_Y, 'y', setup4)
    for tb in range(2):
        k(f"s_add_u32 m0, s35, {tb*45056}")
        k(f"s_add_u32 s36, s33, {tb*45056}")
        for q in range(4): k(f"buffer_load_dwordx4 v2, {WS}, s36 offen offset:{q*1024} sc1 lds")
        k(f"s_add_u32 m0, s35, {tb*45056 + 4096}")
        k(f"s_add_u32 s36, s33, {tb*45056 + 4096}")
        k(f"buffer_load_dwordx4 v2, {WS}, s36 offen sc1 lds")
    L6 = k.label()
    k("s_cmp_eq_u32 s34, 0")
    k(f"s_cbranch_scc1 {L6}")
    for tb in range(2):
        k(f"s_add_u32 m0, s35, {tb*45056 + 5120}")
        k(f"s_add_u32 s36, s33, {tb*45056 + 5120}")
        k(f"buffer_load_dwordx4 v2, {WS}, s36 offen sc1 lds")
    k(f"{L6}:")
    k("v_add_u32 v11, 45056, v3")
    vm.all()
    k.stamp('y landed')
    k("s_barrier")
    def yread(i):
        k(f"ds_read_b128 {vr(AF+8*(i%4),4)}, v3 offset:{i*4096}")
        k(f"ds_read_b128 {vr(AF+8*(i%4)+4,4)}, v11 offset:{i*4096}")
    for i in range(3): yread(i)
    for i in range(11):
        if i + 3 < 11: yread(i+3)
        k(f"s_waitcnt lgkmcnt({2*min(3, 10-i)})")
        if i == 10:
            LS = k.label()
            k(f"s_cmp_eq_u32 s{KQ}, 3")
            k(f"s_cbranch_scc1 {LS}")
        for tb in range(2):
            k(f"{MF32} {vr(FA+16*tb,16)}, {vr(WOUT+4*i,4)}, {vr(AF+8*(i%4)+4*tb,4)}, {vr(FA+16*tb,16) if i else 0}")
        if i == 10: k(f"{LS}:")
    LFJ = k.label("fj")
    labs = [k.label("fk") for _ in range(4)]
    for q in range(1, 4):
        k(f"s_cmp_eq_u32 s{KQ}, {q}")
        k(f"s_cbranch_scc1 {labs[q]}")
    for q in range(4):
        k(f"{labs[q]}:")
        for d in range(4):
            if d == q: continue
            off = d*6144 + (q - (1 if q > d else 0))*2048
            b = FA + 16*(d & 1) + 8*(d >> 1)
            for h in range(2): k(f"ds_write_b128 v4, {vr(b+4*h,4)} offset:{off + h*1024}")
        b = FA + 16*(q & 1) + 8*(q >> 1)
        for r in range(0, 8, 2): k(pk('add', RU+r, RU+r, b+r))
        if q < 3: k(f"s_branch {LFJ}")
    k(f"{LFJ}:")
    k("s_waitcnt lgkmcnt(0)")
    k("s_barrier")
    for q in range(6): k(f"ds_read_b128 {vr(AF+4*q,4)}, v5 offset:{q*1024}")
    for p in range(3):
        k(f"s_waitcnt lgkmcnt({4-2*p})")
        for r in range(0, 8, 2): k(pk('add', RU+r, RU+r, AF+8*p+r))
    for i in range(4): k(f"v_cvt_pk_bf16_f32 v{RES+i}, v{RU+2*i}, v{RU+2*i+1}")
    k(f"buffer_store_dwordx4 {vr(RES,4)}, v7, s[16:19], s52 offen")
    if Kern.STAMPS:
        k.stamp('out issued'); k("s_waitcnt vmcnt(0)"); k.stamp_flush(0, W_STAMP)
    k(f"{END}:")
    k("s_endpgm")
    k(f"{SLOW}:")
    vm.q = list(qsave)
    dparams()
    for f in early_list(): f()
    def bars(n):
        for _ in range(n): k("s_barrier")
    bars(nb[0]); vm.all(); duty2()
    for f in wsp_list(): f()
    bars(nb[1]); raise_flag(F_W)
    wsp_store()
    bars(nb[2])
    chk_issue(F_W, True); vm.all(); chk(F_W, True); raise_flag(F_W2, False)
    for f in pre1() + pre2()[:8]: f()
    bars(nb[3])
    duty_mode()
    k("v_mov_b32 v12, v10")
    for i in range(16): k(f"v_mov_b32 v{OA+i}, 0"); k(f"v_mov_b32 v{OB+i}, 0")
    attn_slow(k, QA, OA, S0, S1, P, KF, VF, KH)
    attn_slow(k, QB, OB, S0, S1, P, KF, VF, KH)
    k("v_mov_b32 v10, v12")
    k("s_waitcnt vmcnt(0)")
    k(f"s_branch {JOIN}")
    return k

def build(path, stamps=False, **opt):
    Kern.STAMPS = stamps
    Kern.STAMPOP = 's_memtime' if opt.get('cyc') else 's_memrealtime'
    OPT.clear(); OPT.update(dict(l2local=True, force_slow=False)); OPT.update(opt)
    k = gen()
    txt = HEADER + "; @launch grid=(256,1,1) block=(512,1,1) lds=163840\n"
    txt += '.amdgcn_target "amdgcn-amd-amdhsa--gfx950"\n.text\n' + k.text() + k.desc()
    open(path, 'w').write(txt)
    if stamps:
        import json; json.dump(k.stnames, open(path + '.json', 'w'))
    return k

if __name__ == '__main__':
    k = build('v5.s'); print('lines', len(k.lines), 'nops', k.nops)
    build('v5_cyc_st.s', stamps=True, cyc=True)
    build('v5_slow.s', force_slow=True)
    build('v5p.s', prio=True)
    build('v5p_slow.s', prio=True, force_slow=True)
    build('v5p_cyc_st.s', stamps=True, cyc=True, prio=True)
    build('v5b_cyc_st.s', stamps=True, cyc=True, s3smem=False)
```

```python
import sys
from asmlib import *
from gen1 import (NAME, A_X, A_WQ, A_WK, A_WV, A_WO, A_WIN, A_WSP, A_BSP, A_WOUT, A_OUT, A_DBG, A_WS,
                  W_K, W_V, W_O, W_H, W_HS, W_Z2, W_ZS, W_Y, W_WO, W_WIN, W_WOUT, W_WSP, W_FLAG, W_END, W_STAMP,
                  SLICE_BASE, SLICE_CNT, QSCALE, f2u, MF32, MF16, srd, swap_add, row_reduce, swap23, tr_lane_parts,
                  stats_mu_r, C0, C1, OOB, HEADER, VMASK, attn_slow)
from gen2 import VM, interleave, Cap, sadd

S_W, S_G, S_J, SRD_WS, ONES = 4, 5, 6, 8, 28
NB, TB, KP, KQ = 29, 30, 31, 32
WS = sr(SRD_WS, 4)
SDBG, MODE, NON = 64, 68, 78
F_O, F_H, F_Y, F_X = 0, 1024, 2048, 3072
F_Z, F_W, F_S, F_W2 = 0x22000, 0x20400, 0x21000, 0x20800
SPIN = 100000
OPT = {}
PB = sum(b << (8*i) for i, b in enumerate(SLICE_BASE[:4])); PB2 = sum(b << (8*i) for i, b in enumerate(SLICE_BASE[4:]))
MASK6 = sum(1 << i for i, c in enumerate(SLICE_CNT) if c == 6)

def ZSH(): return OPT.get('zsh', 2)
def store2(k, vm, texts, tag=None):
    if isinstance(texts, str): texts = [texts]
    if not OPT['l2local']:
        for t in texts: vm(t + " sc1", tag)
        return
    la, lb = k.label(), k.label()
    k(f"s_cmp_eq_u32 s{MODE}, 0")
    k(f"s_cbranch_scc1 {la}")
    for t in texts: k(t)
    k(f"s_branch {lb}")
    k(f"{la}:")
    for t in texts: k(t + " sc1")
    k(f"{lb}:")
    vm.q += [tag] * len(texts)

def group_sync(k, vm, foff, store_tag, between=None):
    vm.wait(store_tag)
    k.stamp(store_tag + ' acked')
    k("s_barrier")
    L = k.label()
    k(f"s_cmp_lg_u32 s{S_W}, 0")
    k(f"s_cbranch_scc1 {L}")
    k("s_mov_b64 exec, 1")
    q = list(vm.q)
    store2(k, vm, f"buffer_store_dword v255, v15, {WS}, s50 offen offset:{foff}")
    vm.q = q
    k("s_mov_b64 exec, -1")
    k(f"{L}:")
    if between: between()
    k(f"s_mov_b32 s48, {SPIN}")
    k("s_mov_b64 exec, 1")
    LP, LX = k.label("poll"), k.label("pollx")
    k(f"{LP}:")
    k(f"buffer_load_dword v13, v15, {WS}, s51 offen offset:{foff} sc1")
    k("s_sub_u32 s48, s48, 1")
    k("s_cmp_eq_u32 s48, 0")
    k(f"s_cbranch_scc1 {LX}")
    k("s_waitcnt vmcnt(0)")
    k("v_cmp_eq_u32 vcc, 0, v13")
    k(f"s_cbranch_vccnz {LP}")
    k(f"{LX}:")
    k("s_mov_b64 exec, -1")
    vm.q = []
    k.stamp('sync ok')

def land(k, vm, issue, blocks, RB_, name):
    LP, LX = k.label("land"), k.label("landx")
    k(f"s_mov_b32 s48, {SPIN}")
    k(f"{LP}:")
    issue()
    k("s_waitcnt vmcnt(0)")
    n = len(blocks)
    for i, (a, o) in enumerate(blocks): k(f"ds_read_b128 {vr(RB_+4*i,4)}, v{a} offset:{o}")
    for i in range(n):
        k(f"s_waitcnt lgkmcnt({n-1-i})")
        b = RB_ + 4*i
        if i == 0:
            k(f"v_max3_u32 v13, v{b}, v{b+1}, v{b+2}")
            k(f"v_max_u32 v13, v13, v{b+3}")
        else:
            k(f"v_max3_u32 v13, v13, v{b}, v{b+1}")
            k(f"v_max3_u32 v13, v13, v{b+2}, v{b+3}")
    k("v_cmp_eq_u32 vcc, -1, v13")
    k(f"s_cbranch_vccz {LX}")
    k("s_sub_u32 s48, s48, 1")
    k("s_cmp_lg_u32 s48, 0")
    k(f"s_cbranch_scc1 {LP}")
    k(f"{LX}:")
    vm.q = []
    k.stamp(name)
    k("s_barrier")

def slice_of(k, idx, base_dst, six_dst):
    k(f"s_mov_b32 s39, {hex(PB)}"); k(f"s_mov_b32 s40, {hex(PB2)}")
    k(f"s_cmp_lt_u32 s{idx}, 4")
    k("s_cselect_b32 s39, s39, s40")
    k(f"s_and_b32 s40, s{idx}, 3")
    k("s_lshl_b32 s40, s40, 3")
    k("s_lshr_b32 s39, s39, s40")
    k(f"s_and_b32 s{base_dst}, s39, 0xff")
    k(f"s_lshr_b32 s{six_dst}, {MASK6}, s{idx}")
    k(f"s_and_b32 s{six_dst}, s{six_dst}, 1")

def sprinkle(mf, fill, per=1):
    out = []; fill = list(fill)
    ngap = len(mf)
    for i, m in enumerate(mf):
        out.append(m)
        n = max(per, -(-len(fill) // (ngap - i)))
        out += fill[:n]; fill = fill[n:]
    return out + fill

def pk(op, d, a, b, c=None, mods=''):
    ops = [vr(d, 2), a if isinstance(a, str) else vr(a, 2), b if isinstance(b, str) else vr(b, 2)]
    if c is not None: ops.append(c if isinstance(c, str) else vr(c, 2))
    return f"v_pk_{op}_f32 " + ", ".join(ops) + (" " + mods if mods else "")

def gen():
    k = Kern(NAME + "_kernel", vgprs=256, sgprs=100)
    vm = VM(k)
    END = "L_end"
    k("s_cmp_ge_u32 s2, 256")
    k(f"s_cbranch_scc1 {END}")
    if Kern.STAMPS: k(f"{Kern.STAMPOP} s[72:73]")
    SX, SWQ, SWK = 12, 16, 20
    k("s_lshr_b32 s7, s2, 3")
    k(f"s_and_b32 s{S_J}, s7, 7")
    k(f"s_lshr_b32 s33, s{S_J}, 2")
    k("s_lshl_b32 s33, s33, 3")
    k(f"s_add_u32 s33, s33, {A_WK}")
    k(f"s_load_dwordx2 {sr(SX,2)}, s[0:1], {A_X}")
    k(f"s_load_dwordx2 {sr(SWK,2)}, s[0:1], s33")
    k(f"s_load_dwordx2 {sr(SRD_WS,2)}, s[0:1], {A_WS}")
    k(f"s_load_dwordx2 {sr(SDBG,2)}, s[0:1], {A_DBG}")
    k(f"s_load_dwordx2 {sr(SWQ,2)}, s[0:1], {A_WQ}")
    k(f"s_memrealtime {sr(NON,2)}")
    for r, sz in ((SX, 2048*1024), (SWK, 16384), (SWQ, 512*1024), (SRD_WS, W_END), (SDBG, 256)):
        k(f"s_mov_b32 s{r+2}, {sz}"); k(f"s_mov_b32 s{r+3}, 0x20000")
    k("v_lshrrev_b32 v1, 6, v0")
    k("v_and_b32 v2, 63, v0")
    k(f"v_readfirstlane_b32 s{S_W}, v1")
    k("v_mov_b32 v1, v2")
    k("v_lshlrev_b32 v2, 4, v1")
    if Kern.STAMPS:
        k("s_waitcnt lgkmcnt(0)"); k("v_mov_b32 v0, -1"); k("v_writelane_b32 v0, s72, 0"); k.nst = 1; k.stnames = ['start']
    k("s_and_b32 s3, s2, 7")
    k("s_lshr_b32 s7, s7, 3")
    k("s_lshl_b32 s3, s3, 2")
    k(f"s_add_u32 s{S_G}, s3, s7")
    TU, KIND = 55, 56
    k(f"s_and_b32 s{TU}, s{S_J}, 3")
    k(f"s_lshr_b32 s{KIND}, s{S_J}, 2")
    L_X, L_WQ, L_W, L_SCR = 0, 65536, 131072, 147456
    L_ST, L_CSQ, L_KS, L_KM = L_SCR, L_SCR + 4096, L_SCR + 5120, L_SCR + 6144
    k("v_lshrrev_b32 v3, 3, v1")
    k("v_and_b32 v4, 7, v1")
    k("v_xor_b32 v5, v3, v4")
    k("v_lshlrev_b32 v5, 4, v5")
    k("v_lshl_add_u32 v5, v3, 10, v5")
    k("v_xor_b32 v6, 16, v5")
    sadd(k, 33, (S_G, 16), (S_W, 7))
    k("s_lshl_b32 s86, s7, 1")
    k(f"s_sub_u32 s34, s{S_W}, s86")
    k("s_and_b32 s34, s34, 7")
    k("s_lshl_b32 s34, s34, 13")
    k(f"s_lshl_b32 s35, s{TU}, 1")
    k(f"s_lshl_b32 s37, s{S_W}, 11")
    def xdma(i):
        k(f"s_add_u32 s36, s35, {i}")
        k("s_and_b32 s36, s36, 7")
        k("s_lshl_b32 s38, s36, 10")
        k("s_add_u32 m0, s38, s34")
        k("s_lshl_b32 s36, s36, 13")
        k("s_add_u32 s36, s36, s33")
        vm(f"buffer_load_dwordx4 v{5 + i%2}, {sr(SX,4)}, s36 offen lds", 'xc' if i < 2 else 'x')
    k("v_bfe_u32 v14, v3, 1, 1")
    k("v_lshlrev_b32 v14, 2, v14")
    k("v_xor_b32 v14, v14, v4")
    k("v_lshlrev_b32 v14, 4, v14")
    k("v_lshl_add_u32 v14, v3, 10, v14")
    k(f"s_lshl_b32 s36, s{S_J}, 7")
    k("v_add_u32 v14, s36, v14")
    k(f"s_lshl_b32 s57, s{S_W}, 10")
    k(f"s_lshl_b32 s87, s{S_W}, 13")
    def wqdma(i):
        k(f"s_add_u32 s38, s86, {i}")
        k("s_and_b32 s38, s38, 7")
        k("s_lshl_b32 s38, s38, 16")
        k(f"s_add_u32 m0, s57, {L_WQ + i*8192}")
        k("s_add_u32 s38, s38, s87")
        vm(f"buffer_load_dwordx4 v14, {sr(SWQ,4)}, s38 offen lds", 'wqa' if i < 4 else 'wqb')
    k("s_waitcnt lgkmcnt(0)")
    xdma(0); xdma(1)
    k(f"s_add_u32 m0, s37, {L_W}")
    for i in range(2): vm(f"buffer_load_dwordx4 v2, {sr(SWK,4)}, s37 offen offset:{i*1024} lds", 'xc')
    sadd(k, 50, (S_G, 12), (S_J, 7), const=W_FLAG)
    sadd(k, 51, (S_G, 12), (S_W, 7), const=W_FLAG)
    k("v_and_b32 v10, 15, v1")
    k("v_mov_b32 v15, 0")
    LZ, LN = k.label(), k.label()
    k(f"s_cmp_lg_u32 s{S_W}, 0")
    k(f"s_cbranch_scc1 {LZ}")
    k("s_cmp_lg_u32 s2, 0")
    k(f"s_cbranch_scc1 {LN}")
    k(f"s_or_b32 s{NON}, s{NON}, 1")
    k(f"v_mov_b32 v16, s{NON}"); k(f"v_mov_b32 v17, s{NON+1}")
    k("s_mov_b64 exec, 1")
    k(f"buffer_store_dwordx2 v[16:17], v15, {sr(SDBG,4)}, 0 offen sc1")
    k("s_mov_b64 exec, -1")
    k(f"{LN}:")
    for q in range(4): k(f"v_mov_b32 v{16+q}, 0")
    k("v_lshlrev_b32 v20, 10, v1")
    k("v_add_u32 v20, s50, v20")
    sadd(k, 39, (S_G, 12), (S_J, 2), const=W_FLAG + F_X); k("v_writelane_b32 v20, s39, 3")
    sadd(k, 39, (S_J, 5 + ZSH()), (S_G, ZSH()), const=W_FLAG + F_Z); k("v_writelane_b32 v20, s39, 4")
    sadd(k, 39, (2, 2), const=W_FLAG + F_W); k("v_writelane_b32 v20, s39, 5")
    sadd(k, 39, (2, 2), const=W_FLAG + F_W2); k("v_writelane_b32 v20, s39, 6")
    k("s_mov_b64 exec, 127")
    k(f"buffer_store_dword v16, v20, {WS}, 0 offen sc1")
    k("s_mov_b64 exec, -1")
    def pub_addr(vdst, sdst):
        k(f"v_lshrrev_b32 v{vdst}, 4, v1")
        k(f"v_lshlrev_b32 v{vdst}, 10, v{vdst}")
        k(f"v_lshl_add_u32 v{vdst}, v10, 4, v{vdst}")
        k(f"s_lshr_b32 s40, s{S_J}, 1")
        k(f"s_and_b32 s41, s{S_J}, 1")
        sadd(k, sdst, (S_G, 12), (40, 8), (41, 3))
    pub_addr(20, 47)
    k(f"s_add_u32 s47, s47, {W_ZS}")
    k("v_mov_b32 v18, -1"); k("v_mov_b32 v19, -1")
    k(f"buffer_store_dwordx2 v[18:19], v20, {WS}, s47 offen sc1")
    k(f"s_sub_u32 s47, s47, {W_ZS - W_HS}")
    k(f"buffer_store_dwordx2 v[18:19], v20, {WS}, s47 offen sc1")
    k(f"{LZ}:")
    k("s_barrier")
    wqdma(0); wqdma(1)
    k(f"s_mov_b32 s{ONES}, 0x3f803f80")
    k(f"s_and_b32 s{NB}, s{S_W}, 1")
    k(f"s_bfe_u32 s{TB}, s{S_W}, 0x10001")
    k(f"s_lshr_b32 s{KP}, s{S_W}, 2")
    k(f"s_lshr_b32 s{KQ}, s{S_W}, 1")
    RES = 44
    k("v_and_b32 v8, 31, v1")
    k("v_lshlrev_b32 v7, 10, v8")
    k("v_lshrrev_b32 v9, 5, v1")
    k("v_lshl_add_u32 v7, v9, 4, v7")
    sadd(k, 52, (S_G, 16), (TB, 15), (S_J, 7), (NB, 6), (KP, 5))
    RP, RV, WV = 244, 252, 253
    k("s_lshl_b32 s42, s2, 3")
    k(f"s_add_u32 s42, s42, s{S_W}")
    RT, RDST, SRP, SRS, RO = 53, 54, 60, 24, 74
    L1, L2, L3, L5 = [k.label() for _ in range(4)]
    k(f"s_mov_b32 s{RO}, {OOB}"); k(f"s_mov_b32 s{RO+1}, {OOB}")
    k(f"s_mov_b32 s{RT}, 0")
    k("v_lshrrev_b32 v16, 2, v1")
    k("v_and_b32 v17, 3, v1")
    k("v_lshlrev_b32 v17, 4, v17")
    k(f"v_lshl_add_u32 v{RV}, v16, 10, v17")
    k("s_cmp_lt_u32 s2, 86")
    k(f"s_cbranch_scc1 {L1}")
    k("s_sub_u32 s44, s42, 688")
    k("s_cmp_lt_u32 s44, 256")
    k(f"s_cbranch_scc1 {L2}")
    srd(k, SRP, A_WOUT, 688*1024)
    k("s_sub_u32 s44, s44, 256")
    k("s_cmp_lt_u32 s44, 352")
    k(f"s_cbranch_scc0 {L5}")
    k(f"s_mul_i32 s45, s44, {(65536 + 21)//22}")
    k("s_lshr_b32 s45, s45, 16")
    k("s_mul_i32 s46, s45, 22")
    k("s_sub_u32 s46, s44, s46")
    sadd(k, RDST, (45, '*45056'), (46, 11), const=W_WOUT)
    k(f"s_branch {L3}")
    k(f"{L2}:")
    srd(k, SRP, A_WO, 512*1024)
    k("s_lshr_b32 s45, s44, 4")
    k("s_and_b32 s46, s44, 15")
    sadd(k, RDST, (44, 11), const=W_WO)
    k(f"{L3}:")
    k(f"s_mov_b32 s{RT}, 1")
    sadd(k, RO, (46, 15), (45, 6))
    k(f"s_add_u32 s{RO+1}, s{RO}, 16384")
    k(f"s_branch {L5}")
    k(f"{L1}:")
    srd(k, SRP, A_WIN, 512*2752)
    k(f"s_mov_b32 s{RT}, 2")
    k("s_mov_b32 s47, 2752")
    k("v_lshrrev_b32 v16, 1, v1")
    k(f"v_mul_lo_u32 v{RV}, v16, s47")
    k("v_and_b32 v17, 1, v1")
    k(f"v_lshl_add_u32 v{RV}, v17, 4, v{RV}")
    sadd(k, RO, (S_W, f'*{64*2752}'), (2, 5))
    k(f"s_add_u32 s{RO+1}, s{RO}, {32*2752}")
    sadd(k, RDST, (2, 14), (S_W, 11), const=W_WIN)
    k(f"{L5}:")
    srd(k, SRS, A_WSP, 2048*4096)
    k(f"v_lshlrev_b32 v{WV}, 12, v10")
    k("v_lshrrev_b32 v16, 4, v1")
    k(f"v_lshl_add_u32 v{WV}, v16, 4, v{WV}")
    k("s_lshr_b32 s39, s42, 4")
    k("s_and_b32 s40, s42, 15")
    sadd(k, 43, (39, 16), (40, 8))
    SPS = 224
    def rest2():
        for i in range(2, 8): wqdma(i)
    def late_loads():
        vm(f"buffer_load_dwordx4 {vr(RES,4)}, v7, {sr(SX,4)}, s52 offen", 'res')
    def rp_loads():
        for q in range(2): vm(f"buffer_load_dwordx4 {vr(RP+4*q,4)}, v{RV}, {sr(SRP,4)}, s{RO+q} offen", 'rp')
    k("s_waitcnt lgkmcnt(0)")
    G_, JJ, SC = 24, 25, 26
    tr_lane_parts(k, G_, JJ, SC, 17)
    k("v_and_b32 v17, 7, v1")
    k("v_bfe_u32 v18, v1, 3, 1")
    k(f"v_xor_b32 v19, v{G_}, v17")
    k("v_xor_b32 v19, v19, v18")
    k("v_lshlrev_b32 v19, 4, v19")
    k("v_lshl_add_u32 v19, v17, 7, v19")
    k("v_lshl_add_u32 v19, v18, 10, v19")
    sadd(k, 39, (34, 0), (TU, 11))
    k("v_add_u32 v19, s39, v19")
    k("v_xor_b32 v20, 64, v19")
    k(f"v_lshl_add_u32 v21, v{G_}, 3, v{JJ}")
    k("v_lshlrev_b32 v21, 5, v21")
    k("v_and_b32 v22, 3, v1")
    k("v_lshl_add_u32 v21, v22, 3, v21")
    k(f"s_add_u32 s39, s37, {L_W}")
    k("v_add_u32 v21, s39, v21")
    XF, WF, KA_, CSA, SMA, SS = 80, 112, 64, 68, 72, 76
    ON4 = 36
    for i in range(13): k(f"v_mov_b32 v{KA_+i}, 0")
    for i in range(4): k(f"v_mov_b32 v{ON4+i}, s{ONES}")
    k("v_add_u32 v22, s39, v2")
    k("v_lshlrev_b32 v23, 3, v10")
    k(f"v_add_u32 v23, {L_KS}, v23")
    k(f"s_lshl_b32 s39, s{S_W}, 7")
    k("v_add_u32 v18, s39, v23")
    LCa, LCb = k.label(), k.label()
    k(f"s_cmp_eq_u32 s{S_W}, 0")
    k(f"s_cbranch_scc1 {LCa}")
    vm.wait('xc')
    k(f"s_branch {LCb}")
    k(f"{LCa}:")
    k("s_waitcnt vmcnt(5)")
    k(f"buffer_load_dwordx2 v[28:29], v15, {sr(SDBG,4)}, 0 offen sc1")
    k(f"{LCb}:")
    k.stamp('crit own')
    k(f"ds_read_b128 {vr(XF,4)}, v19")
    k(f"ds_read_b64_tr_b16 {vr(WF,2)}, v21")
    k(f"ds_read_b64_tr_b16 {vr(WF+2,2)}, v21 offset:128")
    k(f"ds_read_b128 {vr(XF+4,4)}, v20")
    k(f"ds_read_b64_tr_b16 {vr(WF+4,2)}, v21 offset:1024")
    k(f"ds_read_b64_tr_b16 {vr(WF+6,2)}, v21 offset:1152")
    for s_ in range(2):
        k(f"s_waitcnt lgkmcnt({3-3*s_})")
        k(f"{MF16} {vr(KA_,4)}, {vr(WF+4*s_,4)}, {vr(XF+4*s_,4)}, {vr(KA_,4)}")
        k(f"{MF16} {vr(CSA,4)}, {vr(WF+4*s_,4)}, {vr(ON4,4)}, {vr(CSA,4)}")
        k(f"{MF16} {vr(SMA,4)}, {vr(ON4,4)}, {vr(XF+4*s_,4)}, {vr(SMA,4)}")
        for q in range(4): k(f"v_dot2_f32_bf16 v{SS}, v{XF+4*s_+q}, v{XF+4*s_+q}, v{SS}")
    swap_add(k, SS, 17, 16); swap_add(k, SS, 17, 32)
    k(f"ds_write_b128 v22, {vr(KA_,4)}")
    k(f"ds_write_b128 v22, {vr(CSA,4)} offset:1024")
    k(f"v_mov_b32 v{SMA+1}, v{SS}")
    k(f"ds_write_b64 v18, {vr(SMA,2)}")
    k("s_waitcnt lgkmcnt(0)")
    k.stamp('kv mfma')
    k("s_barrier")
    for i in range(2, 8): xdma(i)
    LNOKV, LVW, LKVD = k.label(), k.label(), k.label()
    k(f"s_cmp_lg_u32 s{S_W}, 0")
    k(f"s_cbranch_scc1 {LNOKV}")
    k("s_setprio 3")
    PA, PC, PS = 80, 112, 144
    for w_ in range(1, 8): k(f"ds_read_b64 {vr(PS+2*w_,2)}, v23 offset:{w_*128}")
    for w_ in range(1, 8): k(f"ds_read_b128 {vr(PC+4*w_,4)}, v22 offset:{w_*2048+1024}")
    swap23(k, 27, 1, 20)
    k(f"s_lshr_b32 s39, s{TU}, 1")
    sadd(k, 40, (S_G, 11), (39, 10))
    k(f"s_and_b32 s39, s{TU}, 1")
    k(f"v_and_b32 v20, 1, v{G_}")
    k("v_lshlrev_b32 v20, 3, v20")
    k("v_and_b32 v27, 15, v27")
    k("v_lshl_add_u32 v20, v27, 4, v20")
    k("s_waitcnt lgkmcnt(7)")
    for w_ in range(1, 8): k(f"ds_read_b128 {vr(PA+4*w_,4)}, v22 offset:{w_*2048}")
    for (a_, b_) in ((1, 2), (3, 4), (5, 6), (1, 3), (5, 7), (1, 5)): k(pk('add', PS+2*a_, PS+2*a_, PS+2*b_))
    k(pk('add', SMA, SMA, PS+2))
    stats_mu_r(k, SMA, SMA+1, 34, 35, 512, 21)
    k("s_waitcnt lgkmcnt(7)")
    def tree(P_, dst):
        for (a_, b_) in ((1, 2), (3, 4), (5, 6), (1, 3), (5, 7), (1, 5)):
            for h in (0, 2): k(pk('add', P_+4*a_+h, P_+4*a_+h, P_+4*b_+h))
        for h in (0, 2): k(pk('add', dst+h, dst+h, P_+4+h))
    tree(PC, CSA)
    for h in (0, 2): k(pk('fma', KA_+h, 34, CSA+h, KA_+h, "op_sel_hi:[0,1,1] neg_lo:[1,0,0] neg_hi:[1,0,0]"))
    k("s_waitcnt lgkmcnt(0)")
    tree(PA, KA_)
    for h in (0, 2): k(pk('mul', KA_+h, KA_+h, 34, None, "op_sel:[0,1] op_sel_hi:[1,1]"))
    for i in range(2): k(f"v_cvt_pk_bf16_f32 v{XF+i}, v{KA_+2*i}, v{KA_+2*i+1}")
    k("v_mov_b32 v30, 0")
    k(f"s_cmp_lg_u32 s{KIND}, 0")
    k(f"s_cbranch_scc1 {LVW}")
    k("v_lshl_add_u32 v20, v9, 9, v20")
    k("s_lshl_b32 s39, s39, 8")
    k("s_add_u32 s40, s40, s39")
    k(f"buffer_store_dwordx2 {vr(XF,2)}, v20, {WS}, s40 offen sc1")
    for q in range(2): k(f"v_dot2_f32_bf16 v30, v{XF+q}, v{XF+q}, v30")
    swap_add(k, 30, 21, 16); swap_add(k, 30, 21, 32)
    row_reduce(k, 30, "v_max_f32")
    k(f"s_branch {LKVD}")
    k(f"{LVW}:")
    k("v_lshlrev_b32 v17, 5, v10")
    k(f"v_lshl_add_u32 v17, v{G_}, 3, v17")
    k(f"v_add_u32 v17, {L_W}, v17")
    k(f"ds_write_b64 v17, {vr(XF,2)}")
    k("v_lshlrev_b32 v17, 3, v1")
    k(f"v_add_u32 v17, {L_W}, v17")
    k("v_lshl_add_u32 v20, v9, 8, v20")
    k("s_lshl_b32 s39, s39, 9")
    k("s_add_u32 s40, s40, s39")
    k(f"s_add_u32 s40, s40, {W_V}")
    k("s_waitcnt lgkmcnt(0)")
    k(f"ds_read_b64_tr_b16 {vr(XF+2,2)}, v17")
    k("s_waitcnt lgkmcnt(0)")
    k(f"buffer_store_dwordx2 {vr(XF+2,2)}, v20, {WS}, s40 offen sc1")
    k(f"{LKVD}:")
    k(f"{LNOKV}:")
    rest2()
    LF0 = k.label()
    k(f"s_cmp_lg_u32 s{S_W}, 0")
    k(f"s_cbranch_scc1 {LF0}")
    k("s_waitcnt vmcnt(6)")
    LNa, LNb = k.label("np"), k.label("npx")
    k(f"s_mov_b32 s48, {SPIN}")
    k(f"{LNa}:")
    k("v_cmp_ne_u32 vcc, 0, v28")
    k(f"s_cbranch_vccnz {LNb}")
    k("s_sub_u32 s48, s48, 1")
    k("s_cmp_eq_u32 s48, 0")
    k(f"s_cbranch_scc1 {LNb}")
    k(f"buffer_load_dwordx2 v[28:29], v15, {sr(SDBG,4)}, 0 offen sc1")
    k("s_waitcnt vmcnt(0)")
    k(f"s_branch {LNa}")
    k(f"{LNb}:")
    sadd(k, 41, (S_G, 7), (S_J, 4), const=W_FLAG + F_S)
    k("v_mov_b32 v31, 0")
    k("s_mov_b64 exec, 1")
    k(f"buffer_store_dwordx4 v[28:31], v15, {WS}, s41 offen sc1")
    k("s_mov_b64 exec, -1")
    k(f"v_readfirstlane_b32 s{NON}, v28"); k(f"v_readfirstlane_b32 s{NON+1}, v29")
    k("s_setprio 0")
    k(f"{LF0}:")
    k.stamp('kv pub')
    k("v_lshlrev_b32 v16, 7, v1")
    k("v_bfe_u32 v17, v1, 1, 3")
    k("v_lshl_add_u32 v16, v17, 4, v16")
    k("v_add_u32 v16, s34, v16")
    for c in range(1, 8): k(f"v_xor_b32 v{16+c}, {c*16}, v16")
    for r in range(4): k(f"v_mov_b32 v{64+r}, 0")
    vm.wait('x')
    k.stamp('x own')
    for c in range(8): k(f"ds_read_b128 {vr(XF+4*c,4)}, v{16+c}")
    for c in range(8):
        k(f"s_waitcnt lgkmcnt({7-c})")
        for q in range(4):
            x = XF + 4*c + q
            k(f"v_dot2_f32_bf16 v{64+2*(q%2)}, v{x}, s{ONES}, v{64+2*(q%2)}")
            k(f"v_dot2_f32_bf16 v{65+2*(q%2)}, v{x}, v{x}, v{65+2*(q%2)}")
    k("v_lshlrev_b32 v16, 6, v1")
    sadd(k, 39, (S_W, 3), const=L_ST)
    k("v_add_u32 v16, s39, v16")
    k(pk('add', 64, 64, 66))
    k("ds_write_b64 v16, v[64:65]")
    XA0, XA1, WA = 11, 12, 13
    k("v_and_b32 v16, 7, v1")
    k("v_bfe_u32 v17, v1, 3, 2")
    k("v_and_b32 v18, 1, v17")
    k("v_xor_b32 v18, v18, v16")
    k("v_xor_b32 v18, v18, v9")
    k("v_lshlrev_b32 v18, 4, v18")
    k("v_lshl_add_u32 v18, v16, 7, v18")
    k("v_lshl_add_u32 v18, v17, 10, v18")
    sadd(k, 39, (KP, 5), (TB, 12))
    k(f"v_xor_b32 v{XA0}, s39, v18")
    k(f"v_xor_b32 v{XA1}, 64, v{XA0}")
    k(f"v_lshrrev_b32 v17, 1, v{G_}")
    k(f"v_lshl_add_u32 v17, v17, 3, v{JJ}")
    k(f"v_and_b32 v19, 1, v{G_}")
    k("v_lshlrev_b32 v20, 1, v19")
    k(f"v_lshrrev_b32 v21, 1, v{SC}")
    k("v_add_u32 v20, v20, v21")
    k(f"s_lshl_b32 s39, s{NB}, 2")
    k("v_add_u32 v20, s39, v20")
    k(f"v_lshrrev_b32 v21, 1, v{JJ}")
    k("v_lshlrev_b32 v21, 2, v21")
    k("v_xor_b32 v20, v20, v21")
    k("v_lshlrev_b32 v20, 4, v20")
    k("v_lshl_add_u32 v20, v17, 7, v20")
    k(f"v_and_b32 v21, 1, v{SC}")
    k("v_lshl_add_u32 v20, v21, 3, v20")
    sadd(k, 39, (KP, 11), const=L_WQ)
    k(f"v_add_u32 v{WA}, s39, v20")
    swap23(k, 27, 8, 20)
    ACC, CS = 48, 32
    for i in range(16): k(f"v_mov_b32 v{ACC+i}, 0")
    k(f"v_mov_b32 v{CS}, 0"); k(f"v_mov_b32 v{CS+1}, 0")
    def qreads(i):
        a = XA0 if i % 2 == 0 else XA1
        k(f"ds_read_b128 {vr(XF+4*(i%8),4)}, v{a} offset:{(i//2)*8192}")
        k(f"ds_read_b64_tr_b16 {vr(WF+4*(i%8),2)}, v{WA} offset:{i*4096}")
        k(f"ds_read_b64_tr_b16 {vr(WF+4*(i%8)+2,2)}, v{WA} offset:{i*4096+512}")
    def qhalf(i0):
        for i in range(i0, i0+5): qreads(i)
        for i in range(i0, i0+8):
            if i + 5 < i0 + 8:
                k("s_waitcnt lgkmcnt(12)"); qreads(i+5)
            else:
                k(f"s_waitcnt lgkmcnt({3*(i0+7-i)})")
            k(f"{MF32} {vr(ACC,16)}, {vr(WF+4*(i%8),4)}, {vr(XF+4*(i%8),4)}, {vr(ACC,16)}")
            for q in range(4): k(f"v_dot2_f32_bf16 v{CS+q%2}, v{WF+4*(i%8)+q}, s{ONES}, v{CS+q%2}")
    S0, S1, OA, OB = 48, 64, 80, 96
    QA, QB, KF, VF, P, V0B = 16, 20, 24, 28, 36, 240
    KADR, VADR = 4, 5
    KH = KP
    k(f"s_lshl_b32 s36, s{KH}, 15")
    k(f"v_add_u32 v{KADR}, s36, v2")
    k("v_lshlrev_b32 v3, 4, v10")
    k("v_lshl_add_u32 v3, v9, 8, v3")
    k("v_add_u32 v3, 0x18000, v3")
    k(f"v_add_u32 v{VADR}, s36, v3")
    k("v_and_b32 v6, 27, v1")
    k("v_cmp_eq_u32 vcc, 16, v6")
    k(f"v_mov_b32 v6, s{ONES}")
    k("v_cndmask_b32 v6, 0, v6, vcc")
    for i in range(4): k(f"v_mov_b32 v{V0B+i}, v6")
    sadd(k, 35, (KH, 15), (S_W, 10))
    k("s_and_b32 s35, s35, 0x8fff")
    EXM = 44
    k(f"s_mov_b32 s{EXM}, {VMASK}")
    k(f"s_mov_b32 s{EXM+1}, {VMASK}")
    k("s_waitcnt lgkmcnt(0)")
    vm.wait('wqa')
    k.stamp('wqa own')
    k("s_barrier")
    k.stamp('B1p')
    sadd(k, 39, (TB, 11), const=L_ST)
    k("v_lshlrev_b32 v21, 6, v8")
    k("v_add_u32 v21, s39, v21")
    for q in range(4): k(f"ds_read_b128 {vr(144+4*q,4)}, v21 offset:{q*16}")
    MU, RS = 34, 35
    with Cap(k) as cq: qhalf(0)
    with Cap(k) as cs_:
        for (a_, b_) in ((144, 146), (148, 150), (152, 154), (156, 158), (144, 148), (152, 156), (144, 152)): k(pk('add', a_, a_, b_))
        stats_mu_r(k, 144, 145, MU, RS, 512, 20)
        k(f"v_mul_f32 v{RS}, {hex(f2u(QSCALE))}, v{RS}")
    h_ = len(cq.lines) // 2
    k.lines += cq.lines[:h_] + interleave(cq.lines[h_:], cs_.lines)
    k.stamp('qh0')
    vm.wait('wqb')
    k("s_barrier")
    k.stamp('B2p')
    LRp = k.label()
    k(f"s_cmp_eq_u32 s{S_W}, 0")
    k(f"s_cbranch_scc1 {LRp}")
    rp_loads()
    k(f"{LRp}:")
    FL = 160
    def s0_issue():
        k(f"s_mov_b32 s39, {W_FLAG + F_S}")
        for q in range(4): k(f"buffer_load_dwordx4 {vr(FL+4*q,4)}, v2, {WS}, s39 offen offset:{q*1024} sc1")
    def s0_check():
        k("s_waitcnt vmcnt(0)")
        for q in range(4):
            k(f"v_xor_b32 v{FL+4*q}, s{NON}, v{FL+4*q}")
            k(f"v_xor_b32 v{FL+4*q+1}, s{NON+1}, v{FL+4*q+1}")
        k(f"v_or3_b32 v{FL}, v{FL}, v{FL+1}, v{FL+4}")
        k(f"v_or3_b32 v{FL+1}, v{FL+5}, v{FL+8}, v{FL+9}")
        k(f"v_or3_b32 v{FL}, v{FL}, v{FL+12}, v{FL+13}")
        k(f"v_or_b32 v{FL}, v{FL}, v{FL+1}")
        k(f"v_cmp_ne_u32 vcc, 0, v{FL}")
    def s0_kmax():
        k(f"v_max_f32 v{FL+2}, v{FL+2}, v{FL+6}")
        k(f"v_max3_f32 v{FL+2}, v{FL+2}, v{FL+10}, v{FL+14}")
        row_reduce(k, FL+2, "v_max_f32"); swap_add(k, FL+2, FL, 16, "v_max_f32"); swap_add(k, FL+2, FL, 32, "v_max_f32")
        k(f"v_mov_b32 v{FL+3}, 1")
        k(f"v_mov_b32 v{FL}, {L_KM}")
        k(f"ds_write_b64 v{FL}, {vr(FL+2,2)}")
    with Cap(k) as cq: qhalf(8)
    h_ = len(cq.lines) * OPT.get('s0at', 4) // 8
    k.lines += cq.lines[:h_]
    LE0 = k.label()
    k(f"s_cmp_lg_u32 s{S_W}, 0")
    k(f"s_cbranch_scc1 {LE0}")
    s0_issue()
    k(f"{LE0}:")
    k.lines += cq.lines[h_:]
    k.stamp('Q mfma')
    sadd(k, 39, (S_W, 12), const=L_WQ)
    k("v_add_u32 v22, s39, v2")
    k(f"v_add_f32 v{CS}, v{CS}, v{CS+1}")
    swap_add(k, CS, 20)
    sadd(k, 39, (KP, 8), (NB, 7), const=L_CSQ)
    k("v_lshlrev_b32 v20, 2, v27")
    k("v_add_u32 v20, s39, v20")
    k(f"ds_write_b32 v20, v{CS}")
    for q in range(4): k(f"ds_write_b128 v22, {vr(ACC+4*q,4)} offset:{q*1024}")
    k("v_xor_b32 v22, 0x4000, v22")
    sadd(k, 39, (NB, 7), const=L_CSQ)
    k("v_lshlrev_b32 v20, 5, v9")
    k("v_add_u32 v20, s39, v20")
    k(f"v_mov_b32 v21, {L_KM}")
    LE1, LE2 = k.label(), k.label()
    k(f"s_cmp_lg_u32 s{S_W}, 0")
    k(f"s_cbranch_scc1 {LE1}")
    s0_check()
    rp_loads()
    k(f"s_cbranch_vccz {LE2}")
    k(f"v_mov_b32 v{FL+3}, 0")
    k(f"ds_write_b64 v21, {vr(FL+2,2)}")
    k(f"s_branch {LE1}")
    k(f"{LE2}:")
    s0_kmax()
    k(f"{LE1}:")
    k("s_waitcnt lgkmcnt(0)")
    k.stamp('preB3')
    k("s_barrier")
    k("ds_read_b64 v[30:31], v21")
    for h in range(2):
        for p in range(2):
            k(f"ds_read_b128 {vr(WF+16*p+8*h,4)}, v20 offset:{p*256 + h*64}")
            k(f"ds_read_b128 {vr(WF+16*p+8*h+4,4)}, v20 offset:{p*256 + h*64 + 16}")
    for q in range(4): k(f"ds_read_b128 {vr(XF+4*q,4)}, v22 offset:{q*1024}")
    k("s_waitcnt lgkmcnt(12)")
    k("v_readfirstlane_b32 s88, v31")
    vm.q = []
    def kvdma(i):
        k(f"s_add_u32 s36, s35, {(i%2)*65536 + (i//2)*4096}")
        k(f"s_add_u32 m0, s35, {(i%2)*98304 + (i//2)*4096}")
        vm(f"buffer_load_dwordx4 v2, {WS}, s36 offen sc1 lds", f'kv{i//2}')
    LL0 = k.label()
    k("s_cmp_eq_u32 s88, 0")
    k(f"s_cbranch_scc1 {LL0}")
    for i in range(4): kvdma(i)
    k(f"{LL0}:")
    k("s_waitcnt lgkmcnt(4)")
    for i in range(0, 16, 2): k(pk('add', WF+i, WF+i, WF+16+i))
    for i in range(0, 16, 2): k(pk('fma', ACC+i, MU, WF+i, ACC+i, "op_sel_hi:[0,1,1] neg_lo:[1,0,0] neg_hi:[1,0,0]"))
    k("s_waitcnt lgkmcnt(0)")
    for i in range(0, 16, 2): k(pk('add', ACC+i, ACC+i, XF+i))
    for i in range(0, 16, 2): k(pk('mul', ACC+i, ACC+i, MU, None, "op_sel:[0,1] op_sel_hi:[1,1]"))
    k(f"v_mov_b32 v11, v{G_}"); k(f"v_mov_b32 v12, v{JJ}"); k(f"v_mov_b32 v13, v{SC}")
    G_, JJ, SC = 11, 12, 13
    k("v_mov_b32 v14, v30")
    for i in range(8): k(f"v_cvt_pk_bf16_f32 v{QA+i}, v{ACC+2*i}, v{ACC+2*i+1}")
    for i in range(8): k(f"v_mov_b32 v{VF+i}, v6")
    k("v_mov_b32 v6, 0"); k("v_mov_b32 v40, 0")
    for q in range(4):
        k(f"v_dot2_f32_bf16 v6, v{QA+q}, v{QA+q}, v6")
        k(f"v_dot2_f32_bf16 v40, v{QB+q}, v{QB+q}, v40")
    swap_add(k, 6, 38); swap_add(k, 40, 39)
    k("v_max_f32 v6, v6, v40")
    row_reduce(k, 6, "v_max_f32"); swap_add(k, 6, 38, 16, "v_max_f32")
    k.stamp('Q done')
    LL1, LP, LX, LB = k.label(), k.label("p0"), k.label("p0x"), k.label()
    k("s_cmp_lg_u32 s88, 0")
    k(f"s_cbranch_scc1 {LL1}")
    k(f"s_cmp_lg_u32 s{S_W}, 0")
    k(f"s_cbranch_scc1 {LB}")
    k(f"s_mov_b32 s48, {SPIN}")
    k(f"{LP}:")
    s0_issue()
    s0_check()
    k(f"s_cbranch_vccz {LX}")
    k("s_sub_u32 s48, s48, 1")
    k("s_sleep 4")
    k("s_cmp_lg_u32 s48, 0")
    k(f"s_cbranch_scc1 {LP}")
    k(f"{LX}:")
    s0_kmax()
    k("s_waitcnt lgkmcnt(0)")
    k(f"{LB}:")
    k("s_barrier")
    vm.q = []
    for i in range(4): kvdma(i)
    k(f"v_mov_b32 v14, {L_KM}")
    k("ds_read_b32 v14, v14")
    k("s_waitcnt lgkmcnt(0)")
    k(f"{LL1}:")
    k.stamp('S0')
    late_loads()
    k("s_getreg_b32 s39, hwreg(HW_REG_XCC_ID, 0, 4)")
    k("s_add_u32 s39, s39, 1")
    k("v_mov_b32 v38, s39")
    sadd(k, 39, (S_G, 12), (S_J, 2), const=W_FLAG + F_X)
    k("s_mov_b64 exec, 1")
    vm(f"buffer_store_dword v38, v15, {WS}, s39 offen sc1", 'xcc')
    k("s_mov_b64 exec, -1")
    k("v_mul_f32 v6, v6, v14")
    k(f"v_mov_b32 v14, {hex(f2u(-1.0 if OPT['force_slow'] else 1560.0))}")
    k("v_cmp_nle_f32 vcc, v6, v14")
    k("s_cmp_lg_u64 vcc, 0")
    k("s_cselect_b32 s58, 1, 0")
    vm.wait('kv1')
    k("s_barrier")
    k.stamp('kv01')
    V0 = [VF, V0B]
    def unit(S, Snext, Qnext, Oprev, Ocur, isA, t, extra):
        if not isA: k("s_waitcnt lgkmcnt(0)")
        k(f"{MF32} {vr(Snext,16)}, {vr(KF,4)}, {vr(Qnext,4)}, 0")
        k(f"v_exp_f32 v{S}, v{S}")
        k(f"v_exp_f32 v{S+1}, v{S+1}")
        for i in range(1, 8):
            k(f"v_exp_f32 v{S+2*i}, v{S+2*i}")
            k(f"v_exp_f32 v{S+2*i+1}, v{S+2*i+1}")
            if i == 1:
                if not (isA and t == 0): k(f"{MF32} {vr(Oprev,16)}, {vr(VF+4,4)}, {vr(P+4,4)}, {vr(Oprev,16)}")
                if isA:
                    k(f"ds_read_b128 {vr(KF,4)}, v{KADR} offset:{(t+1)*1024}")
                    k(f"s_mov_b64 exec, {sr(EXM,2)}")
                    k(f"ds_read_b128 {vr(VF+4,4)}, v{VADR} offset:{t*1024 + 512}")
                    k(f"ds_read_b128 {vr(V0[(t+1)%2],4)}, v{VADR} offset:{(t+1)*1024}")
                    k("s_mov_b64 exec, -1")
            if i == 5:
                k(f"{MF32} {vr(Ocur,16)}, {vr(V0[t%2],4)}, {vr(P,4)}, {vr(Ocur,16) if t else 0}")
            k(f"v_cvt_pk_bf16_f32 v{P+i-1}, v{S+2*i-2}, v{S+2*i-1}")
            if i in slots_ and extra: extra.pop(0)()
        k(f"v_cvt_pk_bf16_f32 v{P+7}, v{S+14}, v{S+15}")
    slots_ = (3, 6)
    PH = [0]; NBAR = [0]
    def tiles(t0, n, extra=None):
        for t in range(t0, t0+n):
            if OPT.get('prio'):
                ph = (t - PH[0]) % 4
                if ph == 0 and t > PH[0]: k("s_barrier"); NBAR[0] += 1
                k(f"s_setprio {3 - ph}")
            unit(S0, S1, QB, OB, OA, True, t, extra)
            unit(S1, S0, QA, OA, OB, False, t, extra)
        while extra: extra.pop(0)()
    SLOW, JOIN = k.label("slow"), k.label("join")
    nop_ = lambda: None
    def early_list():
        def sent(setup, first=False):
            def f():
                if first:
                    for q in range(4): k(f"v_mov_b32 v{SNT+q}, -1")
                setup()
                vm(f"buffer_store_dwordx4 {vr(SNT,4)}, v2, {WS}, s46 offen sc1", 'snt')
            return f
        sl = []
        ex = []
        for i in range(4, 16): ex += [(lambda i=i: kvdma(i)), sl.pop(0) if (sl and i >= 8) else nop_]
        return ex
    def sent_list():
        if not OPT.get('land'): return []
        def sent(setup, first=False):
            def f():
                if first:
                    for q in range(4): k(f"v_mov_b32 v{SNT+q}, -1")
                setup()
                vm(f"buffer_store_dwordx4 {vr(SNT,4)}, v2, {WS}, s46 offen sc1", 'snt')
            return f
        return [sent(a, i == 0) for i, a in enumerate(own_addr)]
    SNT = 248
    own_addr = [lambda: sadd(k, 46, (S_G, 16), (TB, 15), (S_J, 12), (NB, 11), (KH, 10), const=W_O),
                lambda: sadd(k, 46, (S_G, 16), (KQ, 14), (S_J, 11), (NB, 10), const=W_H),
                lambda: sadd(k, 46, (S_G, '*90112'), (NB, '*45056'), (SB, 10), (KQ, 10), const=W_Y),
                lambda: sadd(k, 46, (S_G, '*90112'), (NB, '*45056'), (SB, 10), (97, 10), const=W_Y + 4096)]
    z2_addr = [lambda: sadd(k, 46, (SB, 16), (KQ, 16), (S_G, 11), (NB, 10), const=W_Z2),
               lambda: sadd(k, 46, (SB, 16), (TB, 16), (S_G, 11), (NB, 10), const=W_Z2 + 4*65536)]
    nop_ = lambda: None
    def wsp_list():
        ex = []
        for q in range(4):
            ex += [(lambda q=q: vm(f"buffer_load_dwordx4 {vr(SPS+4*q,4)}, v{WV}, {sr(SRS,4)}, s43 offen offset:{q*64}", 'wsp')), nop_, nop_, nop_]
        return ex
    DUM = 248
    def warm(setup, n, step=1024):
        def mk(i):
            def f():
                if i == 0: setup()
                elif i % 4 == 0: k(f"s_add_u32 s46, s46, {4*step}")
                vm(f"buffer_load_dwordx4 {vr(DUM,4)}, v2, {WS}, s46 offen offset:{(i%4)*step} sc1", 'dum')
            return f
        return [mk(i) for i in range(n)]
    L_RS = 66560
    FR, RT0 = 128, 136
    def duty2():
        LR2, LRD, LRE = k.label(), k.label(), k.label()
        sadd(k, 41, (S_W, 11), const=L_RS)
        k(f"v_add_u32 v{RT0}, s41, v2")
        k(f"s_cmp_eq_u32 s{RT}, 0")
        k(f"s_cbranch_scc1 {LRD}")
        for i in range(2): k(f"ds_write_b128 v{RT0}, {vr(RP+4*i,4)} offset:{i*1024}")
        k(f"s_cmp_eq_u32 s{RT}, 2")
        k(f"s_cbranch_scc1 {LR2}")
        a, b = RT0+1, RT0+2
        k(f"v_lshrrev_b32 v{a}, 1, v{G_}")
        k(f"v_lshl_add_u32 v{a}, v{a}, 3, v{JJ}")
        k(f"v_lshlrev_b32 v{a}, 6, v{a}")
        k(f"v_and_b32 v{b}, 1, v{G_}")
        k(f"v_lshl_add_u32 v{a}, v{b}, 5, v{a}")
        k(f"v_lshl_add_u32 v{a}, v{SC}, 3, v{a}")
        k(f"v_add_u32 v{a}, s41, v{a}")
        k("s_waitcnt lgkmcnt(0)")
        for i in range(2):
            k(f"ds_read_b64_tr_b16 {vr(FR+4*i,2)}, v{a} offset:{i*1024}")
            k(f"ds_read_b64_tr_b16 {vr(FR+4*i+2,2)}, v{a} offset:{i*1024+256}")
        k("s_waitcnt lgkmcnt(0)")
        for i in range(2): k(f"buffer_store_dwordx4 {vr(FR+4*i,4)}, v2, {WS}, s{RDST} offen offset:{i*1024} sc1")
        k(f"s_branch {LRD}")
        k(f"{LR2}:")
        k(f"v_lshl_add_u32 v{a}, v{G_}, 3, v{JJ}")
        k(f"v_lshlrev_b32 v{a}, 5, v{a}")
        k(f"v_and_b32 v{b}, 3, v1")
        k(f"v_lshl_add_u32 v{a}, v{b}, 3, v{a}")
        k(f"v_add_u32 v{a}, s41, v{a}")
        k("s_waitcnt lgkmcnt(0)")
        for kb in range(2):
            k(f"ds_read_b64_tr_b16 {vr(FR+4*kb,2)}, v{a} offset:{kb*1024}")
            k(f"ds_read_b64_tr_b16 {vr(FR+4*kb+2,2)}, v{a} offset:{kb*1024+128}")
        k(f"v_mov_b32 v{b}, 0")
        k(f"v_lshlrev_b32 v{a}, 5, v10")
        sadd(k, 39, (S_W, 2), const=L_RS + 16384)
        k(f"v_add_u32 v{a}, s39, v{a}")
        k("s_waitcnt lgkmcnt(0)")
        for q in range(8): k(f"v_dot2_f32_bf16 v{b}, v{FR+q}, s{ONES}, v{b}")
        swap_add(k, b, RT0+3, 32); swap_add(k, b, RT0+3, 16)
        k(f"ds_write_b32 v{a}, v{b}")
        k("s_waitcnt lgkmcnt(0)")
        k(f"{LRD}:")
        k("s_barrier")
        k(f"s_cmp_lg_u32 s{RT}, 2")
        k(f"s_cbranch_scc1 {LRE}")
        k(f"v_lshlrev_b32 v{a}, 5, v10")
        k(f"v_add_u32 v{a}, {L_RS + 16384}, v{a}")
        c = RT0 + 4
        k(f"ds_read_b128 {vr(c,4)}, v{a}")
        k(f"ds_read_b128 {vr(c+4,4)}, v{a} offset:16")
        k("s_waitcnt lgkmcnt(0)")
        k(pk('add', c, c, c+2)); k(pk('add', c+4, c+4, c+6)); k(pk('add', c, c, c+4))
        k(f"v_add_f32 v{c}, v{c}, v{c+1}")
        k(f"v_mul_f32 v{c}, {hex(f2u(1.0/512))}, v{c}")
        for q in range(8):
            r = FR + q; t = c + 2 + 2*(q % 3)
            k(f"v_lshlrev_b32 v{t}, 16, v{r}")
            k(f"v_and_b32 v{t+1}, 0xffff0000, v{r}")
            k(pk('add', t, t, c, None, "op_sel_hi:[1,0] neg_lo:[0,1] neg_hi:[0,1]"))
            k(f"v_cvt_pk_bf16_f32 v{r}, v{t}, v{t+1}")
        for kb in range(2): k(f"buffer_store_dwordx4 {vr(FR+4*kb,4)}, v2, {WS}, s{RDST} offen offset:{kb*1024} sc1")
        k(f"{LRE}:")
        vm.q.append('st0')
    def raise_flag(foff, sync=True, wait=None):
        if sync:
            if wait: vm.wait(wait)
            else: vm.all()
            k("s_barrier")
        L = k.label()
        k(f"s_cmp_lg_u32 s{S_W}, 0")
        k(f"s_cbranch_scc1 {L}")
        sadd(k, 39, (2, 2), const=W_FLAG + foff)
        k("v_mov_b32 v14, 1")
        k("s_mov_b64 exec, 1")
        k(f"buffer_store_dword v14, v15, {WS}, s39 offen sc1")
        k("s_mov_b64 exec, -1")
        k(f"{L}:")
    def wsp_store():
        vm.wait('wsp')
        sadd(k, 39, (42, 12), const=W_WSP)
        for q in range(4): vm(f"buffer_store_dwordx4 {vr(SPS+4*q,4)}, v2, {WS}, s39 offen offset:{q*1024} sc1", 'st')
    def chk_loads(foff, xcc):
        k(f"s_mov_b32 s39, {W_FLAG + foff}")
        k(f"buffer_load_dwordx4 {vr(RP,4)}, v2, {WS}, s39 offen sc1")
        if xcc: k(f"buffer_load_dword v254, v13, {WS}, s89 offen sc1")
    def chk_issue(foff, xcc=False):
        L = k.label()
        if xcc:
            sadd(k, 89, (S_G, 12), const=W_FLAG + F_X)
            k("v_and_b32 v13, 7, v1")
            k("v_lshlrev_b32 v13, 2, v13")
        k(f"s_cmp_lg_u32 s{S_W}, 0")
        k(f"s_cbranch_scc1 {L}")
        chk_loads(foff, xcc)
        k(f"{L}:")
    def chk(foff, xcc=False, bar=True):
        LPp, LXx = k.label("wp"), k.label("wpx")
        k(f"s_cmp_lg_u32 s{S_W}, 0")
        k(f"s_cbranch_scc1 {LXx}")
        k(f"s_mov_b32 s48, {SPIN}")
        k(f"{LPp}:")
        k("s_waitcnt vmcnt(0)")
        k(f"v_min_u32 v14, v{RP}, v{RP+1}")
        k(f"v_min3_u32 v14, v14, v{RP+2}, v{RP+3}")
        if xcc: k(f"v_min_u32 v14, v14, v254")
        k("v_cmp_eq_u32 vcc, 0, v14")
        k(f"s_cbranch_vccz {LXx}")
        k("s_sub_u32 s48, s48, 1")
        k("s_cmp_eq_u32 s48, 0")
        k(f"s_cbranch_scc1 {LXx}")
        k("s_sleep 16")
        chk_loads(foff, xcc)
        k(f"s_branch {LPp}")
        k(f"{LXx}:")
        if bar: k("s_barrier")
        if xcc: vm(f"buffer_load_dword v254, v13, {WS}, s89 offen sc1", 'xc')
    def duty_mode():
        vm.wait('xc')
        k("v_readfirstlane_b32 s39, v254")
        k("v_cmp_ne_u32 vcc, s39, v254")
        k("s_cmp_eq_u64 vcc, 0")
        k(f"s_cselect_b32 s{MODE}, 1, 0")
    CG, PAR, INV, U02, U1, SB, SIX = 90, 91, 92, 93, 94, 95, 96
    def dparams():
        k(f"s_and_b32 s{CG}, s{S_W}, 3")
        k(f"s_xor_b32 s{CG}, s{CG}, s{KP}")
        k(f"s_and_b32 s{PAR}, s{CG}, 1")
        slice_of(k, S_J, SB, SIX)
        k(f"s_and_b32 s97, s{TB}, s{SIX}")
        k(f"s_mul_i32 s39, s{CG}, 3")
        k("s_add_u32 s39, s39, 1")
        k(f"s_lshr_b32 s{U02}, s39, 1")
        k(f"s_sub_u32 s39, s{U02}, s{SIX}")
        k("s_cmp_eq_u32 s39, 5")
        k(f"s_cselect_b32 s{INV}, {OOB}, 0")
        k(f"s_lshr_b32 s40, s{CG}, 1")
        k("s_mul_i32 s40, s40, 3")
        k(f"s_add_u32 s{U1}, s40, 1")
    WOF, WI0, WI1, WI2 = 112, 176, 208, 48
    def win_off(s):
        if s == 0: sadd(k, 46, (U02, 0), (SB, 0), const=43)
        elif s == 2: sadd(k, 46, (U02, 0), (SB, 0))
        else:
            k(f"s_xor_b32 s46, s{PAR}, 1")
            k("s_mul_i32 s46, s46, 43")
            k(f"s_add_u32 s46, s46, s{U1}")
            k(f"s_add_u32 s46, s46, s{SB}")
        k("s_lshl_b32 s46, s46, 14")
        k(f"s_lshl_b32 s47, s{KP}, 10")
        k("s_add_u32 s46, s46, s47")
        k(f"s_add_u32 s46, s46, {W_WIN}")
        if s != 1: k(f"s_add_u32 s46, s46, s{INV}")
    def wload_list(base, n, setup, tag, step=2048):
        per = 4096 // step
        def mk(i):
            def f():
                if i == 0: setup()
                elif i % per == 0: k("s_add_u32 s46, s46, 4096")
                vm(f"buffer_load_dwordx4 {vr(base+4*i,4)}, v2, {WS}, s46 offen offset:{(i%per)*step} sc1", tag)
            return f
        return [mk(i) for i in range(n)]
    def wo_setup(): sadd(k, 46, (S_J, 16), (NB, 15), (KP, 10), const=W_WO)
    def pre1():
        ex = wload_list(WOF, 16, wo_setup, 'wo') + wload_list(WI0, 8, lambda: win_off(0), 'wi')
        return ex
    def wi2_warm():
        win_off(2); k("s_lshl_b32 s47, s7, 12"); k("s_add_u32 s46, s46, s47")
    def pre2():
        ex = wload_list(WI1, 8, lambda: win_off(1), 'wi')
        if OPT.get('warm', False):
            ex += warm(wi2_warm, 2, 2048)
            ex += warm(lambda: sadd(k, 46, (S_J, '*90112'), (7, '*22528'), (S_W, '*3072'), const=W_WOUT), 3)
        return ex
    def pre3():
        return warm(lambda: sadd(k, 46, (S_G, 18), (S_J, 15), (S_W, 12), const=W_WSP), 4) if OPT.get('warm', True) else []
    k("s_cmp_lg_u32 s58, 0")
    k(f"s_cbranch_scc1 {SLOW}")
    qsave = list(vm.q)
    k(f"ds_read_b128 {vr(KF,4)}, v{KADR}")
    k(f"s_mov_b64 exec, {sr(EXM,2)}")
    k(f"ds_read_b128 {vr(VF,4)}, v{VADR}")
    k("s_mov_b64 exec, -1")
    k("s_waitcnt lgkmcnt(0)")
    k(f"{MF32} {vr(S0,16)}, {vr(KF,4)}, {vr(QA,4)}, 0")
    dparams()
    el = early_list(); wl_ = wsp_list()
    nb = []
    def seg(t0, n, ex=None):
        PH[0] = t0; NBAR[0] = 0
        tiles(t0, n, ex); nb.append(NBAR[0])
    def spread(lst, n_slots):
        out = [nop_] * n_slots
        for i, f in enumerate(lst): out[i * n_slots // len(lst)] = f
        return out
    TA_, TB_, TC_, TD_ = OPT.get('sched', (2, 5, 11, 19))
    seg(0, TA_, el[:4*TA_])
    k.stamp('tA'); duty2(); k.stamp('repack')
    sl_ = sent_list()
    rest_ = el[4*TA_:]
    for i in range(len(rest_)):
        if rest_[i] is nop_ and sl_: rest_[i] = sl_.pop(0)
    seg(TA_, TB_-TA_, rest_[:4*(TB_-TA_)] )
    for f in rest_[4*(TB_-TA_):]: f()
    k.stamp('tB'); raise_flag(F_W); k.stamp('flagW')
    n_ = 4*(TC_-TB_)
    ex_ = wl_ + [nop_]*(n_ - 16)
    if OPT.get('own', True):
        def own_st(a_):
            def f():
                a_(); vm(f"buffer_store_dwordx4 {vr(DUM,4)}, v2, {WS}, s46 offen", 'dum')
            return f
        for i_, a_ in enumerate(own_addr): ex_[4*i_ + 2] = own_st(a_) if (OPT.get('ownst') and not OPT.get('land')) else warm(a_, 1)[0]
    ex_[n_ - 7] = lambda: chk_issue(F_W, True)
    seg(TB_, TC_-TB_, ex_)
    k.stamp('tC'); chk(F_W, True); k.stamp('chkW')
    pf = pre1() + pre2()
    n1 = len(pf) * (TD_-TC_) // (32-TC_)
    ex_ = spread(pre1()[:n1], 4*(TD_-TC_))
    ex_[4*(TD_-TC_) - 9] = (lambda f=ex_[4*(TD_-TC_) - 9]: (f(), wsp_store()))
    assert n1 <= 24
    seg(TC_, TD_-TC_, ex_)
    k.stamp('tD'); raise_flag(F_W2, wait='st'); k.stamp('flagW2')
    seg(TD_, 32-TD_, spread(pf[n1:] + pre3(), 4*(32-TD_) - 6))
    if OPT.get('prio'): k("s_setprio 0")
    duty_mode()
    k(f"{MF32} {vr(OB,16)}, {vr(VF+4,4)}, {vr(P+4,4)}, {vr(OB,16)}")
    k(f"{JOIN}:")
    k.stamp('attn end')
    chk_issue(F_W2); chk(F_W2, bar=False)
    L_C = 66560
    T = 24
    sadd(k, 36, (S_W, '*2304'), const=L_C)
    k("v_add_u32 v13, s36, v2")
    k("v_lshlrev_b32 v6, 2, v1")
    k("v_add_u32 v14, s36, v6")
    k(f"s_xor_b32 s37, s{S_W}, 4")
    sadd(k, 36, (37, '*2304'), const=L_C)
    k("v_add_u32 v11, s36, v2")
    k("v_add_u32 v12, s36, v6")
    sadd(k, 33, (S_G, 16), (TB, 15), (S_J, 12), (NB, 11), (KH, 10), const=W_O)
    LB_, LC_ = k.label(), k.label()
    k(f"s_cmp_eq_u32 s{KH}, 0")
    k(f"s_cbranch_scc1 {LB_}")
    k(f"ds_write_b128 v13, {vr(OA,4)}")
    k(f"ds_write_b128 v13, {vr(OA+4,4)} offset:1024")
    k(f"ds_write_b32 v14, v{OA+8} offset:2048")
    for i in range(9): k(f"v_mov_b32 v{OA+i}, v{OB+i}")
    k(f"s_branch {LC_}")
    k(f"{LB_}:")
    k(f"ds_write_b128 v13, {vr(OB,4)}")
    k(f"ds_write_b128 v13, {vr(OB+4,4)} offset:1024")
    k(f"ds_write_b32 v14, v{OB+8} offset:2048")
    k(f"{LC_}:")
    k("v_mov_b32 v14, 1")
    k("v_mov_b32 v255, 1")
    k("s_waitcnt lgkmcnt(0)")
    k("s_barrier")
    k(f"ds_read_b32 v{T+8}, v12 offset:2048")
    k(f"ds_read_b128 {vr(T,4)}, v11")
    k(f"ds_read_b128 {vr(T+4,4)}, v11 offset:1024")
    k("s_waitcnt lgkmcnt(2)")
    k(f"v_add_f32 v{OA+8}, v{OA+8}, v{T+8}")
    k(f"v_rcp_f32 v{OA+8}, v{OA+8}")
    k("s_waitcnt lgkmcnt(0)")
    for i in range(0, 8, 2): k(pk('add', OA+i, OA+i, T+i))
    for i in range(0, 8, 2): k(pk('mul', OA+i, OA+i, OA+8, None, "op_sel_hi:[1,0]"))
    for i in range(4): k(f"v_cvt_pk_bf16_f32 v{T+i}, v{OA+2*i}, v{OA+2*i+1}")
    store2(k, vm, f"buffer_store_dwordx4 {vr(T,4)}, v2, {WS}, s33 offen", 'o')
    ACC, AF = 80, 96
    L_C = 131072
    L_S = L_C + 16384
    RU = T + 8
    def unpack_res():
        for i in range(4):
            k(f"v_lshlrev_b32 v{RU+2*i}, 16, v{RES+i}")
            k(f"v_and_b32 v{RU+2*i+1}, 0xffff0000, v{RES+i}")
    def setup1():
        pub_addr(6, 76)
        sadd(k, 33, (S_G, 16), (S_W, 12), const=W_O)
        k(f"s_lshl_b32 s35, s{S_W}, 12")
        sadd(k, 37, (TB, 15), (KP, 10))
        k("v_add_u32 v3, s37, v2")
        sadd(k, 39, (S_W, 11), const=L_C)
        k("v_add_u32 v4, s39, v2")
        k("v_xor_b32 v5, 0x2000, v4")
        k("v_lshlrev_b32 v12, 4, v10")
        k("v_lshl_add_u32 v12, v9, 8, v12")
        k("v_bfe_u32 v11, v1, 4, 1")
        k("v_lshl_add_u32 v12, v11, 14, v12")
        sadd(k, 43, (S_G, 16), (TB, 15), (S_J, 11), (NB, 10), (KP, 9), const=W_H)
        sadd(k, 40, (KP, 10), (NB, 9), (TB, 8), const=L_S)
        k("v_lshlrev_b32 v11, 3, v8")
        k("v_add_u32 v11, s40, v11")

        unpack_res()

    if OPT.get('land'):
        k.stamp('o issued')
        setup1()
        k("v_add_u32 v14, s35, v2")
        def o_issue():
            for tb in range(2):
                k(f"s_add_u32 m0, s35, {tb*32768}")
                k(f"s_add_u32 s36, s33, {tb*32768}")
                for q in range(4): k(f"buffer_load_dwordx4 v2, {WS}, s36 offen offset:{q*1024} sc1 lds")
        land(k, vm, o_issue, [(14, tb*32768 + q*1024) for tb in range(2) for q in range(4)], 80, 'o landed')
    else:
        group_sync(k, vm, F_O, 'o', setup1)
        for tb in range(2):
            k(f"s_add_u32 m0, s35, {tb*32768}")
            k(f"s_add_u32 s36, s33, {tb*32768}")
            for q in range(4): vm(f"buffer_load_dwordx4 v2, {WS}, s36 offen offset:{q*1024} sc1 lds", 'ot')
        vm.all()
        k.stamp('o landed')
        k("s_barrier")
    wl = wload_list(WI2, 8, lambda: win_off(2), 'wi')
    for i in range(4): k(f"ds_read_b128 {vr(AF+4*i,4)}, v3 offset:{i*2048}")
    for i in range(16):
        k(f"s_waitcnt lgkmcnt({min(3, 15-i)})")
        k(f"{MF32} {vr(ACC,16)}, {vr(WOF+4*i,4)}, {vr(AF+4*(i%4),4)}, {vr(ACC,16) if i else 0}")
        if i + 4 < 16: k(f"ds_read_b128 {vr(AF+4*(i%4),4)}, v3 offset:{(i+4)*2048}")
        if wl: wl.pop(0)()
    LCc, LDd = k.label(), k.label()
    k(f"s_cmp_eq_u32 s{KP}, 0")
    k(f"s_cbranch_scc1 {LCc}")
    k(f"ds_write_b128 v4, {vr(ACC,4)}")
    k(f"ds_write_b128 v4, {vr(ACC+4,4)} offset:1024")
    for i in range(0, 8, 2): k(pk('add', ACC+i, ACC+8+i, RU+i))
    k(f"s_branch {LDd}")
    k(f"{LCc}:")
    k(f"ds_write_b128 v4, {vr(ACC+8,4)}")
    k(f"ds_write_b128 v4, {vr(ACC+12,4)} offset:1024")
    for i in range(0, 8, 2): k(pk('add', ACC+i, ACC+i, RU+i))
    k(f"{LDd}:")
    k("s_waitcnt lgkmcnt(0)")
    k("s_barrier")
    k(f"ds_read_b128 {vr(AF,4)}, v5")
    k(f"ds_read_b128 {vr(AF+4,4)}, v5 offset:1024")
    k(f"v_mov_b32 v{T}, 0"); k(f"v_mov_b32 v{T+1}, 0")
    k("s_waitcnt lgkmcnt(0)")
    for i in range(0, 8, 2): k(pk('add', ACC+i, ACC+i, AF+i))
    for i in range(4): k(f"v_cvt_pk_bf16_f32 v{RES+i}, v{ACC+2*i}, v{ACC+2*i+1}")
    store2(k, vm, f"buffer_store_dwordx4 {vr(RES,4)}, v12, {WS}, s43 offen", 'h')
    for q in range(4):
        k(f"v_dot2_f32_bf16 v{T}, v{RES+q}, s{ONES}, v{T}")
        k(f"v_dot2_f32_bf16 v{T+1}, v{RES+q}, v{RES+q}, v{T+1}")
    k(f"v_mov_b32 v{T+2}, v{T}"); k(f"v_mov_b32 v{T+3}, v{T+1}")
    k(f"v_permlane32_swap_b32 v{T}, v{T+2}"); k(f"v_permlane32_swap_b32 v{T+1}, v{T+3}")
    k(pk('add', T, T, T+2))
    k(f"ds_write_b64 v11, {vr(T,2)}")
    def publish(wsoff, ls, wait):
        L = k.label()
        k(f"s_cmp_lg_u32 s{S_W}, 0")
        k(f"s_cbranch_scc1 {L}")
        k("v_lshlrev_b32 v13, 3, v1")
        k(f"v_add_u32 v13, {ls}, v13")
        for p in range(4): k(f"ds_read_b64 {vr(T+2*p,2)}, v13 offset:{p*512}")
        k(f"s_add_u32 s47, s76, {wsoff}")
        k("s_waitcnt lgkmcnt(0)")
        k(pk('add', T, T, T+2)); k(pk('add', T+4, T+4, T+6)); k(pk('add', T, T, T+4))
        q = list(vm.q)
        store2(k, vm, f"buffer_store_dwordx2 {vr(T,2)}, v6, {WS}, s47 offen")
        vm.q = q
        if wait: k("s_waitcnt vmcnt(0)")
        k(f"{L}:")
    FH = NB
    WSPO = 98
    def wsp_dma_list(step0):
        region = 65536 if (step0 % 8) < 4 else 0
        def mk(s, u):
            def f():
                k(f"s_add_u32 m0, s99, {region + s*4096 + u*1024}")
                k(f"s_add_u32 s36, s{WSPO}, {u*65536 + (step0+s)*1024}")
                vm(f"buffer_load_dwordx4 v2, {WS}, s36 offen sc1 lds", f'sp{step0}')
            return f
        return [mk(s, u) for s in range(4) for u in range(2)]
    DACC, ST = 112, 16
    HFB = [80, 96, 160]
    TW, TR, Z1A, Z1B = 40, 41, 42, 43
    L_S2, L_Z1 = 49152, 151552
    def setup2():
        publish(W_HS, L_S, False)
        sadd(k, WSPO, (S_G, 18), (FH, 17), (KQ, 14), const=W_WSP)
        sadd(k, 99, (KQ, 14), (FH, 11))
        sadd(k, 33, (S_G, 16), (S_W, 11), const=W_H)
        k(f"s_lshl_b32 s35, s{S_W}, 11")
        k(f"s_lshl_b32 s38, s{KP}, 10")
        k("v_add_u32 v3, s38, v2")
        sadd(k, 74, (S_G, 12), (KP, 11))
        k(f"s_add_u32 s75, s74, {W_ZS}")
        k(f"s_add_u32 s74, s74, {W_HS}")
        k(f"s_lshr_b32 s39, s{CG}, 1")
        sadd(k, 38, (KP, 1), (39, 0))
        sadd(k, 39, (38, '*6144'), (PAR, 12), const=L_C)
        k("v_add_u32 v4, s39, v2")
        k("s_xor_b32 s38, s38, 2")
        sadd(k, 39, (38, '*6144'), (PAR, 12), const=L_C)
        k("v_add_u32 v5, s39, v2")
        k(f"s_lshl_b32 s39, s{S_W}, 12")
        k("v_add_u32 v12, s39, v2")
        sadd(k, 39, (S_W, 11), const=32768)
        k("v_lshrrev_b32 v13, 4, v1")
        k(f"v_lshlrev_b32 v{TW}, 5, v10")
        k(f"v_lshl_add_u32 v{TW}, v13, 3, v{TW}")
        k(f"v_add_u32 v{TW}, s39, v{TW}")
        k(f"v_bfe_u32 v{TR}, v1, 2, 2")
        k(f"v_lshl_add_u32 v{TR}, v13, 3, v{TR}")
        k(f"v_lshlrev_b32 v{TR}, 5, v{TR}")
        k("v_and_b32 v13, 3, v1")
        k(f"v_lshl_add_u32 v{TR}, v13, 3, v{TR}")
        k(f"v_add_u32 v{TR}, s39, v{TR}")
        k("v_lshlrev_b32 v13, 3, v1")
        sadd(k, 39, (U02, 11), (KP, 10), const=L_Z1)
        k(f"v_add_u32 v{Z1A}, s39, v13")
        sadd(k, 39, (U1, 11), (KP, 10), const=L_Z1)
        k(f"v_add_u32 v{Z1B}, s39, v13")
        sadd(k, 39, (CG, 9), (KP, 8), const=L_S2)
        k("v_lshlrev_b32 v11, 3, v10")
        k("v_add_u32 v11, s39, v11")
        sadd(k, 39, (U02, 0), (SB, 0))
        sadd(k, 80, (39, 16), (S_G, 11), (KP, 10), (INV, 0), const=W_Z2)
        sadd(k, 39, (U1, 0), (SB, 0))
        sadd(k, 81, (39, 16), (S_G, 11), (KP, 10), const=W_Z2)
    if OPT.get('land'):
        k("s_waitcnt lgkmcnt(0)")
        k.stamp('h issued')
        k("s_barrier")
        setup2()
        k("v_add_u32 v14, s35, v2")
        def h_issue():
            for tu in range(4):
                k(f"s_add_u32 m0, s35, {tu*16384}")
                k(f"s_add_u32 s36, s33, {tu*16384}")
                for q in range(2): k(f"buffer_load_dwordx4 v2, {WS}, s36 offen offset:{q*1024} sc1 lds")
        land(k, vm, h_issue, [(14, tu*16384 + q*1024) for tu in range(4) for q in range(2)], 80, 'h landed')
    else:
        k("s_waitcnt lgkmcnt(0)")
        group_sync(k, vm, F_H, 'h', setup2)
        for tu in range(4):
            k(f"s_add_u32 m0, s35, {tu*16384}")
            k(f"s_add_u32 s36, s33, {tu*16384}")
            for q in range(2): vm(f"buffer_load_dwordx4 v2, {WS}, s36 offen offset:{q*1024} sc1 lds", 'ht')
        vm.all()
        k.stamp('h landed')
        k("s_barrier")
    vm(f"buffer_load_dwordx4 {vr(ST,4)}, v2, {WS}, s74 offen sc1", 'hs')
    vm(f"buffer_load_dwordx4 {vr(ST+4,4)}, v2, {WS}, s74 offen offset:1024 sc1", 'hs')
    WI = [WI0, WI1, WI2]
    def sum_stats(src, t):
        for u in range(2): k(pk('add', src+4*u, src+4*u, src+4*u+2))
        for w_ in (16, 32):
            for u in range(2):
                for q in range(2): k(f"v_mov_b32 v{src+4*u+2+q}, v{src+4*u+q}")
            for u in range(2):
                for q in range(2): k(f"v_permlane{w_}_swap_b32 v{src+4*u+q}, v{src+4*u+2+q}")
            for u in range(2): k(pk('add', src+4*u, src+4*u, src+4*u+2))
    def mpass(slots, extra=None):
        def hread(i):
            for tu in range(4): k(f"ds_read_b128 {vr(HFB[i%3]+4*tu,4)}, v3 offset:{tu*16384 + i*2048}")
        hread(0); hread(1)
        for i in range(8):
            if i + 2 < 8: hread(i+2)
            ahead = min(2, 7 - i)
            for tu in range(4):
                k(f"s_waitcnt lgkmcnt({4*ahead + 3 - tu})")
                for s in slots:
                    a = DACC + 16*s + 4*tu
                    k(f"{MF16} {vr(a,4)}, {vr(WI[s]+4*i,4)}, {vr(HFB[i%3]+4*tu,4)}, {vr(a,4) if i else 0}")
            if extra: extra.pop(0)()
    def send(slots, ar, off):
        La, Lb = k.label(), k.label()
        k(f"s_cmp_eq_u32 s{KP}, 0")
        k(f"s_cbranch_scc1 {La}")
        for n, s in enumerate(slots):
            for u in range(2): k(f"ds_write_b128 v{ar}, {vr(DACC+16*s+4*u,4)} offset:{off + (2*n+u)*1024}")
        for n, s in enumerate(slots):
            for q in range(8): k(f"v_mov_b32 v{DACC+16*s+q}, v{DACC+16*s+8+q}")
        k(f"s_branch {Lb}")
        k(f"{La}:")
        for n, s in enumerate(slots):
            for u in range(2): k(f"ds_write_b128 v{ar}, {vr(DACC+16*s+8+4*u,4)} offset:{off + (2*n+u)*1024}")
        k(f"{Lb}:")
    def recv(slots, ar, off):
        for n, s in enumerate(slots):
            for u in range(2): k(f"ds_read_b128 {vr(DACC+16*s+8+4*u,4)}, v{ar} offset:{off + (2*n+u)*1024}")
    def gelu(slots, scale):
        prs = [(DACC+16*s+4*u+q, ST+4*u) for s in slots for u in range(2) for q in (0, 2)]
        for (x, c) in prs: k(pk('add', x, x, x+8))
        for (x, c) in prs: k(pk('mul', x+8, x, x))
        for (x, c) in prs: k(pk('fma', x+8, x+8, c, c, "op_sel:[0,0,1] op_sel_hi:[1,0,1]"))
        for (x, c) in prs: k(pk('mul', x+8, x+8, x))
        for (x, c) in prs:
            k(f"v_exp_f32 v{x+8}, v{x+8}"); k(f"v_exp_f32 v{x+9}, v{x+9}")
        for (x, c) in prs: k(pk('add', x+8, x+8, "1.0", None, "op_sel_hi:[1,0]"))
        if scale:
            for (x, c) in prs: k(pk('mul', x, x, c+2, None, "op_sel_hi:[1,0]"))
        for (x, c) in prs:
            k(f"v_rcp_f32 v{x+8}, v{x+8}"); k(f"v_rcp_f32 v{x+9}, v{x+9}")
        for (x, c) in prs: k(pk('mul', x, x, x+8))
    ZST = 240
    HOLD = 176
    HR = [r for i in range(8) for r in (WI0 + 4*i, WI1 + 4*i)]
    def hold_load(n):
        s_, u = n // 2, n % 2
        k(f"s_add_u32 s36, s{WSPO}, {u*65536 + (8+s_)*1024}")
        vm(f"buffer_load_dwordx4 {vr(HR[n],4)}, v2, {WS}, s36 offen sc1", 'hold')
    def validate(R, so):
        LPz, LXz = k.label("zp"), k.label("zpx")
        k(f"s_mov_b32 s48, {SPIN}")
        k(f"{LPz}:")
        k(f"v_max_u32 v{T}, v{R}, v{R+2}")
        k(f"v_max3_u32 v{T}, v{T}, v{R+4}, v{R+6}")
        k(f"v_cmp_eq_u32 vcc, -1, v{T}")
        k(f"s_cbranch_vccz {LXz}")
        k("s_sub_u32 s48, s48, 1")
        k("s_cmp_eq_u32 s48, 0")
        k(f"s_cbranch_scc1 {LXz}")
        k(f"buffer_load_dwordx4 {vr(R,4)}, v2, {WS}, s{so} offen sc1")
        k(f"buffer_load_dwordx4 {vr(R+4,4)}, v2, {WS}, s{so} offen offset:1024 sc1")
        k("s_waitcnt vmcnt(0)")
        k(f"s_branch {LPz}")
        k(f"{LXz}:")
    nst0 = getattr(k, 'nst', 0)
    def hstats():
        sum_stats(ST, T)
        for u in range(2): k(pk('mul', ST+4*u, ST+4*u, "s[82:83]"))
        for u in range(2): k(f"v_fma_f32 v{ST+4*u+3}, -v{ST+4*u}, v{ST+4*u}, v{ST+4*u+1}")
        for u in range(2): k(f"v_max_f32 v{ST+4*u+3}, 0, v{ST+4*u+3}")
        for u in range(2): k(f"v_add_f32 v{ST+4*u+3}, {hex(f2u(1e-5))}, v{ST+4*u+3}")
        for u in range(2): k(f"v_rsq_f32 v{ST+4*u+2}, v{ST+4*u+3}")
        for u in range(2): k(f"v_mul_f32 v{ST+4*u+3}, {hex(f2u(1e-5))}, v{ST+4*u+3}")
        for u in range(2): k(f"v_mul_f32 v{ST+4*u+1}, {hex(f2u(C0))}, v{ST+4*u+2}")
        for u in range(2): k(f"v_mul_f32 v{ST+4*u}, v{ST+4*u+2}, v{ST+4*u+2}")
        for u in range(2): k(f"v_mul_f32 v{ST+4*u}, v{ST+4*u}, v{ST+4*u+2}")
        for u in range(2): k(f"v_mul_f32 v{ST+4*u}, {hex(f2u(C1))}, v{ST+4*u}")
    def dmain():
        def hread(i): return [f"  ds_read_b128 {vr(HFB[i%3]+4*tu,4)}, v3 offset:{tu*16384 + i*2048}" for tu in range(4)]
        sp = wsp_dma_list(0)
        with Cap(k) as cs: hstats()
        hs_l = list(cs.lines)
        k.lines += hread(0) + hread(1)
        for i in range(8):
            if i == 4:
                vm.wait('hs'); validate(ST, 74)
            k(f"s_waitcnt lgkmcnt({4 if i < 7 else 0})")
            mf = [f"  {MF16} {vr(DACC+16*s_+4*tu,4)}, {vr(WI[s_]+4*i,4)}, {vr(HFB[i%3]+4*tu,4)}, {vr(DACC+16*s_+4*tu,4) if i else 0}" for tu in range(4) for s_ in range(3)]
            with Cap(k) as cf:
                if i + 2 < 8: k.lines += hread(i+2)
                sp[i]()
                if i >= 1: hold_load(2*i-2); hold_load(2*i-1)
                if i >= 4:
                    n = -(-len(hs_l) // (8 - i)); k.lines += hs_l[:n]; hs_l = hs_l[n:]
            k.lines += sprinkle(mf, cf.lines)
        hold_load(14); hold_load(15)
    def dvariant(par):
        z2s = [0, 1] if par == 0 else [0]
        z1s = [2] if par == 0 else [1, 2]
        qv = list(vm.q)
        if Kern.STAMPS: k.nst = nst0; k.stnames = k.stnames[:nst0]
        send(z2s, 4, 0)
        k("s_waitcnt lgkmcnt(0)")
        k.stamp('D mfma')
        k("s_barrier")
        k("v_xor_b32 v3, 0x5000, v12")
        recv(z2s, 5, 0)
        send(z1s, 12, 0)
        k(f"s_waitcnt lgkmcnt({2*len(z1s)})")
        gelu(z2s, False)
        for u in range(2):
            b = DACC + 4*u
            k(pk('add', T+4*u, b, b+2))
            k(pk('mul', T+4*u+2, b, b))
        for u in range(2): k(pk('fma', T+4*u+2, DACC+4*u+2, DACC+4*u+2, T+4*u+2))
        if par == 0:
            for q in (0, 2):
                for u in range(2):
                    b = DACC + 16 + 4*u + q
                    k(pk('add', T+4*u, T+4*u, b))
                    k(pk('fma', T+4*u+2, b, b, T+4*u+2))
        for u in range(2):
            k(f"v_add_f32 v{T+4*u}, v{T+4*u}, v{T+4*u+1}")
            k(f"v_add_f32 v{T+4*u+1}, v{T+4*u+2}, v{T+4*u+3}")
        for w_ in (16, 32):
            for u in range(2):
                for q in range(2): k(f"v_mov_b32 v{T+4*u+2+q}, v{T+4*u+q}")
            for u in range(2):
                for q in range(2): k(f"v_permlane{w_}_swap_b32 v{T+4*u+q}, v{T+4*u+2+q}")
            for u in range(2): k(pk('add', T+4*u, T+4*u, T+4*u+2))
        k(f"ds_write_b64 v11, {vr(T,2)}")
        k(f"ds_write_b64 v11, {vr(T+4,2)} offset:128")
        vm.wait('sp0')
        k("s_waitcnt lgkmcnt(0)")
        k.stamp('D gelu2')
        k("s_barrier")
        publish(W_ZS, L_S2, False)
        recv(z1s, 3, 0)
        k("s_waitcnt lgkmcnt(0)")
        with Cap(k) as cg_: gelu(z1s, True)
        hz = len(cg_.lines) * OPT.get('zsat', (0, 4))[par] // 8
        k.lines += cg_.lines[:hz]
        vm(f"buffer_load_dwordx4 {vr(ZST,4)}, v2, {WS}, s75 offen sc1", 'zs')
        vm(f"buffer_load_dwordx4 {vr(ZST+4,4)}, v2, {WS}, s75 offen offset:1024 sc1", 'zs')
        k.lines += cg_.lines[hz:]
        for s in z1s:
            for q in range(4): k(f"v_cvt_pk_bf16_f32 v{DACC+16*s+8+q}, v{DACC+16*s+2*q}, v{DACC+16*s+2*q+1}")
        k.stamp('D gelu1')
        vm.wait('zs')
        validate(ZST, 75)
        k.stamp('zs ok')
        sum_stats(ZST, T)
        for u in range(2): k(pk('mul', ZST+4*u, ZST+4*u, "s[84:85]"))
        for u in range(2): k(f"v_fma_f32 v{ZST+4*u+1}, -v{ZST+4*u}, v{ZST+4*u}, v{ZST+4*u+1}")
        for u in range(2): k(f"v_max_f32 v{ZST+4*u+1}, 0, v{ZST+4*u+1}")
        for u in range(2): k(f"v_add_f32 v{ZST+4*u+1}, v{ZST+4*u+1}, v{ST+4*u+3}")
        for u in range(2): k(f"v_rsq_f32 v{ZST+4*u+1}, v{ZST+4*u+1}")
        for u in range(2): k(f"v_mul_f32 v{ZST+4*u}, v{ZST+4*u}, v{ZST+4*u+1}")
        for n, s in enumerate(z2s):
            for u in range(2):
                for q in (0, 2):
                    x = DACC + 16*s + 4*u + q
                    k(pk('fma', x, x, ZST+4*u, ZST+4*u, "op_sel:[0,1,0] op_sel_hi:[1,1,0] neg_lo:[0,0,1] neg_hi:[0,0,1]"))
                for q in range(2):
                    k(f"v_cvt_pk_bf16_f32 v{DACC+16*s+8+2*u+q}, v{DACC+16*s+4*u+2*q}, v{DACC+16*s+4*u+2*q+1}")
                k(f"ds_write_b64 v{TW}, {vr(DACC+16*s+8+2*u,2)} offset:{n*1024 + u*512}")
        for s in z1s:
            a = Z1A if s == 2 else Z1B
            for u in range(2): k(f"ds_write_b64 v{a}, {vr(DACC+16*s+8+2*u,2)} offset:{u*512}")
        k(f"s_waitcnt lgkmcnt({2*len(z1s)})")
        for n, s in enumerate(z2s):
            k(f"ds_read_b64_tr_b16 {vr(DACC+16*s,2)}, v{TR} offset:{n*1024}")
            k(f"ds_read_b64_tr_b16 {vr(DACC+16*s+2,2)}, v{TR} offset:{n*1024+128}")
        for n, s in enumerate(z2s):
            k(f"s_waitcnt lgkmcnt({2*(len(z2s)-1-n)})")
            k(f"buffer_store_dwordx4 {vr(DACC+16*s,4)}, v2, {WS}, s{80+s} offen sc1")
        k.stamp('z2 issued')
        vm.q = qv
        return ['z2']
    HOLD = 176
    k(f"s_mov_b32 s82, {hex(f2u(1.0/512))}"); k(f"s_mov_b32 s83, {hex(f2u(1.0/512))}")
    k(f"s_mov_b32 s84, {hex(f2u(1.0/688))}"); k(f"s_mov_b32 s85, {hex(f2u(1.0/688))}")
    dmain()
    nst0 = getattr(k, 'nst', 0)
    LD1, LDJ = k.label("d1"), k.label("dj")
    k(f"s_cmp_lg_u32 s{PAR}, 0")
    k(f"s_cbranch_scc1 {LD1}")
    dvariant(0)
    k(f"s_branch {LDJ}")
    k(f"{LD1}:")
    vm.q = dvariant(1)
    k(f"{LDJ}:")
    srd(k, 60, A_BSP, 4096)
    srd(k, 16, A_OUT, 2048*1024)
    U0, INV2 = 53, 54
    sadd(k, U0, (FH, '*3'), (SB, 0))
    k(f"s_cmp_gt_u32 s{FH}, s{SIX}")
    k(f"s_cselect_b32 s{INV2}, {OOB}, 0")
    if OPT.get('efake'): sadd(k, 33, (FH, '*196608'), (KQ, 14), const=W_Z2)
    else: sadd(k, 33, (U0, 16), (KQ, 14), const=W_Z2)
    k("s_add_u32 s34, s33, 65536")
    k("s_add_u32 s35, s34, 65536")
    k(f"s_add_u32 s35, s35, s{INV2}")
    k(f"s_lshl_b32 s39, s{KQ}, 14")
    k("v_add_u32 v3, s39, v2")
    k("v_add_u32 v4, 0x10000, v3")
    k("v_add_u32 v5, s99, v2")
    k("v_add_u32 v11, 0x10000, v5")
    sadd(k, 40, (S_J, 5 + ZSH()), const=W_FLAG + F_Z)
    sadd(k, 41, (40, 0), (S_G, ZSH()))
    vm.wait('z2')
    k.stamp('z2 acked')
    k("s_barrier")
    LW0, LP3, LX3, LZa, LZb = k.label(), k.label("p3"), k.label("p3x"), k.label(), k.label()
    k(f"s_cmp_lg_u32 s{S_W}, 0")
    k(f"s_cbranch_scc1 {LW0}")
    k("s_mov_b64 exec, 1")
    k(f"buffer_store_dword v255, v15, {WS}, s41 offen sc1")
    k("s_mov_b64 exec, -1")
    k(f"{LW0}:")
    for f in wsp_dma_list(4): f()
    if OPT.get('zwarm'):
        sadd(k, 46, (SB, 16), (KQ, 14), (NB, 10), (7, 11), const=W_Z2)
        for n in range(OPT['zwarm']):
            half, u = n // 6, n % 6
            k(f"s_add_u32 s47, s46, {u*65536 + half*8192}")
            vm(f"buffer_load_dwordx4 {vr(248,4)}, v2, {WS}, s47 offen sc1", 'dum')
    k("v_lshlrev_b32 v13, 1, v10")
    sadd(k, 39, (S_G, 7), (KQ, 5))
    k("s_waitcnt lgkmcnt(0)")
    vm(f"buffer_load_ushort v160, v13, s[60:63], s39 offen", 'bsp')
    EACC, ZB, DEPTH = 112, 48, OPT.get('depth', 5)
    WFR = [16, 20, 24, 28, 32, 36, 40, 108]
    k(f"s_cmp_lg_u32 s{S_W}, 0")
    k(f"s_cbranch_scc1 {LZb}")
    k(f"s_mov_b32 s48, {SPIN}")
    k(f"{LP3}:")
    if OPT.get('s3smem', True):
        k(f"s_buffer_load_dwordx16 s[80:95], {WS}, s40 glc")
        k("s_add_u32 s41, s40, 64")
        k("s_sub_u32 s48, s48, 1")
        k("s_cmp_eq_u32 s48, 0")
        k(f"s_cbranch_scc1 {LX3}")
        k("s_waitcnt lgkmcnt(0)")
        for q in range(1, 8): k(f"s_and_b64 s[80:81], s[80:81], s[{80+2*q}:{81+2*q}]")
        k("s_and_b32 s36, s80, s81")
        k(f"s_cbranch_scc0 {LP3}")
        LP4 = k.label("p4")
        k(f"{LP4}:")
        k(f"s_buffer_load_dwordx16 s[80:95], {WS}, s41 glc")
        k("s_sub_u32 s48, s48, 1")
        k("s_cmp_eq_u32 s48, 0")
        k(f"s_cbranch_scc1 {LX3}")
        k("s_waitcnt lgkmcnt(0)")
        for q in range(1, 8): k(f"s_and_b64 s[80:81], s[80:81], s[{80+2*q}:{81+2*q}]")
        k("s_and_b32 s36, s80, s81")
        k(f"s_cbranch_scc0 {LP4}")
    else:
        k(f"v_lshlrev_b32 v13, {ZSH()}, v8")
        if OPT.get('s3sleep'): k(f"s_sleep {OPT['s3sleep']}")
        k(f"buffer_load_dword v161, v13, {WS}, s40 offen sc1")
        k("s_sub_u32 s48, s48, 1")
        k("s_cmp_eq_u32 s48, 0")
        k(f"s_cbranch_scc1 {LX3}")
        k("s_waitcnt vmcnt(0)")
        k("v_cmp_eq_u32 vcc, 0, v161")
        k(f"s_cbranch_vccnz {LP3}")
    k(f"{LX3}:")
    k("s_waitcnt lgkmcnt(0)")
    k(f"{LZb}:")
    k("s_barrier")
    k.stamp('S3 done')
    WOUT = 176
    def zload(i):
        if i % 4 == 0 and i > 0:
            for q in range(3): k(f"s_add_u32 s{33+q}, s{33+q}, 4096")
        for s in range(3):
            vm(f"buffer_load_dwordx4 {vr(ZB+12*(i%DEPTH)+4*s,4)}, v2, {WS}, s{33+s} offen offset:{(i%4)*1024} sc1", f'z{i}')
    def wread(i):
        a = 4 if (i % 8) < 4 else 3
        for tu in range(4): k(f"ds_read_b128 {vr(WFR[4*(i%2)+tu],4)}, v{a} offset:{(i%4)*4096 + tu*1024}")
    def wout_setup(): sadd(k, 46, (S_J, '*90112'), (NB, '*45056'), (KQ, 10), const=W_WOUT)
    wo_l = wload_list(WOUT, 11, wout_setup, 'wout', step=4096)
    if OPT.get('nowout'): wo_l = []
    for i in range(DEPTH - 1): zload(i)
    wread(0)
    retries = []
    for i in range(16):
        vm.wait(f'z{i}')
        k(f"s_waitcnt lgkmcnt({2 if (4 <= i < 11 and i % 4 != 3) else 0})")
        if i in (3, 7, 11):
            k.stamp(f'E{i}')
            k("s_barrier")
        mf = [f"  {MF16} {vr(EACC+12*tu+4*s_,4)}, {vr(ZB+12*(i%DEPTH)+4*s_,4)}, {vr(WFR[4*(i%2)+tu],4)}, {vr(EACC+12*tu+4*s_,4) if i else 0}" for tu in range(4) for s_ in range(3)]
        with Cap(k) as cf:
            if i + 1 < 16: wread(i+1)
            if 3 <= i < 11:
                a = 11 if i < 7 else 5
                for u in range(2): k(f"ds_write_b128 v{a}, {vr(HR[2*(i-3)+u],4)} offset:{((i-3)%4)*4096 + u*1024}")
            if i + DEPTH - 1 < 16: zload(i + DEPTH - 1)
            elif i >= 12:
                for _ in range(3):
                    if wo_l: wo_l.pop(0)()
        k.lines += sprinkle(mf, cf.lines)
    assert not wo_l
    k.stamp('E main')
    L_RED = 65536
    sadd(k, 39, (FH, '*36864'), const=L_RED)
    k("v_add_u32 v5, s39, v2")
    KEEP = 48
    LRJ = k.label("rj")
    labs = [k.label("rk") for _ in range(4)]
    for q in range(1, 4):
        k(f"s_cmp_eq_u32 s{KQ}, {q}")
        k(f"s_cbranch_scc1 {labs[q]}")
    k("v_lshlrev_b32 v160, 16, v160") if False else None
    for q in range(4):
        k(f"{labs[q]}:")
        for d in range(4):
            if d == q: continue
            off = d*9216 + (q - (1 if q > d else 0))*3072
            for s in range(3): k(f"ds_write_b128 v5, {vr(EACC+12*d+4*s,4)} offset:{off + s*1024}")
        k("v_lshlrev_b32 v160, 16, v160")
        for r in range(0, 12, 2): k(pk('add', KEEP+r, EACC+12*q+r, 160, None, "op_sel_hi:[1,0]"))
        if q < 3: k(f"s_branch {LRJ}")
    k(f"{LRJ}:")
    sadd(k, 39, (FH, '*36864'), (KQ, '*9216'), const=L_RED)
    k("v_add_u32 v5, s39, v2")
    k("v_lshlrev_b32 v13, 3, v1")
    sadd(k, 39, (FH, '*6144'), (KQ, 9), const=L_Z1)
    k("v_add_u32 v13, s39, v13")
    for s in range(3): k(f"ds_read_b64 {vr(162+2*s,2)}, v13 offset:{s*2048}")
    k("v_lshlrev_b32 v12, 9, v9")
    k("v_lshl_add_u32 v12, v10, 4, v12")
    k("v_bfe_u32 v13, v1, 4, 1")
    k("v_lshl_add_u32 v12, v13, 3, v12")
    sadd(k, 33, (S_G, '*90112'), (KP, '*45056'), (U0, 10), (TB, 8), const=W_Y)
    k(f"s_add_u32 s34, s33, s{INV2}")
    k("s_waitcnt lgkmcnt(0)")
    k("s_barrier")
    RB = 64
    for q in range(9): k(f"ds_read_b128 {vr(RB+4*q,4)}, v5 offset:{q*1024}")
    for s in range(3):
        for h in range(2):
            k(f"v_lshlrev_b32 v{16+4*s+2*h}, 16, v{162+2*s+h}")
            k(f"v_and_b32 v{16+4*s+2*h+1}, 0xffff0000, v{162+2*s+h}")
    for p in range(3):
        k(f"s_waitcnt lgkmcnt({6-3*p})")
        for r in range(0, 12, 2): k(pk('add', KEEP+r, KEEP+r, RB+12*p+r))
    for r in range(0, 12, 2): k(pk('mul', KEEP+r, KEEP+r, 16+r))
    for r in range(6): k(f"v_cvt_pk_bf16_f32 v{162+r}, v{KEEP+2*r}, v{KEEP+2*r+1}")
    store2(k, vm, [f"buffer_store_dwordx2 {vr(162+2*s,2)}, v12, {WS}, s{34 if s == 2 else 33} offen offset:{s*1024}" for s in range(3)], 'y')
    FA, AF = 48, 80
    L_FR = 98304
    def setup4():
        slice_of(k, S_W, 35, 34)
        k("s_lshl_b32 s35, s35, 10")
        sadd(k, 33, (S_G, '*90112'), (35, 0), const=W_Y)
        k(f"s_lshl_b32 s37, s{KQ}, 10")
        k("v_add_u32 v3, s37, v2")
        sadd(k, 39, (NB, '*24576'), const=L_FR)
        k("v_add_u32 v4, s39, v2")
        sadd(k, 39, (NB, '*24576'), (KQ, '*6144'), const=L_FR)
        k("v_add_u32 v5, s39, v2")
        unpack_res()
    if OPT.get('land'):
        k.stamp('y issued')
        setup4()
        k("v_add_u32 v14, s35, v2")
        k("v_add_u32 v11, 45056, v3")
        k("s_lshl_b32 s34, s34, 10")
        k("s_add_u32 s34, s34, 4096")
        k("v_add_u32 v12, s34, v14")
        k("s_barrier")
        def y_issue():
            for tb in range(2):
                k(f"s_add_u32 m0, s35, {tb*45056}")
                k(f"s_add_u32 s36, s33, {tb*45056}")
                for q in range(4): k(f"buffer_load_dwordx4 v2, {WS}, s36 offen offset:{q*1024} sc1 lds")
                k("s_add_u32 m0, m0, 4096")
                k("s_add_u32 s37, s36, 4096")
                k(f"buffer_load_dwordx4 v2, {WS}, s37 offen sc1 lds")
                k("s_add_u32 s37, s35, s34")
                k(f"s_add_u32 m0, s37, {tb*45056}")
                k("s_add_u32 s37, s36, s34")
                k(f"buffer_load_dwordx4 v2, {WS}, s37 offen sc1 lds")
        land(k, vm, y_issue, [(14, tb*45056 + q*1024) for tb in range(2) for q in range(5)] + [(12, 0), (12, 45056)], 48, 'y landed')
    else:
        group_sync(k, vm, F_Y, 'y', setup4)
        for tb in range(2):
            k(f"s_add_u32 m0, s35, {tb*45056}")
            k(f"s_add_u32 s36, s33, {tb*45056}")
            for q in range(4): k(f"buffer_load_dwordx4 v2, {WS}, s36 offen offset:{q*1024} sc1 lds")
            k(f"s_add_u32 m0, s35, {tb*45056 + 4096}")
            k(f"s_add_u32 s36, s33, {tb*45056 + 4096}")
            k(f"buffer_load_dwordx4 v2, {WS}, s36 offen sc1 lds")
        L6 = k.label()
        k("s_cmp_eq_u32 s34, 0")
        k(f"s_cbranch_scc1 {L6}")
        for tb in range(2):
            k(f"s_add_u32 m0, s35, {tb*45056 + 5120}")
            k(f"s_add_u32 s36, s33, {tb*45056 + 5120}")
            k(f"buffer_load_dwordx4 v2, {WS}, s36 offen sc1 lds")
        k(f"{L6}:")
        k("v_add_u32 v11, 45056, v3")
        vm.all()
        k.stamp('y landed')
        k("s_barrier")
    def yread(i):
        k(f"ds_read_b128 {vr(AF+8*(i%4),4)}, v3 offset:{i*4096}")
        k(f"ds_read_b128 {vr(AF+8*(i%4)+4,4)}, v11 offset:{i*4096}")
    for i in range(3): yread(i)
    for i in range(11):
        if i + 3 < 11: yread(i+3)
        k(f"s_waitcnt lgkmcnt({2*min(3, 10-i)})")
        if i == 10:
            LS = k.label()
            k(f"s_cmp_eq_u32 s{KQ}, 3")
            k(f"s_cbranch_scc1 {LS}")
        for tb in range(2):
            k(f"{MF32} {vr(FA+16*tb,16)}, {vr(WOUT+4*i,4)}, {vr(AF+8*(i%4)+4*tb,4)}, {vr(FA+16*tb,16) if i else 0}")
        if i == 10: k(f"{LS}:")
    LFJ = k.label("fj")
    labs = [k.label("fk") for _ in range(4)]
    for q in range(1, 4):
        k(f"s_cmp_eq_u32 s{KQ}, {q}")
        k(f"s_cbranch_scc1 {labs[q]}")
    for q in range(4):
        k(f"{labs[q]}:")
        for d in range(4):
            if d == q: continue
            off = d*6144 + (q - (1 if q > d else 0))*2048
            b = FA + 16*(d & 1) + 8*(d >> 1)
            for h in range(2): k(f"ds_write_b128 v4, {vr(b+4*h,4)} offset:{off + h*1024}")
        b = FA + 16*(q & 1) + 8*(q >> 1)
        for r in range(0, 8, 2): k(pk('add', RU+r, RU+r, b+r))
        if q < 3: k(f"s_branch {LFJ}")
    k(f"{LFJ}:")
    k("s_waitcnt lgkmcnt(0)")
    k("s_barrier")
    for q in range(6): k(f"ds_read_b128 {vr(AF+4*q,4)}, v5 offset:{q*1024}")
    for p in range(3):
        k(f"s_waitcnt lgkmcnt({4-2*p})")
        for r in range(0, 8, 2): k(pk('add', RU+r, RU+r, AF+8*p+r))
    for i in range(4): k(f"v_cvt_pk_bf16_f32 v{RES+i}, v{RU+2*i}, v{RU+2*i+1}")
    k(f"buffer_store_dwordx4 {vr(RES,4)}, v7, s[16:19], s52 offen")
    if Kern.STAMPS:
        k.stamp('out issued'); k("s_waitcnt vmcnt(0)"); k.stamp_flush(0, W_STAMP)
    k(f"{END}:")
    k("s_endpgm")
    for (i, LCk, LRt, LGo) in retries:
        k(f"{LRt}:")
        k("s_cmp_eq_u32 s48, 0")
        k(f"s_cbranch_scc1 {LGo}")
        k("s_sub_u32 s48, s48, 1")
        for s_ in range(3):
            k(f"s_add_u32 s36, s{80+s_}, {i*1024}")
            k(f"buffer_load_dwordx4 {vr(ZB+12*(i%DEPTH)+4*s_,4)}, v2, {WS}, s36 offen sc1")
        k("s_waitcnt vmcnt(0)")
        k(f"s_branch {LCk}")
    k(f"{SLOW}:")
    vm.q = list(qsave)
    dparams()
    for f in early_list(): f()
    def bars(n):
        for _ in range(n): k("s_barrier")
    bars(nb[0]); vm.all(); duty2()
    for f in sent_list(): f()
    bars(nb[1]); raise_flag(F_W)
    for f in wsp_list(): f()
    bars(nb[2])
    chk_issue(F_W, True); chk(F_W, True)
    wsp_store()
    bars(nb[3]); raise_flag(F_W2)
    for f in pre1() + pre2(): f()
    bars(nb[4])
    duty_mode()
    k("v_mov_b32 v12, v10")
    for i in range(16): k(f"v_mov_b32 v{OA+i}, 0"); k(f"v_mov_b32 v{OB+i}, 0")
    attn_slow(k, QA, OA, S0, S1, P, KF, VF, KH)
    attn_slow(k, QB, OB, S0, S1, P, KF, VF, KH)
    k("v_mov_b32 v10, v12")
    k("s_waitcnt vmcnt(0)")
    k(f"s_branch {JOIN}")
    return k

def build(path, stamps=False, **opt):
    Kern.STAMPS = stamps
    Kern.STAMPOP = 's_memtime' if opt.get('cyc') else 's_memrealtime'
    OPT.clear(); OPT.update(dict(l2local=True, force_slow=False)); OPT.update(opt)
    k = gen()
    txt = HEADER + "; @launch grid=(256,1,1) block=(512,1,1) lds=163840\n"
    txt += '.amdgcn_target "amdgcn-amd-amdhsa--gfx950"\n.text\n' + k.text() + k.desc()
    open(path, 'w').write(txt)
    if stamps:
        import json; json.dump(k.stnames, open(path + '.json', 'w'))
    return k

if __name__ == '__main__':
    B = dict(prio=True, s3smem=False, zsh=7)
    k = build('v7.s', **B); print('lines', len(k.lines), 'nops', k.nops)
    build('v7_cyc_st.s', stamps=True, cyc=True, **B)
    build('v7_st.s', stamps=True, **B)
    build('v7_slow.s', force_slow=True, **B)
    build('v7l.s', land=True, **B)
    build('v7s.s', ownst=True, **B)
    build('v7s_cyc_st.s', ownst=True, stamps=True, cyc=True, **B)
```
